```python
import torch

def _softmax(x, axis=-1):
    return torch.softmax(x, dim=axis)
def _gelu(x):
    return torch.nn.functional.gelu(x, approximate="tanh")
def _silu(x):
    return torch.nn.functional.silu(x)
def _sigmoid(x):
    return torch.sigmoid(x)
def _layernorm(x, axis=-1, eps=1e-5):
    m = x.mean(dim=axis, keepdim=True)
    v = x.var(dim=axis, keepdim=True, unbiased=False)
    return (x - m) / torch.sqrt(v + eps)
def _scatter_add(tgt, idx, src, axis=0):
    return tgt.clone().index_add_(axis, idx, src)
def _segment_sum(src, seg, n):
    out = torch.zeros((n,) + src.shape[1:], dtype=src.dtype)
    return out.index_add_(0, seg, src)
def _pad(x, pw):
    flat = tuple(v for pair in reversed(pw) for v in pair)
    return torch.nn.functional.pad(x, flat)

kernel_name = 'recurrent_scan__gqa_block_cached__dense_activation_silu__decode'

def setup_inputs():

    _w = (lambda a: (lambda t: t.to(torch.bfloat16) if t.is_floating_point() else t)(torch.as_tensor(a)))
    def _A_setup():
        B, Sq, D = 1, 1, 512
        Hq, Hkv, Sk, Dh = 32, 32, 8192, 128
        assert Hq % Hkv == 0, (Hq, Hkv)
        return {
            "x": _w((lambda *s: torch.randn(*s, dtype=torch.bfloat16) * 0.05)(B, Sq, D)),
            "k_cache": _w((lambda *s: torch.randn(*s, dtype=torch.bfloat16) * 3.2)(B, Hkv, Sk, Dh)),
            "v_cache": _w((lambda *s: torch.randn(*s, dtype=torch.bfloat16) * 3.2)(B, Hkv, Sk, Dh)),
            "wq": _w((lambda *s: torch.randn(*s, dtype=torch.bfloat16) * 3.2)(D, Hq * Dh) * (D ** -0.5)),
            "wo": _w((lambda *s: torch.randn(*s, dtype=torch.bfloat16) * 3.2)(Hq * Dh, D) * ((Hq * Dh) ** -0.5)),
        }
    _A_in = _A_setup()

    def _B_setup():
        B, S, D, F = 1, 1, 512, 1376
        return {
            "x": _w((lambda *s: torch.randn(*s, dtype=torch.bfloat16) * 0.05)(B, S, D)),
            "w1": _w((lambda *s: torch.randn(*s, dtype=torch.bfloat16) * 3.2)(D, F) * (D ** -0.5)),
            "w2": _w((lambda *s: torch.randn(*s, dtype=torch.bfloat16) * 0.4)(F, D) * (F ** -0.5)),
        }
    _B_in = _B_setup()

    return {
        "A_x": _A_in["x"],
        "A_k_cache": _A_in["k_cache"],
        "A_v_cache": _A_in["v_cache"],
        "A_wq": _A_in["wq"],
        "A_wo": _A_in["wo"],
        "B_x": _B_in["x"],
        "B_w1": _B_in["w1"],
        "B_w2": _B_in["w2"],
    }

def reference(A_x, A_k_cache, A_v_cache, A_wq, A_wo, B_x, B_w1, B_w2):
    def _A_ref(x, k_cache, v_cache, wq, wo):
        B, Sq, D = x.shape
        Hq, Dh = 32, 128
        Hkv = k_cache.shape[1]
        rep = Hq // Hkv
        q = (lambda x, *d: x.permute(*d))((x @ wq).reshape(B, Sq, Hq, Dh), 0, 2, 1, 3)
        k = (lambda x, n, axis: torch.repeat_interleave(x, n, dim=axis))(k_cache, rep, axis=1)
        v = (lambda x, n, axis: torch.repeat_interleave(x, n, dim=axis))(v_cache, rep, axis=1)
        scores = torch.einsum("bhqd,bhkd->bhqk", q, k) * (Dh ** -0.5)
        p = _softmax(scores, axis=-1)
        o = torch.einsum("bhqk,bhkd->bhqd", p, v)
        return (lambda x, *d: x.permute(*d))(o, 0, 2, 1, 3).reshape(B, Sq, Hq * Dh) @ wo

    def _B_ref(x, w1, w2):
        h = torch.einsum("bsd,df->bsf", x, w1)
        h = _silu(h)
        out = torch.einsum("bsf,fd->bsd", h, w2)
        return out

    x = A_x
    xn = _layernorm(x, axis=-1)
    s = _A_ref(xn, A_k_cache, A_v_cache, A_wq, A_wo)
    g = _silu(_B_ref(xn, B_w1, B_w2))
    return x + s * g
```

```python
import sys

KNAME = "recurrent_scan__gqa_block_cached__dense_activation_silu__decode_kernel"
HEADER = """; Kernarg layout for this problem (88 bytes, ptrs only, base s[0:1]):
;   offset  24: d_in[3] A_wq  shape=(512, 4096) dtype=bfloat16
"""

WS_Y = 0
WS_ML = 512 * 1024
WS_G = 512 * 1024 + 4096
NUNITS = 172
LOG2E = 0x3FB8AA3B
SCALE = 0x3DB504F3
EPS = 0x3727C5AC


class Gen:
    def __init__(self):
        self.L = []
        self.vm = []

    def A(self, s):
        self.L.append("    " + s)

    def label(self, s):
        self.L.append(s + ":")

    def C(self, s):
        self.L.append("    ; " + s)

    def vmem(self, s, tag):
        self.A(s)
        self.vm.append(tag)

    def wait(self, tag, extra=""):
        ids = [i for i, t in enumerate(self.vm) if t == tag]
        if not ids:
            return
        idx = max(ids)
        n = len(self.vm) - 1 - idx
        assert n <= 63
        self.A(f"s_waitcnt vmcnt({n}){extra}")
        self.vm = self.vm[idx + 1:]

    def nop(self, n):
        while n > 0:
            k = min(n, 16)
            self.A(f"s_nop {k-1}")
            n -= k

    def text(self):
        return "\n".join(self.L) + "\n"


def vr(a, n=4):
    return f"v[{a}:{a+n-1}]"


def allreduce64(g, op, v, t):
    ins = f"v_{op}_f32"
    for ctl in ("quad_perm:[1,0,3,2]", "quad_perm:[2,3,0,1]", "row_half_mirror", "row_mirror"):
        g.nop(2)
        g.A(f"{ins}_dpp v{v}, v{v}, v{v} {ctl} row_mask:0xf bank_mask:0xf")
    rows_allreduce(g, op, v, t)


def rows_allreduce(g, op, v, t):
    ins = f"v_{op}_f32"
    g.A(f"v_mov_b32 v{t}, v{v}")
    g.nop(2)
    g.A(f"v_permlane16_swap_b32 v{v}, v{t}")
    g.nop(1)
    g.A(f"{ins} v{v}, v{v}, v{t}")
    g.A(f"v_mov_b32 v{t}, v{v}")
    g.nop(2)
    g.A(f"v_permlane32_swap_b32 v{v}, v{t}")
    g.nop(1)
    g.A(f"{ins} v{v}, v{v}, v{t}")


def bf16r(g, v, t=None):
    g.A(f"v_cvt_pk_bf16_f32 v{v}, v{v}, v{v}")
    g.A(f"v_lshlrev_b32 v{v}, 16, v{v}")


def treduce(g, a, n):
    h = n // 2
    g.nop(2)
    for k in range(h):
        g.A(f"v_permlane32_swap_b32 v{a[k]}, v{a[k+h]}")
    g.nop(1)
    for k in range(h):
        g.A(f"v_add_f32 v{a[k]}, v{a[k]}, v{a[k+h]}")
    h //= 2
    g.nop(2)
    for k in range(h):
        g.A(f"v_permlane16_swap_b32 v{a[k]}, v{a[k+h]}")
    g.nop(1)
    for k in range(h):
        g.A(f"v_add_f32 v{a[k]}, v{a[k]}, v{a[k+h]}")
    h //= 2
    g.nop(2)
    dst = [a[n // 2 + k] for k in range(h)]
    for k in range(h):
        g.A(f"v_add_f32_dpp v{dst[k]}, v{a[k]}, v{a[k]} row_ror:8 row_mask:0xf bank_mask:0x3")
        g.A(f"v_add_f32_dpp v{dst[k]}, v{a[k+h]}, v{a[k+h]} row_ror:8 row_mask:0xf bank_mask:0xc")
    if h == 2:
        g.nop(2)
        g.A(f"v_add_f32_dpp v{a[0]}, v{dst[0]}, v{dst[0]} row_half_mirror row_mask:0xf bank_mask:0x5")
        g.A(f"v_add_f32_dpp v{a[0]}, v{dst[1]}, v{dst[1]} row_half_mirror row_mask:0xf bank_mask:0xa")
    else:
        g.nop(2)
        g.A(f"v_add_f32_dpp v{a[0]}, v{dst[0]}, v{dst[0]} row_half_mirror row_mask:0xf bank_mask:0xf")
    g.nop(2)
    g.A(f"v_add_f32_dpp v{a[0]}, v{a[0]}, v{a[0]} quad_perm:[1,0,3,2] row_mask:0xf bank_mask:0xf")
    g.nop(2)
    g.A(f"v_add_f32_dpp v{a[0]}, v{a[0]}, v{a[0]} quad_perm:[2,3,0,1] row_mask:0xf bank_mask:0xf")


def srd(g, s, blo, bhi, off_sgpr, nrec):
    if off_sgpr is None:
        g.A(f"s_mov_b32 s{s}, s{blo}")
        g.A(f"s_mov_b32 s{s+1}, s{bhi}")
    else:
        g.A(f"s_add_u32 s{s}, s{blo}, {off_sgpr}")
        g.A(f"s_addc_u32 s{s+1}, s{bhi}, 0")
    g.A(f"s_mov_b32 s{s+2}, {nrec}")
    g.A(f"s_mov_b32 s{s+3}, 0x00020000")


def kernel_main(g, P):
    RING = P.get("ring", 36)
    KVF = P.get("kvflags", "")
    name = P["name"]
    vTID = 0
    vL, vJ, vG = 1, 2, 3
    vM = 4
    vKo, vVo, vWQo, vWOo = 8, 9, 10, 11
    vT = 12
    vQB = 28
    vSC = 44
    vA = 76
    vD = 84
    vXA = 88
    vXM = 92
    vW1 = 100
    vW2 = 104
    vXT = 108
    vLs = 109
    vMx = 110
    vR = 112
    nv = vR + 4 * RING
    assert nv <= 256
    def slot(j):
        return vR + 4 * (j % RING)

    L_QP = 0
    L_QB = 4096
    L_HP = 6144
    L_MX = 6400
    L_LS = 6464
    L_YP = 8192
    L_OP = 24576
    L_OB = 28672
    lds = 30720

    A = g.A
    g.label(name)
    A("s_load_dwordx8 s[4:11], s[0:1], 0")
    A("s_load_dwordx2 s[12:13], s[0:1], 32")
    A("s_load_dwordx4 s[16:19], s[0:1], 48")
    A("s_load_dwordx2 s[14:15], s[0:1], 80")
    A("s_cmp_ge_u32 s2, 256")
    A(f"s_cbranch_scc1 {name}_end")
    A(f"v_lshrrev_b32 v{vT}, 6, v{vTID}")
    A(f"v_and_b32 v{vL}, 63, v{vTID}")
    A(f"v_readfirstlane_b32 s3, v{vT}")
    A(f"v_and_b32 v{vJ}, 15, v{vL}")
    A(f"v_lshrrev_b32 v{vG}, 4, v{vL}")
    A("s_and_b32 s20, s2, 7")
    A("s_lshl_b32 s20, s20, 2")
    A("s_lshr_b32 s21, s2, 3")
    A("s_and_b32 s22, s21, 3")
    A("s_add_u32 s20, s20, s22")
    A("s_lshr_b32 s21, s2, 5")
    A("s_lshl_b32 s22, s20, 3")
    A("s_add_u32 s22, s22, s21")
    A("s_and_b32 s23, s2, 7")
    A("s_mul_i32 s23, s23, 22")
    A("s_lshr_b32 s24, s2, 3")
    A("s_add_u32 s23, s23, s24")
    A("s_cmp_lt_u32 s24, 22")
    A("s_cselect_b32 s23, s23, 0xffff")
    A(f"s_cmp_lt_u32 s23, {NUNITS}")
    A("s_cselect_b32 s25, 1, 0")
    A("s_cselect_b32 s23, s23, 0")
    A(f"v_lshlrev_b32 v{vKo}, 8, v{vJ}")
    A(f"v_lshl_add_u32 v{vKo}, v{vG}, 4, v{vKo}")
    A(f"v_lshlrev_b32 v{vVo}, 4, v{vJ}")
    A(f"v_lshl_add_u32 v{vWQo}, v{vG}, 17, v{vVo}")
    A(f"v_lshl_add_u32 v{vVo}, v{vG}, 10, v{vVo}")
    A(f"v_lshrrev_b32 v{vT}, 3, v{vJ}")
    A(f"v_lshl_add_u32 v{vT}, v{vG}, 1, v{vT}")
    A(f"v_and_b32 v{vT+1}, 7, v{vJ}")
    A(f"v_lshlrev_b32 v{vT+1}, 4, v{vT+1}")
    A(f"v_lshl_add_u32 v{vWOo}, v{vT}, 14, v{vT+1}")
    A(f"v_lshlrev_b32 v{vT+2}, 4, v{vL}")
    A(f"v_lshlrev_b32 v{vT+3}, 5, v{vG}")
    A(f"v_lshlrev_b32 v{vT+4}, 1, v{vTID}")
    A("s_movk_i32 s26, 2752")
    A(f"v_mul_lo_u32 v{vT+5}, v{vTID}, s26")
    A("s_waitcnt lgkmcnt(0)")
    sX, sK, sV, sWQ, sWO, sW1, sW2, sY, sGs = 28, 32, 36, 40, 44, 48, 52, 56, 60
    srd(g, sX, 4, 5, None, 1024)
    A("s_lshl_b32 s26, s22, 18")
    srd(g, sK, 6, 7, "s26", 262144)
    srd(g, sV, 8, 9, "s26", 262144)
    A("s_lshl_b32 s26, s20, 8")
    A("s_lshl_b32 s27, s3, 19")
    A("s_add_u32 s26, s26, s27")
    A("s_sub_u32 s27, 0x400000, s26")
    srd(g, sWQ, 10, 11, "s26", "s27")
    A("s_lshl_b32 s26, s20, 17")
    A("s_lshl_b32 s27, s3, 7")
    A("s_add_u32 s26, s26, s27")
    A("s_sub_u32 s27, 0x400000, s26")
    srd(g, sWO, 12, 13, "s26", "s27")
    A("s_lshl_b32 s26, s23, 4")
    A(f"s_sub_u32 s27, {512*2752}, s26")
    A("s_mul_i32 s27, s27, s25")
    srd(g, sW1, 16, 17, "s26", "s27")
    A("s_lshl_b32 s26, s23, 3")
    A("s_add_u32 s26, s26, s3")
    A("s_lshl_b32 s26, s26, 10")
    A("s_lshl_b32 s27, s25, 10")
    srd(g, sW2, 18, 19, "s26", "s27")
    g.vmem(f"buffer_load_dwordx4 {vr(vXA)}, v{vT+2}, s[{sX}:{sX+3}], 0 offen", "xa")
    A("s_lshl_b32 s26, s3, 7")
    g.vmem(f"buffer_load_dwordx4 {vr(vXM)}, v{vT+3}, s[{sX}:{sX+3}], s26 offen", "xm")
    g.vmem(f"buffer_load_dwordx4 {vr(vXM+4)}, v{vT+3}, s[{sX}:{sX+3}], s26 offen offset:16", "xm")
    g.vmem(f"buffer_load_ushort v{vXT}, v{vT+4}, s[{sX}:{sX+3}], 0 offen", "xt")
    stream = []
    for t in range(16):
        stream.append(("wq", t))
    for i in range(8):
        for m in range(4):
            stream.append(("k", i, m))
    for i in range(8):
        for r in range(4):
            stream.append(("v", i, r))
    for t in range(16):
        stream.append(("wo", t))
    NS = len(stream)
    state = {"next": 0}
    A("s_lshl_b32 s64, s3, 12")

    def issue(n):
        for _ in range(n):
            j = state["next"]
            if j >= NS:
                return
            it = stream[j]
            sl = slot(j)
            if it[0] == "wq":
                t = it[1]
                A(f"s_mov_b32 s65, {t*8192}")
                g.vmem(f"buffer_load_dwordx4 {vr(sl)}, v{vWQo}, s[{sWQ}:{sWQ+3}], s65 offen", ("s", j))
            elif it[0] == "k":
                _, i, m = it
                if m == 0:
                    A(f"s_add_u32 s66, s64, {i*32768}")
                g.vmem(f"buffer_load_dwordx4 {vr(sl)}, v{vKo}, s[{sK}:{sK+3}], s66 offen offset:{m*64} {KVF}", ("s", j))
            elif it[0] == "v":
                _, i, r = it
                if r == 0:
                    A(f"s_add_u32 s67, s64, {i*32768}")
                g.vmem(f"buffer_load_dwordx4 {vr(sl)}, v{vVo}, s[{sV}:{sV+3}], s67 offen offset:{r*256} {KVF}", ("s", j))
            else:
                t = it[1]
                if t % 4 == 0:
                    A(f"s_mov_b32 s68, {(t//4)*4096}")
                g.vmem(f"buffer_load_dwordx4 {vr(sl)}, v{vWOo}, s[{sWO}:{sWO+3}], s68 offen offset:{(t%4)*1024}", ("s", j))
            state["next"] = j + 1

    issue(16)
    g.vmem(f"buffer_load_dwordx4 {vr(vW1)}, v{vT+5}, s[{sW1}:{sW1+3}], 0 offen", "w1")
    g.vmem(f"buffer_load_dwordx4 {vr(vW2)}, v{vT+2}, s[{sW2}:{sW2+3}], 0 offen", "w2")
    issue(RING - 16)

    A(f"v_and_b32 v{vT}, 1, v{vJ}")
    A(f"v_lshlrev_b32 v{vT}, 4, v{vT}")
    A(f"v_mov_b32 v{vT+1}, 0xffff")
    A(f"v_lshlrev_b32 v{vT+1}, v{vT}, v{vT+1}")
    A(f"v_bfe_u32 v{vT}, v{vJ}, 1, 2")
    for r in range(4):
        A(f"v_cmp_eq_u32 vcc, {r}, v{vT}")
        g.nop(2)
        A(f"v_cndmask_b32 v{vM+r}, 0, v{vT+1}, vcc")

    g.wait("xa")
    X = vT
    for k in range(4):
        A(f"v_lshlrev_b32 v{X+2*k}, 16, v{vXA+k}")
        A(f"v_and_b32 v{X+2*k+1}, 0xffff0000, v{vXA+k}")
    S, Tm = vT + 8, vT + 9
    A(f"v_add_f32 v{S}, v{X}, v{X+1}")
    for k in range(2, 8):
        A(f"v_add_f32 v{S}, v{S}, v{X+k}")
    allreduce64(g, "add", S, Tm)
    A(f"v_mul_f32 v{S}, 0x3b000000, v{S}")
    Q = vT + 10
    for k in range(8):
        A(f"v_sub_f32 v{X+k}, v{X+k}, v{S}")
    A(f"v_mul_f32 v{Q}, v{X}, v{X}")
    for k in range(1, 8):
        A(f"v_fmac_f32 v{Q}, v{X+k}, v{X+k}")
    allreduce64(g, "add", Q, Tm)
    A(f"v_mul_f32 v{Q}, 0x3b000000, v{Q}")
    bf16r(g, S)
    bf16r(g, Q)
    A(f"v_add_f32 v{Q}, {hex(EPS)}, v{Q}")
    bf16r(g, Q)
    A(f"v_sqrt_f32 v{Q}, v{Q}")
    g.nop(1)
    bf16r(g, Q)
    RS = vT + 11
    A(f"v_rcp_f32 v{RS}, v{Q}")
    g.nop(1)
    MEAN, SD = S, Q

    def normalize(src, dst_dup, t0, t1):
        A(f"v_sub_f32 v{src}, v{src}, v{MEAN}")
        bf16r(g, src)
        A(f"v_mul_f32 v{t0}, v{src}, v{RS}")
        A(f"v_fma_f32 v{t1}, -v{t0}, v{SD}, v{src}")
        A(f"v_fma_f32 v{t0}, v{t1}, v{RS}, v{t0}")
        A(f"v_cvt_pk_bf16_f32 v{dst_dup}, v{t0}, v{t0}")

    g.wait("xm")
    for k in range(8):
        A(f"v_lshlrev_b32 v{X}, 16, v{vXM+k}")
        A(f"v_and_b32 v{X+1}, 0xffff0000, v{vXM+k}")
        normalize(X, vSC + 2 * k, X + 2, X + 3)
        normalize(X + 1, vSC + 2 * k + 1, X + 4, X + 5)
    g.wait("xt")
    A(f"v_lshlrev_b32 v{vXT}, 16, v{vXT}")
    normalize(vXT, vXT, X + 2, X + 3)
    A(f"v_lshlrev_b32 v{vXT}, 16, v{vXT}")

    def ands(src, aset):
        for r in range(4):
            A(f"v_and_b32 v{vA+4*aset+r}, v{vM+r}, v{src}")

    def gemv(nm, j0, srcs, D, after=None):
        ands(srcs[0], 0)
        for t in range(nm):
            if t + 1 < nm:
                ands(srcs[t + 1], (t + 1) % 2)
            else:
                g.nop(2)
            g.wait(("s", j0 + t))
            c = "0" if t == 0 else vr(D)
            A(f"v_mfma_f32_16x16x32_bf16 {vr(D)}, {vr(vA+4*(t%2))}, {vr(slot(j0+t))}, {c}")

    gemv(16, 0, [vSC + t for t in range(16)], vD)
    issue(16)
    g.wait("w1")
    H = vT
    for k in range(4):
        A(f"v_lshlrev_b32 v{H+2*k}, 16, v{vW1+k}")
        A(f"v_and_b32 v{H+2*k+1}, 0xffff0000, v{vW1+k}")
    for k in range(8):
        A(f"v_mul_f32 v{H+k}, v{H+k}, v{vXT}")
    treduce(g, [H + k for k in range(8)], 8)
    aQ = vT + 8
    A(f"v_and_b32 v{aQ}, 1, v{vG}")
    A(f"v_lshlrev_b32 v{aQ}, 4, v{aQ}")
    A(f"v_lshl_add_u32 v{aQ}, v{vJ}, 5, v{aQ}")
    A("s_lshl_b32 s26, s3, 9")
    A(f"v_add_u32 v{aQ}, s26, v{aQ}")
    A(f"ds_write_b128 v{aQ}, {vr(vD)} offset:{L_QP}")
    aH = vT + 9
    A(f"v_lshrrev_b32 v{aH}, 3, v{vL}")
    A(f"v_lshlrev_b32 v{aH}, 5, v{aH}")
    A("s_lshl_b32 s26, s3, 2")
    A(f"v_add_u32 v{aH}, s26, v{aH}")
    A(f"ds_write_b32 v{aH}, v{H} offset:{L_HP}")
    A("s_waitcnt lgkmcnt(0)")
    A("s_barrier")
    aR = vT + 8
    A(f"v_lshlrev_b32 v{aR}, 3, v{vL}")
    for w in range(8):
        A(f"ds_read_b64 v[{vQB+2*w}:{vQB+2*w+1}], v{aR} offset:{L_QP + w*512}")
    A("s_lshl_b32 s26, s3, 5")
    A(f"v_mov_b32 v{aH}, s26")
    A(f"ds_read_b128 {vr(vT)}, v{aH} offset:{L_HP}")
    A(f"ds_read_b128 {vr(vT+4)}, v{aH} offset:{L_HP+16}")
    A("s_waitcnt lgkmcnt(0)")
    for w in range(1, 8):
        A(f"v_add_f32 v{vQB}, v{vQB}, v{vQB+2*w}")
        A(f"v_add_f32 v{vQB+1}, v{vQB+1}, v{vQB+2*w+1}")
    A(f"v_cvt_pk_bf16_f32 v{vQB}, v{vQB}, v{vQB+1}")
    A(f"v_lshlrev_b32 v{aR}, 2, v{vL}")
    A("s_lshl_b32 s26, s3, 8")
    A(f"v_add_u32 v{aR}, s26, v{aR}")
    A(f"ds_write_b32 v{aR}, v{vQB} offset:{L_QB}")
    Hs = vT
    for k in range(1, 8):
        A(f"v_add_f32 v{Hs}, v{Hs}, v{vT+k}")
    bf16r(g, Hs)

    def silu(v, t):
        A(f"v_mul_f32 v{t}, {hex(LOG2E ^ 0x80000000)}, v{v}")
        A(f"v_exp_f32 v{t}, v{t}")
        g.nop(1)
        A(f"v_add_f32 v{t}, 1.0, v{t}")
        A(f"v_rcp_f32 v{t+1}, v{t}")
        g.nop(1)
        A(f"v_mul_f32 v{t+2}, v{v}, v{t+1}")
        A(f"v_fma_f32 v{t+3}, -v{t+2}, v{t}, v{v}")
        A(f"v_fma_f32 v{t+2}, v{t+3}, v{t+1}, v{t+2}")
        A(f"v_cmp_lt_f32 vcc, 0x7f000000, v{t}")
        A(f"v_mul_f32 v{t+3}, v{v}, v{t+1}")
        g.nop(1)
        A(f"v_cndmask_b32 v{v}, v{t+2}, v{t+3}, vcc")
        bf16r(g, v)

    silu(Hs, vT + 1)
    A("s_waitcnt lgkmcnt(0)")
    aB = vT + 8
    A(f"v_lshlrev_b32 v{aB}, 4, v{vG}")
    A(f"v_add_u32 v{aB}, s26, v{aB}")
    for m in range(4):
        A(f"ds_read_b128 {vr(vQB+4*m)}, v{aB} offset:{L_QB + m*64}")
    g.wait("w2")
    Yg = vT + 8
    for k in range(4):
        A(f"v_lshlrev_b32 v{Yg+2*k}, 16, v{vW2+k}")
        A(f"v_and_b32 v{Yg+2*k+1}, 0xffff0000, v{vW2+k}")
    for k in range(8):
        A(f"v_mul_f32 v{Yg+k}, v{Yg+k}, v{Hs}")
    aY = vT + 1
    A(f"v_lshlrev_b32 v{aY}, 5, v{vL}")
    A("s_lshl_b32 s26, s3, 11")
    A(f"v_add_u32 v{aY}, s26, v{aY}")
    A(f"ds_write_b128 v{aY}, {vr(Yg)} offset:{L_YP}")
    A(f"ds_write_b128 v{aY}, {vr(Yg+4)} offset:{L_YP+16}")
    A("s_waitcnt lgkmcnt(0)")
    A("s_barrier")
    A(f"v_lshlrev_b32 v{aY}, 2, v{vTID}")
    for w in range(8):
        A(f"ds_read_b32 v{Yg+w}, v{aY} offset:{L_YP + w*2048}")

    def post(i):
        b = vSC + 4 * i
        t = vA
        A(f"v_cvt_pk_bf16_f32 v{t}, v{b}, v{b+1}")
        A(f"v_cvt_pk_bf16_f32 v{t+1}, v{b+2}, v{b+3}")
        A(f"v_lshlrev_b32 v{b}, 16, v{t}")
        A(f"v_and_b32 v{b+1}, 0xffff0000, v{t}")
        A(f"v_lshlrev_b32 v{b+2}, 16, v{t+1}")
        A(f"v_and_b32 v{b+3}, 0xffff0000, v{t+1}")
        for r in range(4):
            A(f"v_mul_f32 v{b+r}, {hex(SCALE)}, v{b+r}")
        A(f"v_cvt_pk_bf16_f32 v{t}, v{b}, v{b+1}")
        A(f"v_cvt_pk_bf16_f32 v{t+1}, v{b+2}, v{b+3}")
        A(f"v_lshlrev_b32 v{b}, 16, v{t}")
        A(f"v_and_b32 v{b+1}, 0xffff0000, v{t}")
        A(f"v_lshlrev_b32 v{b+2}, 16, v{t+1}")
        A(f"v_and_b32 v{b+3}, 0xffff0000, v{t+1}")
        if i == 0:
            A(f"v_max3_f32 v{vMx}, v{b}, v{b+1}, v{b+2}")
            A(f"v_max_f32 v{vMx}, v{vMx}, v{b+3}")
        else:
            A(f"v_max3_f32 v{vMx}, v{vMx}, v{b}, v{b+1}")
            A(f"v_max3_f32 v{vMx}, v{vMx}, v{b+2}, v{b+3}")

    first = True
    for i in range(8):
        j0 = 16 + 4 * i
        for m in range(4):
            g.wait(("s", j0 + m))
            c = "0" if m == 0 else vr(vSC + 4 * i)
            A(f"v_mfma_f32_16x16x32_bf16 {vr(vSC+4*i)}, {vr(slot(j0+m))}, {vr(vQB+4*m)}, {c}")
            if first:
                pass
        if i == 0:
            A("s_waitcnt lgkmcnt(0)")
            for w in range(1, 8):
                A(f"v_add_f32 v{Yg}, v{Yg}, v{Yg+w}")
            A(f"s_mul_i32 s26, s23, 2048")
            A(f"s_add_u32 s26, s26, {WS_G}")
            A("s_lshl_b32 s27, s25, 11")
            srd(g, sGs, 14, 15, "s26", "s27")
            g.vmem(f"buffer_store_dword v{Yg}, v{aY}, s[{sGs}:{sGs+3}], 0 offen", "gst")
        issue(4)
        if i > 0:
            post(i - 1)
    g.nop(8)
    post(7)
    rows_allreduce(g, "max", vMx, vT)
    A("s_lshl_b32 s26, s3, 2")
    A(f"v_mov_b32 v{vT}, s26")
    A(f"ds_write_b32 v{vT}, v{vMx} offset:{L_MX}")
    A("s_waitcnt lgkmcnt(0)")
    A("s_barrier")
    A(f"v_mov_b32 v{vT}, 0")
    A(f"ds_read_b128 {vr(vT+4)}, v{vT} offset:{L_MX}")
    A(f"ds_read_b128 {vr(vT+8)}, v{vT} offset:{L_MX+16}")
    A("s_waitcnt lgkmcnt(0)")
    A(f"v_max3_f32 v{vMx}, v{vT+4}, v{vT+5}, v{vT+6}")
    A(f"v_max3_f32 v{vMx}, v{vMx}, v{vT+7}, v{vT+8}")
    A(f"v_max3_f32 v{vMx}, v{vMx}, v{vT+9}, v{vT+10}")
    A(f"v_max_f32 v{vMx}, v{vMx}, v{vT+11}")
    A(f"s_mov_b32 s26, {hex(LOG2E)}")
    A(f"v_mul_f32 v{vT}, s26, v{vMx}")
    for k in range(32):
        A(f"v_fma_f32 v{vSC+k}, v{vSC+k}, s26, -v{vT}")
    for k in range(32):
        A(f"v_exp_f32 v{vSC+k}, v{vSC+k}")
    g.nop(1)
    A(f"v_add_f32 v{vLs}, v{vSC}, v{vSC+1}")
    for k in range(2, 32):
        A(f"v_add_f32 v{vLs}, v{vLs}, v{vSC+k}")
    for k in range(32):
        A(f"v_cvt_pk_bf16_f32 v{vSC+k}, v{vSC+k}, v{vSC+k}")
    rows_allreduce(g, "add", vLs, vT)
    j0 = 48
    ands(vSC, 0)
    for t in range(32):
        if t + 1 < 32:
            ands(vSC + t + 1, (t + 1) % 2)
        else:
            g.nop(2)
        g.wait(("s", j0 + t))
        c = "0" if t == 0 else vr(vD)
        A(f"v_mfma_f32_16x16x32_bf16 {vr(vD)}, {vr(vA+4*(t%2))}, {vr(slot(j0+t))}, {c}")
        if t % 4 == 3:
            issue(4)
    assert state["next"] == NS
    aQ = vT + 8
    A(f"v_and_b32 v{aQ}, 1, v{vG}")
    A(f"v_lshlrev_b32 v{aQ}, 4, v{aQ}")
    A(f"v_lshl_add_u32 v{aQ}, v{vJ}, 5, v{aQ}")
    A("s_lshl_b32 s26, s3, 9")
    A(f"v_add_u32 v{aQ}, s26, v{aQ}")
    A("s_lshl_b32 s27, s3, 2")
    A(f"v_mov_b32 v{vT}, s27")
    A(f"ds_write_b32 v{vT}, v{vLs} offset:{L_LS}")
    g.nop(8)
    A(f"ds_write_b128 v{aQ}, {vr(vD)} offset:{L_OP}")
    A("s_waitcnt lgkmcnt(0)")
    A("s_barrier")
    A(f"v_lshlrev_b32 v{aR}, 3, v{vL}")
    for w in range(8):
        A(f"ds_read_b64 v[{vQB+2*w}:{vQB+2*w+1}], v{aR} offset:{L_OP + w*512}")
    A(f"v_mov_b32 v{vT}, 0")
    A(f"ds_read_b128 {vr(vT+4)}, v{vT} offset:{L_LS}")
    A(f"ds_read_b128 {vr(vT+12)}, v{vT} offset:{L_LS+16}")
    A("s_waitcnt lgkmcnt(0)")
    for w in range(1, 8):
        A(f"v_add_f32 v{vQB}, v{vQB}, v{vQB+2*w}")
        A(f"v_add_f32 v{vQB+1}, v{vQB+1}, v{vQB+2*w+1}")
    A(f"v_cvt_pk_bf16_f32 v{vQB}, v{vQB}, v{vQB+1}")
    A(f"v_lshlrev_b32 v{aR}, 2, v{vL}")
    A("s_lshl_b32 s26, s3, 8")
    A(f"v_add_u32 v{aR}, s26, v{aR}")
    A(f"ds_write_b32 v{aR}, v{vQB} offset:{L_OB}")
    A(f"v_add_f32 v{vLs}, v{vT+4}, v{vT+5}")
    for k in (6, 7, 12, 13, 14, 15):
        A(f"v_add_f32 v{vLs}, v{vLs}, v{vT+k}")
    A("s_waitcnt lgkmcnt(0)")
    A(f"v_lshrrev_b32 v{aB}, 3, v{vJ}")
    A(f"v_lshl_add_u32 v{aB}, v{vG}, 1, v{aB}")
    A(f"v_lshlrev_b32 v{aB}, 5, v{aB}")
    A(f"v_add_u32 v{aB}, s26, v{aB}")
    A(f"ds_read_b128 {vr(vQB)}, v{aB} offset:{L_OB}")
    A(f"ds_read_b128 {vr(vQB+4)}, v{aB} offset:{L_OB+16}")
    A("s_mov_b32 s70, 0x01000100")
    A("s_mov_b32 s71, 0x03020302")
    A("s_waitcnt lgkmcnt(0)")
    for t in range(16):
        A(f"v_perm_b32 v{vSC+t}, v{vQB+t//2}, v{vQB+t//2}, s{70+(t%2)}")
    gemv(16, 80, [vSC + t for t in range(16)], vD)
    g.nop(8)
    Z = vT
    for r in range(4):
        A(f"v_mov_b32_dpp v{vT+4+r}, v{vD+r} row_ror:8 row_mask:0xf bank_mask:0xf")
    g.nop(2)
    for r in range(4):
        A(f"v_permlane32_swap_b32 v{vT+4+r}, v{Z+r}")
    g.nop(1)
    for r in range(4):
        A(f"v_add_f32 v{vD+r}, v{vD+r}, v{Z+r}")
    A(f"v_and_b32 v{vT+8}, 7, v{vL}")
    A(f"v_lshlrev_b32 v{vT+8}, 5, v{vT+8}")
    A(f"v_lshl_add_u32 v{vT+8}, v{vG}, 4, v{vT+8}")
    A("s_lshl_b32 s26, s22, 11")
    A("s_lshl_b32 s27, s3, 8")
    A("s_add_u32 s26, s26, s27")
    srd(g, sY, 14, 15, "s26", 256)
    A("s_mov_b32 exec_lo, 0x00ff00ff")
    A("s_mov_b32 exec_hi, 0")
    g.vmem(f"buffer_store_dwordx4 {vr(vD)}, v{vT+8}, s[{sY}:{sY+3}], 0 offen", "yst")
    A("s_cmp_lg_u32 s3, 0")
    A(f"s_cbranch_scc1 {name}_end")
    A("s_lshl_b32 s26, s22, 3")
    A(f"s_add_u32 s26, s26, {WS_ML}")
    srd(g, sGs, 14, 15, "s26", 8)
    A("s_mov_b32 exec_lo, 1")
    A(f"v_mov_b32 v{vT}, v{vMx}")
    A(f"v_mov_b32 v{vT+1}, v{vLs}")
    A(f"v_mov_b32 v{vT+2}, 0")
    A(f"buffer_store_dwordx2 v[{vT}:{vT+1}], v{vT+2}, s[{sGs}:{sGs+3}], 0 offen")
    g.label(name + "_end")
    A("s_endpgm")
    return nv, lds


def kernel_reduce(g, P):
    name = P["name2"]
    A = g.A
    g.vm = []
    g.label(name)
    A("s_load_dwordx2 s[4:5], s[0:1], 0")
    A("s_load_dwordx2 s[6:7], s[0:1], 64")
    A("s_load_dwordx2 s[8:9], s[0:1], 80")
    A("s_cmp_ge_u32 s2, 64")
    A(f"s_cbranch_scc1 {name}_end")
    A("v_lshrrev_b32 v1, 6, v0")
    A("v_and_b32 v2, 63, v0")
    A("v_readfirstlane_b32 s3, v1")
    A("v_lshlrev_b32 v3, 11, v0")
    A("v_lshlrev_b32 v4, 3, v0")
    A("s_lshl_b32 s10, s2, 5")
    A("s_waitcnt lgkmcnt(0)")
    A(f"s_sub_u32 s11, {256*2048}, s10")
    srd(g, 12, 8, 9, "s10", "s11")
    A(f"s_add_u32 s11, s10, {WS_G}")
    A(f"s_sub_u32 s24, {NUNITS*2048}, s10")
    srd(g, 16, 8, 9, "s11", "s24")
    A(f"s_mov_b32 s11, {WS_ML}")
    srd(g, 20, 8, 9, "s11", 2048)
    A("s_lshl_b32 s11, s2, 4")
    srd(g, 24, 4, 5, "s11", 16)
    srd(g, 28, 6, 7, "s11", 16)
    g.vmem("buffer_load_dwordx2 v[6:7], v4, s[20:23], 0 offen", "ml")
    g.vmem("buffer_load_dwordx4 v[8:11], v3, s[12:15], 0 offen", "y")
    g.vmem("buffer_load_dwordx4 v[12:15], v3, s[12:15], 0 offen offset:16", "y")
    g.vmem("buffer_load_dwordx4 v[16:19], v3, s[16:19], 0 offen", "gg")
    g.vmem("buffer_load_dwordx4 v[20:23], v3, s[16:19], 0 offen offset:16", "gg")
    A("v_and_b32 v5, 7, v2")
    A("v_lshlrev_b32 v5, 1, v5")
    g.vmem("buffer_load_ushort v24, v5, s[24:27], 0 offen", "x")
    g.wait("ml")
    A("v_mov_b32 v25, v6")
    for ctl in ("quad_perm:[1,0,3,2]", "quad_perm:[2,3,0,1]", "row_half_mirror"):
        g.nop(2)
        A(f"v_max_f32_dpp v25, v25, v25 {ctl} row_mask:0xf bank_mask:0xf")
    A("v_sub_f32 v26, v6, v25")
    A(f"v_mul_f32 v26, {hex(LOG2E)}, v26")
    A("v_exp_f32 v26, v26")
    g.nop(1)
    A("v_mul_f32 v27, v26, v7")
    for ctl in ("quad_perm:[1,0,3,2]", "quad_perm:[2,3,0,1]", "row_half_mirror"):
        g.nop(2)
        A(f"v_add_f32_dpp v27, v27, v27 {ctl} row_mask:0xf bank_mask:0xf")
    A("v_rcp_f32 v28, v27")
    g.nop(1)
    A("v_mul_f32 v29, v26, v28")
    A("v_fma_f32 v30, -v29, v27, v26")
    A("v_fma_f32 v29, v30, v28, v29")
    g.wait("y")
    for k in range(8):
        A(f"v_mul_f32 v{8+k}, v{8+k}, v29")
    g.wait("gg")
    treduce(g, [8 + k for k in range(16)], 16)
    A("v_lshrrev_b32 v25, 2, v2")
    A("v_lshlrev_b32 v25, 4, v25")
    A("s_lshl_b32 s10, s3, 2")
    A("v_add_u32 v25, s10, v25")
    A("ds_write_b32 v25, v8")
    A("s_waitcnt lgkmcnt(0)")
    A("s_barrier")
    A("s_cmp_lg_u32 s3, 0")
    A(f"s_cbranch_scc1 {name}_end")
    A("v_and_b32 v5, 7, v2")
    A("v_lshlrev_b32 v25, 4, v5")
    A("ds_read_b128 v[8:11], v25")
    A("ds_read_b128 v[12:15], v25 offset:128")
    A("s_waitcnt lgkmcnt(0)")
    A("v_add_f32 v8, v8, v9"); A("v_add_f32 v10, v10, v11"); A("v_add_f32 v8, v8, v10")
    A("v_add_f32 v12, v12, v13"); A("v_add_f32 v14, v14, v15"); A("v_add_f32 v12, v12, v14")
    bf16r(g, 8)
    bf16r(g, 12)
    v, t = 12, 16
    A(f"v_mul_f32 v{t}, {hex(LOG2E ^ 0x80000000)}, v{v}")
    A(f"v_exp_f32 v{t}, v{t}")
    g.nop(1)
    A(f"v_add_f32 v{t}, 1.0, v{t}")
    A(f"v_rcp_f32 v{t+1}, v{t}")
    g.nop(1)
    A(f"v_mul_f32 v{t+2}, v{v}, v{t+1}")
    A(f"v_fma_f32 v{t+3}, -v{t+2}, v{t}, v{v}")
    A(f"v_fma_f32 v{t+2}, v{t+3}, v{t+1}, v{t+2}")
    A(f"v_cmp_lt_f32 vcc, 0x7f000000, v{t}")
    A(f"v_mul_f32 v{t+3}, v{v}, v{t+1}")
    g.nop(1)
    A(f"v_cndmask_b32 v{v}, v{t+2}, v{t+3}, vcc")
    bf16r(g, v)
    A("v_mul_f32 v8, v8, v12")
    bf16r(g, 8)
    g.wait("x")
    A("v_lshlrev_b32 v24, 16, v24")
    A("v_add_f32 v8, v8, v24")
    A("v_cvt_pk_bf16_f32 v8, v8, v8")
    A("v_lshlrev_b32 v5, 1, v5")
    A("s_mov_b32 exec_lo, 0xff")
    A("s_mov_b32 exec_hi, 0")
    A("buffer_store_short v8, v5, s[28:31], 0 offen")
    g.label(name + "_end")
    A("s_endpgm")
    return 32, 256


def descriptor(name, nv, ns=102):
    nv = max(nv, 8)
    return f""".p2align 6
.amdhsa_kernel {name}
  .amdhsa_next_free_vgpr {nv}
  .amdhsa_next_free_sgpr {ns}
  .amdhsa_accum_offset {(nv + 3) // 4 * 4}
  .amdhsa_group_segment_fixed_size 0
  .amdhsa_kernarg_size 88
  .amdhsa_user_sgpr_count 2
  .amdhsa_user_sgpr_kernarg_segment_ptr 1
  .amdhsa_system_sgpr_workgroup_id_x 1
.end_amdhsa_kernel
"""


def build(**P):
    P.setdefault("name", KNAME)
    P.setdefault("name2", "final_reduce_kernel")
    g = Gen()
    nv1, lds1 = kernel_main(g, P)
    body1 = g.text()
    g2 = Gen()
    nv2, lds2 = kernel_reduce(g2, P)
    body2 = g2.text()
    out = HEADER
    out += f"; @launch kernel={P['name']} grid=(256,1,1) block=(512,1,1) lds={lds1}\n"
    out += f"; @launch kernel={P['name2']} grid=(64,1,1) block=(256,1,1) lds={lds2}\n"
    out += '.amdgcn_target "amdgcn-amd-amdhsa--gfx950"\n.text\n'
    out += f".globl {P['name']}\n.p2align 8\n.type {P['name']},@function\n" + body1
    out += f".globl {P['name2']}\n.p2align 8\n.type {P['name2']},@function\n" + body2
    out += '.section .rodata,"a"\n'
    out += descriptor(P["name"], nv1) + descriptor(P["name2"], nv2)
    return out


if __name__ == "__main__":
    P = {}
    for a in sys.argv[1:]:
        k, v = a.split("=", 1)
        try:
            v = eval(v)
        except Exception:
            pass
        P[k] = v
    sys.stdout.write(build(**P))
```

```python
import sys

KNAME = "recurrent_scan__gqa_block_cached__dense_activation_silu__decode_kernel"
HEADER = """; Kernarg layout for this problem (88 bytes, ptrs only, base s[0:1]):
;   offset  24: d_in[3] A_wq  shape=(512, 4096) dtype=bfloat16
"""

WS_Y = 0
WS_ML = 512 * 1024
WS_G = 512 * 1024 + 4096
NUNITS = 172
LOG2E = 0x3FB8AA3B
SCALE = 0x3DB504F3
EPS = 0x3727C5AC


class Gen:
    def __init__(self):
        self.L = []
        self.vm = []

    def A(self, s):
        self.L.append("    " + s)

    def label(self, s):
        self.L.append(s + ":")

    def C(self, s):
        self.L.append("    ; " + s)

    def vmem(self, s, tag):
        self.A(s)
        self.vm.append(tag)

    def wait(self, tag, extra=""):
        ids = [i for i, t in enumerate(self.vm) if t == tag]
        if not ids:
            return
        idx = max(ids)
        n = len(self.vm) - 1 - idx
        assert n <= 63
        self.A(f"s_waitcnt vmcnt({n}){extra}")
        self.vm = self.vm[idx + 1:]

    def nop(self, n):
        while n > 0:
            k = min(n, 16)
            self.A(f"s_nop {k-1}")
            n -= k

    def text(self):
        return "\n".join(self.L) + "\n"


def vr(a, n=4):
    return f"v[{a}:{a+n-1}]"


def allreduce64(g, op, v, t):
    ins = f"v_{op}_f32"
    for ctl in ("quad_perm:[1,0,3,2]", "quad_perm:[2,3,0,1]", "row_half_mirror", "row_mirror"):
        g.nop(2)
        g.A(f"{ins}_dpp v{v}, v{v}, v{v} {ctl} row_mask:0xf bank_mask:0xf")
    rows_allreduce(g, op, v, t)


def rows_allreduce(g, op, v, t):
    ins = f"v_{op}_f32"
    g.A(f"v_mov_b32 v{t}, v{v}")
    g.nop(2)
    g.A(f"v_permlane16_swap_b32 v{v}, v{t}")
    g.nop(1)
    g.A(f"{ins} v{v}, v{v}, v{t}")
    g.A(f"v_mov_b32 v{t}, v{v}")
    g.nop(2)
    g.A(f"v_permlane32_swap_b32 v{v}, v{t}")
    g.nop(1)
    g.A(f"{ins} v{v}, v{v}, v{t}")


def bf16r(g, v, t=None):
    g.A(f"v_cvt_pk_bf16_f32 v{v}, v{v}, v{v}")
    g.A(f"v_lshlrev_b32 v{v}, 16, v{v}")


def treduce(g, a, n):
    h = n // 2
    g.nop(2)
    for k in range(h):
        g.A(f"v_permlane32_swap_b32 v{a[k]}, v{a[k+h]}")
    g.nop(1)
    for k in range(h):
        g.A(f"v_add_f32 v{a[k]}, v{a[k]}, v{a[k+h]}")
    h //= 2
    g.nop(2)
    for k in range(h):
        g.A(f"v_permlane16_swap_b32 v{a[k]}, v{a[k+h]}")
    g.nop(1)
    for k in range(h):
        g.A(f"v_add_f32 v{a[k]}, v{a[k]}, v{a[k+h]}")
    h //= 2
    g.nop(2)
    dst = [a[n // 2 + k] for k in range(h)]
    for k in range(h):
        g.A(f"v_add_f32_dpp v{dst[k]}, v{a[k]}, v{a[k]} row_ror:8 row_mask:0xf bank_mask:0x3")
        g.A(f"v_add_f32_dpp v{dst[k]}, v{a[k+h]}, v{a[k+h]} row_ror:8 row_mask:0xf bank_mask:0xc")
    if h == 2:
        g.nop(2)
        g.A(f"v_add_f32_dpp v{a[0]}, v{dst[0]}, v{dst[0]} row_half_mirror row_mask:0xf bank_mask:0x5")
        g.A(f"v_add_f32_dpp v{a[0]}, v{dst[1]}, v{dst[1]} row_half_mirror row_mask:0xf bank_mask:0xa")
    else:
        g.nop(2)
        g.A(f"v_add_f32_dpp v{a[0]}, v{dst[0]}, v{dst[0]} row_half_mirror row_mask:0xf bank_mask:0xf")
    g.nop(2)
    g.A(f"v_add_f32_dpp v{a[0]}, v{a[0]}, v{a[0]} quad_perm:[1,0,3,2] row_mask:0xf bank_mask:0xf")
    g.nop(2)
    g.A(f"v_add_f32_dpp v{a[0]}, v{a[0]}, v{a[0]} quad_perm:[2,3,0,1] row_mask:0xf bank_mask:0xf")


def srd(g, s, blo, bhi, off_sgpr, nrec):
    if off_sgpr is None:
        g.A(f"s_mov_b32 s{s}, s{blo}")
        g.A(f"s_mov_b32 s{s+1}, s{bhi}")
    else:
        g.A(f"s_add_u32 s{s}, s{blo}, {off_sgpr}")
        g.A(f"s_addc_u32 s{s+1}, s{bhi}, 0")
    g.A(f"s_mov_b32 s{s+2}, {nrec}")
    g.A(f"s_mov_b32 s{s+3}, 0x00020000")


def kernel_main(g, P):
    RING = P.get("ring", 36)
    KVF = P.get("kvflags", "")
    name = P["name"]
    vTID = 0
    vL, vJ, vG = 1, 2, 3
    vM = 4
    vKo, vVo, vWQo, vWOo = 8, 9, 10, 11
    vT = 12
    vQB = 28
    vSC = 44
    vA = 76
    vD = 84
    vXA = 88
    vXM = 92
    vW1 = 100
    vW2 = 104
    vXT = 108
    vLs = 109
    vMx = 110
    vR = 112
    nv = vR + 4 * RING
    assert nv <= 256
    def slot(j):
        return vR + 4 * (j % RING)

    L_QP = 0
    L_QB = 4096
    L_HP = 6144
    L_MX = 6400
    L_LS = 6464
    L_YP = 8192
    L_OP = 24576
    L_OB = 28672
    lds = 30720

    A = g.A
    PROF = P.get("prof", 0)
    stamps = []
    def stamp():
        if PROF:
            k = len(stamps)
            A(f"s_memrealtime s[{72+2*k}:{73+2*k}]")
            stamps.append(k)
    g.label(name)
    stamp()
    A("s_load_dwordx8 s[4:11], s[0:1], 0")
    A("s_load_dwordx2 s[12:13], s[0:1], 32")
    A("s_load_dwordx4 s[16:19], s[0:1], 48")
    A("s_load_dwordx2 s[14:15], s[0:1], 80")
    A("s_cmp_ge_u32 s2, 256")
    A(f"s_cbranch_scc1 {name}_end")
    A(f"v_lshrrev_b32 v{vT}, 6, v{vTID}")
    A(f"v_and_b32 v{vL}, 63, v{vTID}")
    A(f"v_readfirstlane_b32 s3, v{vT}")
    A(f"v_and_b32 v{vJ}, 15, v{vL}")
    A(f"v_lshrrev_b32 v{vG}, 4, v{vL}")
    A("s_and_b32 s20, s2, 7")
    A("s_lshl_b32 s20, s20, 2")
    A("s_lshr_b32 s21, s2, 3")
    A("s_and_b32 s22, s21, 3")
    A("s_add_u32 s20, s20, s22")
    A("s_lshr_b32 s21, s2, 5")
    A("s_lshl_b32 s22, s20, 3")
    A("s_add_u32 s22, s22, s21")
    A("s_and_b32 s23, s2, 7")
    A("s_mul_i32 s23, s23, 22")
    A("s_lshr_b32 s24, s2, 3")
    A("s_add_u32 s23, s23, s24")
    A("s_cmp_lt_u32 s24, 22")
    A("s_cselect_b32 s23, s23, 0xffff")
    A(f"s_cmp_lt_u32 s23, {NUNITS}")
    A("s_cselect_b32 s25, 1, 0")
    A("s_cselect_b32 s23, s23, 0")
    A(f"v_lshlrev_b32 v{vKo}, 8, v{vJ}")
    A(f"v_lshl_add_u32 v{vKo}, v{vG}, 4, v{vKo}")
    A(f"v_lshlrev_b32 v{vVo}, 4, v{vJ}")
    A(f"v_lshl_add_u32 v{vWQo}, v{vG}, 17, v{vVo}")
    A(f"v_lshl_add_u32 v{vVo}, v{vG}, 10, v{vVo}")
    A(f"v_lshrrev_b32 v{vT}, 3, v{vJ}")
    A(f"v_lshl_add_u32 v{vT}, v{vG}, 1, v{vT}")
    A(f"v_and_b32 v{vT+1}, 7, v{vJ}")
    A(f"v_lshlrev_b32 v{vT+1}, 4, v{vT+1}")
    A(f"v_lshl_add_u32 v{vWOo}, v{vT}, 14, v{vT+1}")
    A(f"v_lshlrev_b32 v{vT+2}, 4, v{vL}")
    A(f"v_lshlrev_b32 v{vT+3}, 5, v{vG}")
    A(f"v_lshlrev_b32 v{vT+4}, 1, v{vTID}")
    A("s_movk_i32 s26, 2752")
    A(f"v_mul_lo_u32 v{vT+5}, v{vTID}, s26")
    A("s_waitcnt lgkmcnt(0)")
    sX, sK, sV, sWQ, sWO, sW1, sW2, sY, sGs = 28, 32, 36, 40, 44, 48, 52, 56, 60
    srd(g, sX, 4, 5, None, 1024)
    A("s_lshl_b32 s26, s22, 18")
    srd(g, sK, 6, 7, "s26", 262144)
    srd(g, sV, 8, 9, "s26", 262144)
    A("s_lshl_b32 s26, s20, 8")
    A("s_lshl_b32 s27, s3, 19")
    A("s_add_u32 s26, s26, s27")
    A("s_sub_u32 s27, 0x400000, s26")
    if P.get("nowq"): A("s_mov_b32 s27, 0")
    srd(g, sWQ, 10, 11, "s26", "s27")
    A("s_lshl_b32 s26, s20, 17")
    A("s_lshl_b32 s27, s3, 7")
    A("s_add_u32 s26, s26, s27")
    A("s_sub_u32 s27, 0x400000, s26")
    if P.get("nowo"): A("s_mov_b32 s27, 0")
    srd(g, sWO, 12, 13, "s26", "s27")
    A("s_lshl_b32 s26, s23, 4")
    A(f"s_sub_u32 s27, {512*2752}, s26")
    A("s_mul_i32 s27, s27, s25")
    srd(g, sW1, 16, 17, "s26", "s27")
    A("s_lshl_b32 s26, s23, 3")
    A("s_add_u32 s26, s26, s3")
    A("s_lshl_b32 s26, s26, 10")
    A("s_lshl_b32 s27, s25, 10")
    srd(g, sW2, 18, 19, "s26", "s27")
    g.vmem(f"buffer_load_dwordx4 {vr(vXA)}, v{vT+2}, s[{sX}:{sX+3}], 0 offen", "xa")
    A("s_lshl_b32 s26, s3, 7")
    g.vmem(f"buffer_load_dwordx4 {vr(vXM)}, v{vT+3}, s[{sX}:{sX+3}], s26 offen", "xm")
    g.vmem(f"buffer_load_dwordx4 {vr(vXM+4)}, v{vT+3}, s[{sX}:{sX+3}], s26 offen offset:16", "xm")
    g.vmem(f"buffer_load_ushort v{vXT}, v{vT+4}, s[{sX}:{sX+3}], 0 offen", "xt")
    stream = []
    for t in range(16):
        stream.append(("wq", t))
    for i in range(8):
        for m in range(4):
            stream.append(("k", i, m))
    for i in range(8):
        for r in range(4):
            stream.append(("v", i, r))
    for t in range(16):
        stream.append(("wo", t))
    NS = len(stream)
    state = {"next": 0}
    A("s_lshl_b32 s64, s3, 12")

    def issue(n):
        for _ in range(n):
            j = state["next"]
            if j >= NS:
                return
            it = stream[j]
            sl = slot(j)
            if it[0] == "wq":
                t = it[1]
                A(f"s_mov_b32 s65, {t*8192}")
                g.vmem(f"buffer_load_dwordx4 {vr(sl)}, v{vWQo}, s[{sWQ}:{sWQ+3}], s65 offen", ("s", j))
            elif it[0] == "k":
                _, i, m = it
                if m == 0:
                    A(f"s_add_u32 s66, s64, {i*32768}")
                g.vmem(f"buffer_load_dwordx4 {vr(sl)}, v{vKo}, s[{sK}:{sK+3}], s66 offen offset:{m*64} {KVF}", ("s", j))
            elif it[0] == "v":
                _, i, r = it
                if r == 0:
                    A(f"s_add_u32 s67, s64, {i*32768}")
                g.vmem(f"buffer_load_dwordx4 {vr(sl)}, v{vVo}, s[{sV}:{sV+3}], s67 offen offset:{r*256} {KVF}", ("s", j))
            else:
                t = it[1]
                if t % 4 == 0:
                    A(f"s_mov_b32 s68, {(t//4)*4096}")
                g.vmem(f"buffer_load_dwordx4 {vr(sl)}, v{vWOo}, s[{sWO}:{sWO+3}], s68 offen offset:{(t%4)*1024}", ("s", j))
            state["next"] = j + 1

    issue(16)
    g.vmem(f"buffer_load_dwordx4 {vr(vW1)}, v{vT+5}, s[{sW1}:{sW1+3}], 0 offen", "w1")
    g.vmem(f"buffer_load_dwordx4 {vr(vW2)}, v{vT+2}, s[{sW2}:{sW2+3}], 0 offen", "w2")
    issue(RING - 16)

    stamp()
    A(f"v_and_b32 v{vT}, 1, v{vJ}")
    A(f"v_lshlrev_b32 v{vT}, 4, v{vT}")
    A(f"v_mov_b32 v{vT+1}, 0xffff")
    A(f"v_lshlrev_b32 v{vT+1}, v{vT}, v{vT+1}")
    A(f"v_bfe_u32 v{vT}, v{vJ}, 1, 2")
    for r in range(4):
        A(f"v_cmp_eq_u32 vcc, {r}, v{vT}")
        g.nop(2)
        A(f"v_cndmask_b32 v{vM+r}, 0, v{vT+1}, vcc")

    g.wait("xa")
    X = vT
    for k in range(4):
        A(f"v_lshlrev_b32 v{X+2*k}, 16, v{vXA+k}")
        A(f"v_and_b32 v{X+2*k+1}, 0xffff0000, v{vXA+k}")
    S, Tm = vT + 8, vT + 9
    A(f"v_add_f32 v{S}, v{X}, v{X+1}")
    for k in range(2, 8):
        A(f"v_add_f32 v{S}, v{S}, v{X+k}")
    allreduce64(g, "add", S, Tm)
    A(f"v_mul_f32 v{S}, 0x3b000000, v{S}")
    Q = vT + 10
    for k in range(8):
        A(f"v_sub_f32 v{X+k}, v{X+k}, v{S}")
    A(f"v_mul_f32 v{Q}, v{X}, v{X}")
    for k in range(1, 8):
        A(f"v_fmac_f32 v{Q}, v{X+k}, v{X+k}")
    allreduce64(g, "add", Q, Tm)
    A(f"v_mul_f32 v{Q}, 0x3b000000, v{Q}")
    bf16r(g, S)
    bf16r(g, Q)
    A(f"v_add_f32 v{Q}, {hex(EPS)}, v{Q}")
    bf16r(g, Q)
    A(f"v_sqrt_f32 v{Q}, v{Q}")
    g.nop(1)
    bf16r(g, Q)
    RS = vT + 11
    A(f"v_rcp_f32 v{RS}, v{Q}")
    g.nop(1)
    MEAN, SD = S, Q

    def normalize(src, dst_dup, t0, t1):
        A(f"v_sub_f32 v{src}, v{src}, v{MEAN}")
        bf16r(g, src)
        A(f"v_mul_f32 v{t0}, v{src}, v{RS}")
        A(f"v_fma_f32 v{t1}, -v{t0}, v{SD}, v{src}")
        A(f"v_fma_f32 v{t0}, v{t1}, v{RS}, v{t0}")
        A(f"v_cvt_pk_bf16_f32 v{dst_dup}, v{t0}, v{t0}")

    g.wait("xm")
    for k in range(8):
        A(f"v_lshlrev_b32 v{X}, 16, v{vXM+k}")
        A(f"v_and_b32 v{X+1}, 0xffff0000, v{vXM+k}")
        normalize(X, vSC + 2 * k, X + 2, X + 3)
        normalize(X + 1, vSC + 2 * k + 1, X + 4, X + 5)
    g.wait("xt")
    A(f"v_lshlrev_b32 v{vXT}, 16, v{vXT}")
    normalize(vXT, vXT, X + 2, X + 3)
    A(f"v_lshlrev_b32 v{vXT}, 16, v{vXT}")

    def ands(src, aset):
        for r in range(4):
            A(f"v_and_b32 v{vA+4*aset+r}, v{vM+r}, v{src}")

    def gemv(nm, j0, srcs, D, after=None):
        ands(srcs[0], 0)
        for t in range(nm):
            if t + 1 < nm:
                ands(srcs[t + 1], (t + 1) % 2)
            else:
                g.nop(2)
            g.wait(("s", j0 + t))
            c = "0" if t == 0 else vr(D)
            A(f"v_mfma_f32_16x16x32_bf16 {vr(D)}, {vr(vA+4*(t%2))}, {vr(slot(j0+t))}, {c}")

    stamp()
    gemv(16, 0, [vSC + t for t in range(16)], vD)
    stamp()
    issue(16)
    g.wait("w1")
    H = vT
    for k in range(4):
        A(f"v_lshlrev_b32 v{H+2*k}, 16, v{vW1+k}")
        A(f"v_and_b32 v{H+2*k+1}, 0xffff0000, v{vW1+k}")
    for k in range(8):
        A(f"v_mul_f32 v{H+k}, v{H+k}, v{vXT}")
    treduce(g, [H + k for k in range(8)], 8)
    aQ = vT + 8
    A(f"v_and_b32 v{aQ}, 1, v{vG}")
    A(f"v_lshlrev_b32 v{aQ}, 4, v{aQ}")
    A(f"v_lshl_add_u32 v{aQ}, v{vJ}, 5, v{aQ}")
    A("s_lshl_b32 s26, s3, 9")
    A(f"v_add_u32 v{aQ}, s26, v{aQ}")
    A(f"ds_write_b128 v{aQ}, {vr(vD)} offset:{L_QP}")
    aH = vT + 9
    A(f"v_lshrrev_b32 v{aH}, 3, v{vL}")
    A(f"v_lshlrev_b32 v{aH}, 5, v{aH}")
    A("s_lshl_b32 s26, s3, 2")
    A(f"v_add_u32 v{aH}, s26, v{aH}")
    A(f"ds_write_b32 v{aH}, v{H} offset:{L_HP}")
    A("s_waitcnt lgkmcnt(0)")
    A("s_barrier")
    aR = vT + 8
    A(f"v_lshlrev_b32 v{aR}, 3, v{vL}")
    for w in range(8):
        A(f"ds_read_b64 v[{vQB+2*w}:{vQB+2*w+1}], v{aR} offset:{L_QP + w*512}")
    A("s_lshl_b32 s26, s3, 5")
    A(f"v_mov_b32 v{aH}, s26")
    A(f"ds_read_b128 {vr(vT)}, v{aH} offset:{L_HP}")
    A(f"ds_read_b128 {vr(vT+4)}, v{aH} offset:{L_HP+16}")
    A("s_waitcnt lgkmcnt(0)")
    for w in range(1, 8):
        A(f"v_add_f32 v{vQB}, v{vQB}, v{vQB+2*w}")
        A(f"v_add_f32 v{vQB+1}, v{vQB+1}, v{vQB+2*w+1}")
    A(f"v_cvt_pk_bf16_f32 v{vQB}, v{vQB}, v{vQB+1}")
    A(f"v_lshlrev_b32 v{aR}, 2, v{vL}")
    A("s_lshl_b32 s26, s3, 8")
    A(f"v_add_u32 v{aR}, s26, v{aR}")
    A(f"ds_write_b32 v{aR}, v{vQB} offset:{L_QB}")
    Hs = vT
    for k in range(1, 8):
        A(f"v_add_f32 v{Hs}, v{Hs}, v{vT+k}")
    bf16r(g, Hs)

    def silu(v, t):
        A(f"v_mul_f32 v{t}, {hex(LOG2E ^ 0x80000000)}, v{v}")
        A(f"v_exp_f32 v{t}, v{t}")
        g.nop(1)
        A(f"v_add_f32 v{t}, 1.0, v{t}")
        A(f"v_rcp_f32 v{t+1}, v{t}")
        g.nop(1)
        A(f"v_mul_f32 v{t+2}, v{v}, v{t+1}")
        A(f"v_fma_f32 v{t+3}, -v{t+2}, v{t}, v{v}")
        A(f"v_fma_f32 v{t+2}, v{t+3}, v{t+1}, v{t+2}")
        A(f"v_cmp_lt_f32 vcc, 0x7f000000, v{t}")
        A(f"v_mul_f32 v{t+3}, v{v}, v{t+1}")
        g.nop(1)
        A(f"v_cndmask_b32 v{v}, v{t+2}, v{t+3}, vcc")
        bf16r(g, v)

    silu(Hs, vT + 1)
    A("s_waitcnt lgkmcnt(0)")
    aB = vT + 8
    A(f"v_lshlrev_b32 v{aB}, 4, v{vG}")
    A(f"v_add_u32 v{aB}, s26, v{aB}")
    for m in range(4):
        A(f"ds_read_b128 {vr(vQB+4*m)}, v{aB} offset:{L_QB + m*64}")
    g.wait("w2")
    Yg = vT + 8
    for k in range(4):
        A(f"v_lshlrev_b32 v{Yg+2*k}, 16, v{vW2+k}")
        A(f"v_and_b32 v{Yg+2*k+1}, 0xffff0000, v{vW2+k}")
    for k in range(8):
        A(f"v_mul_f32 v{Yg+k}, v{Yg+k}, v{Hs}")
    aY = vT + 1
    A(f"v_lshlrev_b32 v{aY}, 5, v{vL}")
    A("s_lshl_b32 s26, s3, 11")
    A(f"v_add_u32 v{aY}, s26, v{aY}")
    A(f"ds_write_b128 v{aY}, {vr(Yg)} offset:{L_YP}")
    A(f"ds_write_b128 v{aY}, {vr(Yg+4)} offset:{L_YP+16}")
    A("s_waitcnt lgkmcnt(0)")
    A("s_barrier")
    A(f"v_lshlrev_b32 v{aY}, 2, v{vTID}")
    for w in range(8):
        A(f"ds_read_b32 v{Yg+w}, v{aY} offset:{L_YP + w*2048}")

    stamp()
    def post(i):
        b = vSC + 4 * i
        t = vA
        A(f"v_cvt_pk_bf16_f32 v{t}, v{b}, v{b+1}")
        A(f"v_cvt_pk_bf16_f32 v{t+1}, v{b+2}, v{b+3}")
        A(f"v_lshlrev_b32 v{b}, 16, v{t}")
        A(f"v_and_b32 v{b+1}, 0xffff0000, v{t}")
        A(f"v_lshlrev_b32 v{b+2}, 16, v{t+1}")
        A(f"v_and_b32 v{b+3}, 0xffff0000, v{t+1}")
        for r in range(4):
            A(f"v_mul_f32 v{b+r}, {hex(SCALE)}, v{b+r}")
        A(f"v_cvt_pk_bf16_f32 v{t}, v{b}, v{b+1}")
        A(f"v_cvt_pk_bf16_f32 v{t+1}, v{b+2}, v{b+3}")
        A(f"v_lshlrev_b32 v{b}, 16, v{t}")
        A(f"v_and_b32 v{b+1}, 0xffff0000, v{t}")
        A(f"v_lshlrev_b32 v{b+2}, 16, v{t+1}")
        A(f"v_and_b32 v{b+3}, 0xffff0000, v{t+1}")
        if i == 0:
            A(f"v_max3_f32 v{vMx}, v{b}, v{b+1}, v{b+2}")
            A(f"v_max_f32 v{vMx}, v{vMx}, v{b+3}")
        else:
            A(f"v_max3_f32 v{vMx}, v{vMx}, v{b}, v{b+1}")
            A(f"v_max3_f32 v{vMx}, v{vMx}, v{b+2}, v{b+3}")

    first = True
    for i in range(8):
        j0 = 16 + 4 * i
        for m in range(4):
            g.wait(("s", j0 + m))
            c = "0" if m == 0 else vr(vSC + 4 * i)
            A(f"v_mfma_f32_16x16x32_bf16 {vr(vSC+4*i)}, {vr(slot(j0+m))}, {vr(vQB+4*m)}, {c}")
            if first:
                pass
        if i == 0:
            A("s_waitcnt lgkmcnt(0)")
            for w in range(1, 8):
                A(f"v_add_f32 v{Yg}, v{Yg}, v{Yg+w}")
            A(f"s_mul_i32 s26, s23, 2048")
            A(f"s_add_u32 s26, s26, {WS_G}")
            A("s_lshl_b32 s27, s25, 11")
            srd(g, sGs, 14, 15, "s26", "s27")
            g.vmem(f"buffer_store_dword v{Yg}, v{aY}, s[{sGs}:{sGs+3}], 0 offen", "gst")
        issue(4)
        if i > 0:
            post(i - 1)
    g.nop(8)
    post(7)
    stamp()
    rows_allreduce(g, "max", vMx, vT)
    A("s_lshl_b32 s26, s3, 2")
    A(f"v_mov_b32 v{vT}, s26")
    A(f"ds_write_b32 v{vT}, v{vMx} offset:{L_MX}")
    A("s_waitcnt lgkmcnt(0)")
    A("s_barrier")
    A(f"v_mov_b32 v{vT}, 0")
    A(f"ds_read_b128 {vr(vT+4)}, v{vT} offset:{L_MX}")
    A(f"ds_read_b128 {vr(vT+8)}, v{vT} offset:{L_MX+16}")
    A("s_waitcnt lgkmcnt(0)")
    A(f"v_max3_f32 v{vMx}, v{vT+4}, v{vT+5}, v{vT+6}")
    A(f"v_max3_f32 v{vMx}, v{vMx}, v{vT+7}, v{vT+8}")
    A(f"v_max3_f32 v{vMx}, v{vMx}, v{vT+9}, v{vT+10}")
    A(f"v_max_f32 v{vMx}, v{vMx}, v{vT+11}")
    A(f"s_mov_b32 s26, {hex(LOG2E)}")
    A(f"v_mul_f32 v{vT}, s26, v{vMx}")
    for k in range(32):
        A(f"v_fma_f32 v{vSC+k}, v{vSC+k}, s26, -v{vT}")
    for k in range(32):
        A(f"v_exp_f32 v{vSC+k}, v{vSC+k}")
    g.nop(1)
    A(f"v_add_f32 v{vLs}, v{vSC}, v{vSC+1}")
    for k in range(2, 32):
        A(f"v_add_f32 v{vLs}, v{vLs}, v{vSC+k}")
    for k in range(32):
        A(f"v_cvt_pk_bf16_f32 v{vSC+k}, v{vSC+k}, v{vSC+k}")
    rows_allreduce(g, "add", vLs, vT)
    stamp()
    j0 = 48
    ands(vSC, 0)
    for t in range(32):
        if t + 1 < 32:
            ands(vSC + t + 1, (t + 1) % 2)
        else:
            g.nop(2)
        g.wait(("s", j0 + t))
        c = "0" if t == 0 else vr(vD)
        A(f"v_mfma_f32_16x16x32_bf16 {vr(vD)}, {vr(vA+4*(t%2))}, {vr(slot(j0+t))}, {c}")
        if t % 4 == 3:
            issue(4)
    assert state["next"] == NS
    stamp()
    aQ = vT + 8
    A(f"v_and_b32 v{aQ}, 1, v{vG}")
    A(f"v_lshlrev_b32 v{aQ}, 4, v{aQ}")
    A(f"v_lshl_add_u32 v{aQ}, v{vJ}, 5, v{aQ}")
    A("s_lshl_b32 s26, s3, 9")
    A(f"v_add_u32 v{aQ}, s26, v{aQ}")
    A("s_lshl_b32 s27, s3, 2")
    A(f"v_mov_b32 v{vT}, s27")
    A(f"ds_write_b32 v{vT}, v{vLs} offset:{L_LS}")
    g.nop(8)
    A(f"ds_write_b128 v{aQ}, {vr(vD)} offset:{L_OP}")
    A("s_waitcnt lgkmcnt(0)")
    A("s_barrier")
    A(f"v_lshlrev_b32 v{aR}, 3, v{vL}")
    for w in range(8):
        A(f"ds_read_b64 v[{vQB+2*w}:{vQB+2*w+1}], v{aR} offset:{L_OP + w*512}")
    A(f"v_mov_b32 v{vT}, 0")
    A(f"ds_read_b128 {vr(vT+4)}, v{vT} offset:{L_LS}")
    A(f"ds_read_b128 {vr(vT+12)}, v{vT} offset:{L_LS+16}")
    A("s_waitcnt lgkmcnt(0)")
    for w in range(1, 8):
        A(f"v_add_f32 v{vQB}, v{vQB}, v{vQB+2*w}")
        A(f"v_add_f32 v{vQB+1}, v{vQB+1}, v{vQB+2*w+1}")
    A(f"v_cvt_pk_bf16_f32 v{vQB}, v{vQB}, v{vQB+1}")
    A(f"v_lshlrev_b32 v{aR}, 2, v{vL}")
    A("s_lshl_b32 s26, s3, 8")
    A(f"v_add_u32 v{aR}, s26, v{aR}")
    A(f"ds_write_b32 v{aR}, v{vQB} offset:{L_OB}")
    A(f"v_add_f32 v{vLs}, v{vT+4}, v{vT+5}")
    for k in (6, 7, 12, 13, 14, 15):
        A(f"v_add_f32 v{vLs}, v{vLs}, v{vT+k}")
    A("s_waitcnt lgkmcnt(0)")
    A(f"v_lshrrev_b32 v{aB}, 3, v{vJ}")
    A(f"v_lshl_add_u32 v{aB}, v{vG}, 1, v{aB}")
    A(f"v_lshlrev_b32 v{aB}, 5, v{aB}")
    A(f"v_add_u32 v{aB}, s26, v{aB}")
    A(f"ds_read_b128 {vr(vQB)}, v{aB} offset:{L_OB}")
    A(f"ds_read_b128 {vr(vQB+4)}, v{aB} offset:{L_OB+16}")
    A("s_mov_b32 s70, 0x01000100")
    A("s_mov_b32 s71, 0x03020302")
    A("s_waitcnt lgkmcnt(0)")
    for t in range(16):
        A(f"v_perm_b32 v{vSC+t}, v{vQB+t//2}, v{vQB+t//2}, s{70+(t%2)}")
    gemv(16, 80, [vSC + t for t in range(16)], vD)
    stamp()
    g.nop(8)
    Z = vT
    for r in range(4):
        A(f"v_mov_b32_dpp v{vT+4+r}, v{vD+r} row_ror:8 row_mask:0xf bank_mask:0xf")
    g.nop(2)
    for r in range(4):
        A(f"v_permlane32_swap_b32 v{vT+4+r}, v{Z+r}")
    g.nop(1)
    for r in range(4):
        A(f"v_add_f32 v{vD+r}, v{vD+r}, v{Z+r}")
    A(f"v_and_b32 v{vT+8}, 7, v{vL}")
    A(f"v_lshlrev_b32 v{vT+8}, 5, v{vT+8}")
    A(f"v_lshl_add_u32 v{vT+8}, v{vG}, 4, v{vT+8}")
    A("s_lshl_b32 s26, s22, 11")
    A("s_lshl_b32 s27, s3, 8")
    A("s_add_u32 s26, s26, s27")
    srd(g, sY, 14, 15, "s26", 256)
    A("s_mov_b32 exec_lo, 0x00ff00ff")
    A("s_mov_b32 exec_hi, 0")
    g.vmem(f"buffer_store_dwordx4 {vr(vD)}, v{vT+8}, s[{sY}:{sY+3}], 0 offen", "yst")
    A("s_cmp_lg_u32 s3, 0")
    A(f"s_cbranch_scc1 {name}_end")
    A("s_lshl_b32 s26, s22, 3")
    A(f"s_add_u32 s26, s26, {WS_ML}")
    srd(g, sGs, 14, 15, "s26", 8)
    A("s_mov_b32 exec_lo, 1")
    A(f"v_mov_b32 v{vT}, v{vMx}")
    A(f"v_mov_b32 v{vT+1}, v{vLs}")
    A(f"v_mov_b32 v{vT+2}, 0")
    A(f"buffer_store_dwordx2 v[{vT}:{vT+1}], v{vT+2}, s[{sGs}:{sGs+3}], 0 offen")
    if PROF:
        A("s_waitcnt vmcnt(0)")
        stamp()
        A("s_waitcnt lgkmcnt(0)")
        A("s_lshl_b32 s26, s2, 8")
        A(f"s_add_u32 s26, s26, {1<<20}")
        srd(g, sGs, 14, 15, "s26", 256)
        for k in stamps:
            A(f"v_mov_b32 v{vT}, s{72+2*k}")
            A(f"v_mov_b32 v{vT+1}, s{73+2*k}")
            A(f"buffer_store_dwordx2 v[{vT}:{vT+1}], v{vT+2}, s[{sGs}:{sGs+3}], 0 offen offset:{8*k}")
            A("s_nop 2")
    g.label(name + "_end")
    A("s_endpgm")
    return nv, lds


def kernel_reduce(g, P):
    name = P["name2"]
    A = g.A
    g.vm = []
    g.label(name)
    A("s_load_dwordx2 s[4:5], s[0:1], 0")
    A("s_load_dwordx2 s[6:7], s[0:1], 64")
    A("s_load_dwordx2 s[8:9], s[0:1], 80")
    A("s_cmp_ge_u32 s2, 64")
    A(f"s_cbranch_scc1 {name}_end")
    A("v_lshrrev_b32 v1, 6, v0")
    A("v_and_b32 v2, 63, v0")
    A("v_readfirstlane_b32 s3, v1")
    A("v_lshlrev_b32 v3, 11, v0")
    A("v_lshlrev_b32 v4, 3, v0")
    A("s_lshl_b32 s10, s2, 5")
    A("s_waitcnt lgkmcnt(0)")
    A(f"s_sub_u32 s11, {256*2048}, s10")
    srd(g, 12, 8, 9, "s10", "s11")
    A(f"s_add_u32 s11, s10, {WS_G}")
    A(f"s_sub_u32 s24, {NUNITS*2048}, s10")
    srd(g, 16, 8, 9, "s11", "s24")
    A(f"s_mov_b32 s11, {WS_ML}")
    srd(g, 20, 8, 9, "s11", 2048)
    A("s_lshl_b32 s11, s2, 4")
    srd(g, 24, 4, 5, "s11", 16)
    srd(g, 28, 6, 7, "s11", 16)
    g.vmem("buffer_load_dwordx2 v[6:7], v4, s[20:23], 0 offen", "ml")
    g.vmem("buffer_load_dwordx4 v[8:11], v3, s[12:15], 0 offen", "y")
    g.vmem("buffer_load_dwordx4 v[12:15], v3, s[12:15], 0 offen offset:16", "y")
    g.vmem("buffer_load_dwordx4 v[16:19], v3, s[16:19], 0 offen", "gg")
    g.vmem("buffer_load_dwordx4 v[20:23], v3, s[16:19], 0 offen offset:16", "gg")
    A("v_and_b32 v5, 7, v2")
    A("v_lshlrev_b32 v5, 1, v5")
    g.vmem("buffer_load_ushort v24, v5, s[24:27], 0 offen", "x")
    g.wait("ml")
    A("v_mov_b32 v25, v6")
    for ctl in ("quad_perm:[1,0,3,2]", "quad_perm:[2,3,0,1]", "row_half_mirror"):
        g.nop(2)
        A(f"v_max_f32_dpp v25, v25, v25 {ctl} row_mask:0xf bank_mask:0xf")
    A("v_sub_f32 v26, v6, v25")
    A(f"v_mul_f32 v26, {hex(LOG2E)}, v26")
    A("v_exp_f32 v26, v26")
    g.nop(1)
    A("v_mul_f32 v27, v26, v7")
    for ctl in ("quad_perm:[1,0,3,2]", "quad_perm:[2,3,0,1]", "row_half_mirror"):
        g.nop(2)
        A(f"v_add_f32_dpp v27, v27, v27 {ctl} row_mask:0xf bank_mask:0xf")
    A("v_rcp_f32 v28, v27")
    g.nop(1)
    A("v_mul_f32 v29, v26, v28")
    A("v_fma_f32 v30, -v29, v27, v26")
    A("v_fma_f32 v29, v30, v28, v29")
    g.wait("y")
    for k in range(8):
        A(f"v_mul_f32 v{8+k}, v{8+k}, v29")
    g.wait("gg")
    treduce(g, [8 + k for k in range(16)], 16)
    A("v_lshrrev_b32 v25, 2, v2")
    A("v_lshlrev_b32 v25, 4, v25")
    A("s_lshl_b32 s10, s3, 2")
    A("v_add_u32 v25, s10, v25")
    A("ds_write_b32 v25, v8")
    A("s_waitcnt lgkmcnt(0)")
    A("s_barrier")
    A("s_cmp_lg_u32 s3, 0")
    A(f"s_cbranch_scc1 {name}_end")
    A("v_and_b32 v5, 7, v2")
    A("v_lshlrev_b32 v25, 4, v5")
    A("ds_read_b128 v[8:11], v25")
    A("ds_read_b128 v[12:15], v25 offset:128")
    A("s_waitcnt lgkmcnt(0)")
    A("v_add_f32 v8, v8, v9"); A("v_add_f32 v10, v10, v11"); A("v_add_f32 v8, v8, v10")
    A("v_add_f32 v12, v12, v13"); A("v_add_f32 v14, v14, v15"); A("v_add_f32 v12, v12, v14")
    bf16r(g, 8)
    bf16r(g, 12)
    v, t = 12, 16
    A(f"v_mul_f32 v{t}, {hex(LOG2E ^ 0x80000000)}, v{v}")
    A(f"v_exp_f32 v{t}, v{t}")
    g.nop(1)
    A(f"v_add_f32 v{t}, 1.0, v{t}")
    A(f"v_rcp_f32 v{t+1}, v{t}")
    g.nop(1)
    A(f"v_mul_f32 v{t+2}, v{v}, v{t+1}")
    A(f"v_fma_f32 v{t+3}, -v{t+2}, v{t}, v{v}")
    A(f"v_fma_f32 v{t+2}, v{t+3}, v{t+1}, v{t+2}")
    A(f"v_cmp_lt_f32 vcc, 0x7f000000, v{t}")
    A(f"v_mul_f32 v{t+3}, v{v}, v{t+1}")
    g.nop(1)
    A(f"v_cndmask_b32 v{v}, v{t+2}, v{t+3}, vcc")
    bf16r(g, v)
    A("v_mul_f32 v8, v8, v12")
    bf16r(g, 8)
    g.wait("x")
    A("v_lshlrev_b32 v24, 16, v24")
    A("v_add_f32 v8, v8, v24")
    A("v_cvt_pk_bf16_f32 v8, v8, v8")
    A("v_lshlrev_b32 v5, 1, v5")
    A("s_mov_b32 exec_lo, 0xff")
    A("s_mov_b32 exec_hi, 0")
    A("buffer_store_short v8, v5, s[28:31], 0 offen")
    g.label(name + "_end")
    A("s_endpgm")
    return 32, 256


def descriptor(name, nv, ns=102):
    nv = max(nv, 8)
    return f""".p2align 6
.amdhsa_kernel {name}
  .amdhsa_next_free_vgpr {nv}
  .amdhsa_next_free_sgpr {ns}
  .amdhsa_accum_offset {(nv + 3) // 4 * 4}
  .amdhsa_group_segment_fixed_size 0
  .amdhsa_kernarg_size 88
  .amdhsa_user_sgpr_count 2
  .amdhsa_user_sgpr_kernarg_segment_ptr 1
  .amdhsa_system_sgpr_workgroup_id_x 1
.end_amdhsa_kernel
"""


def build(**P):
    P.setdefault("name", KNAME)
    P.setdefault("name2", "final_reduce_kernel")
    g = Gen()
    nv1, lds1 = kernel_main(g, P)
    body1 = g.text()
    g2 = Gen()
    nv2, lds2 = kernel_reduce(g2, P)
    body2 = g2.text()
    out = HEADER
    out += f"; @launch kernel={P['name']} grid=(256,1,1) block=(512,1,1) lds={lds1}\n"
    out += f"; @launch kernel={P['name2']} grid=(64,1,1) block=(256,1,1) lds={lds2}\n"
    out += '.amdgcn_target "amdgcn-amd-amdhsa--gfx950"\n.text\n'
    out += f".globl {P['name']}\n.p2align 8\n.type {P['name']},@function\n" + body1
    out += f".globl {P['name2']}\n.p2align 8\n.type {P['name2']},@function\n" + body2
    out += '.section .rodata,"a"\n'
    out += descriptor(P["name"], nv1) + descriptor(P["name2"], nv2)
    return out


if __name__ == "__main__":
    P = {}
    for a in sys.argv[1:]:
        k, v = a.split("=", 1)
        try:
            v = eval(v)
        except Exception:
            pass
        P[k] = v
    sys.stdout.write(build(**P))
```

```python
import sys
from gen import Gen, vr, allreduce64, rows_allreduce, bf16r, treduce, srd, KNAME, HEADER, LOG2E, SCALE, EPS, NUNITS

WS_EP = 0
WS_ML = 4096
WS_Y = 32768
WS_G = 32768 + (1 << 20)
WS_PROF = 4 << 20


class G2(Gen):
    def __init__(self):
        super().__init__()
        self.auto = 0
        self.cnt = 0
        self.pump = None
        self._in = False

    def A(self, s):
        super().A(s)
        if self.auto and not self._in:
            self.cnt += 1
            if self.cnt >= self.auto:
                self.cnt = 0
                self._in = True
                self.pump(1)
                self._in = False


def kernel(g, P):
    RING = 16
    KVF = P.get("kvflags", "nt")
    name = P["name"]
    PROF = P.get("prof", 0)
    SLEEP = P.get("sleep", 1)
    GPP = P.get("gpp", 2)
    NRED = 256 // GPP
    NV1 = P.get("nv1", 32)
    AUTO = P.get("auto", 8)
    PRE = P.get("pre", 8)
    HF = P.get("hflags", "sc0 sc1")
    NT = 16
    vTID = 0
    vL, vJ, vG = 1, 2, 3
    vM = 4
    vNo = 8
    vMx, vLs = 12, 13
    vQ = 14
    vXT, vXT2 = 18, 19
    vA = 20
    vD = 28
    vT = 32
    vWQo, vWOo = 62, 63
    vR = 64
    vW = 128
    nv = 256
    NACC = 256
    vSC = vT + 14

    def slot(j):
        return vR + 4 * (j % RING)

    vXA = vT + 14
    vXM = slot(8)
    vW1 = slot(12)
    vW2 = slot(14)

    L_QP = 0
    L_QB = 2048
    L_HP = 3072
    L_MX = 3200
    L_RED = 3232
    L_YP = 4096
    L_OP = 12288
    L_OB = 14336
    lds = 15360

    A = g.A
    stamps = []

    def stamp():
        if PROF:
            k = len(stamps)
            A(f"s_memrealtime s[{76+2*k}:{77+2*k}]")
            stamps.append(k)

    sX, sK, sV, sWQ, sWO, sW1, sW2, sY, sGs = 28, 32, 36, 40, 44, 48, 52, 56, 60

    events = set()
    plan = []

    def kv_text(kind, i, t):
        sr = sK if kind == "k" else sV
        so = 64 + i // 4
        vo = vNo + i % 4
        dst = vr(slot(4 * i + t)) if kind == "k" else f"a[{16*i+4*t}:{16*i+4*t+3}]"
        return [f"buffer_load_dwordx4 {dst}, v{vo}, s[{sr}:{sr+3}], s{so} offen offset:{t*1024} {KVF}"]

    def K(i, cond=None):
        return [(cond, kv_text("k", i, t), ("k", i, t)) for t in range(4)]

    def V(j):
        return (None, kv_text("v", j // 4, j % 4), ("v", j))

    def WQ(t):
        return (None, [f"s_mov_b32 s68, {t*8192}", f"buffer_load_dwordx4 {vr(vW+4*t)}, v{vWQo}, s[{sWQ}:{sWQ+3}], s68 offen"], ("wq", t))

    def WO(t):
        return ("wq_done", [f"s_mov_b32 s69, {(t//4)*4096}", f"buffer_load_dwordx4 {vr(vW+4*t)}, v{vWOo}, s[{sWO}:{sWO+3}], s69 offen offset:{(t%4)*1024}"], ("wo", t))

    H = K(0) + K(1) + [V(j) for j in range(24)]
    for t in range(32):
        plan.append(H[t])
        plan.append(WQ(t))
    plan += K(2, "ln_done")
    plan += [V(j) for j in range(24, NV1)]
    n_pre_g = len(plan)
    plan += K(3, "g_done")
    n_pre_qk = len(plan)
    rest = [WO(t) for t in range(32)]
    for i in range(4, NT):
        plan += K(i, ("kt", i - 4))
        plan += [rest.pop(0), rest.pop(0)]
    tail = [V(j) for j in range(NV1, 64)]
    while rest or tail:
        if rest:
            plan.append(rest.pop(0))
        for _ in range(2):
            if tail:
                plan.append(tail.pop(0))
    st = {"next": 0}

    def pump(n, upto=None):
        done = 0
        while done < n and st["next"] < len(plan):
            if upto is not None and st["next"] >= upto:
                break
            cond, text, tag = plan[st["next"]]
            if cond is not None and cond not in events:
                break
            for s in text[:-1]:
                g.A(s)
            g.vmem(text[-1], tag)
            st["next"] += 1
            done += 1
        return done

    limit = {"v": None}
    g.pump = lambda n: pump(n, limit["v"])

    g.label(name)
    stamp()
    A("s_load_dwordx8 s[4:11], s[0:1], 0")
    A("s_load_dwordx2 s[12:13], s[0:1], 32")
    A("s_load_dwordx4 s[16:19], s[0:1], 48")
    A("s_load_dwordx2 s[14:15], s[0:1], 80")
    A("s_load_dwordx2 s[70:71], s[0:1], 64")
    A("s_cmp_ge_u32 s2, 256")
    A(f"s_cbranch_scc1 {name}_end")
    A(f"v_lshrrev_b32 v{vT}, 6, v{vTID}")
    A(f"v_and_b32 v{vL}, 63, v{vTID}")
    A(f"v_readfirstlane_b32 s3, v{vT}")
    A(f"v_and_b32 v{vJ}, 15, v{vL}")
    A(f"v_lshrrev_b32 v{vG}, 4, v{vL}")
    A(f"v_lshlrev_b32 v{vNo}, 4, v{vL}")
    for b in range(1, 4):
        A(f"v_add_u32 v{vNo+b}, {b*16384}, v{vNo}")
    A("s_and_b32 s20, s2, 7")
    A("s_lshl_b32 s20, s20, 2")
    A("s_lshr_b32 s21, s2, 3")
    A("s_and_b32 s22, s21, 3")
    A("s_add_u32 s20, s20, s22")
    A("s_lshr_b32 s21, s2, 5")
    A("s_lshl_b32 s22, s20, 3")
    A("s_add_u32 s22, s22, s21")
    A("s_lshl_b32 s64, s3, 12")
    for a_ in range(1, 4):
        A(f"s_add_u32 s{64+a_}, s64, {a_*65536}")
    A("s_lshl_b32 s26, s22, 18")
    A(f"v_lshlrev_b32 v{vT}, 4, v{vJ}")
    A(f"v_lshl_add_u32 v{vWQo}, v{vG}, 18, v{vT}")
    A(f"v_lshl_add_u32 v{vWOo}, v{vG}, 15, v{vT}")
    A(f"v_lshlrev_b32 v{vT+3}, 6, v{vG}")
    A(f"v_lshlrev_b32 v{vT+4}, 1, v{vTID}")
    A("s_lshl_b32 s23, s20, 8")
    A("s_lshl_b32 s27, s3, 20")
    A("s_add_u32 s23, s23, s27")
    A("s_sub_u32 s24, 0x400000, s23")
    A("s_waitcnt lgkmcnt(0)")
    srd(g, sK, 6, 7, "s26", 262144)
    srd(g, sV, 8, 9, "s26", 262144)
    srd(g, sWQ, 10, 11, "s23", "s24")
    srd(g, sX, 4, 5, None, 1024)
    pump(2)
    A("s_lshl_b32 s27, s3, 8")
    g.vmem(f"buffer_load_dwordx4 {vr(vXA)}, v{vNo}, s[{sX}:{sX+3}], 0 offen", "xa")
    for k in range(4):
        g.vmem(f"buffer_load_dwordx4 {vr(vXM+4*k)}, v{vT+3}, s[{sX}:{sX+3}], s27 offen offset:{16*k}", "xm")
    g.vmem(f"buffer_load_ushort v{vXT}, v{vT+4}, s[{sX}:{sX+3}], 0 offen", "xt")
    g.vmem(f"buffer_load_ushort v{vXT2}, v{vT+4}, s[{sX}:{sX+3}], 0 offen offset:512", "xt")
    pump(PRE)
    A(f"s_load_dword s72, s[14:15], {WS_EP}")
    A("s_and_b32 s23, s2, 7")
    A("s_mul_i32 s23, s23, 22")
    A("s_lshr_b32 s24, s2, 3")
    A("s_add_u32 s23, s23, s24")
    A("s_cmp_lt_u32 s24, 22")
    A("s_cselect_b32 s23, s23, 0xffff")
    A(f"s_cmp_lt_u32 s23, {NUNITS}")
    A("s_cselect_b32 s25, 1, 0")
    A("s_cselect_b32 s23, s23, 0")
    A("s_lshl_b32 s26, s23, 4")
    A(f"s_sub_u32 s27, {512*2752}, s26")
    A("s_mul_i32 s27, s27, s25")
    srd(g, sW1, 16, 17, "s26", "s27")
    A("s_lshl_b32 s26, s23, 3")
    A("s_add_u32 s26, s26, s3")
    A("s_lshl_b32 s26, s26, 10")
    A("s_mul_i32 s27, s25, 5120")
    srd(g, sW2, 18, 19, "s26", "s27")
    A("s_movk_i32 s26, 2752")
    A(f"v_mul_lo_u32 v{vT+5}, v{vTID}, s26")
    A(f"s_mov_b32 s27, {256*2752}")
    g.vmem(f"buffer_load_dwordx4 {vr(vW1)}, v{vT+5}, s[{sW1}:{sW1+3}], 0 offen", "w1")
    g.vmem(f"buffer_load_dwordx4 {vr(vW1+4)}, v{vT+5}, s[{sW1}:{sW1+3}], s27 offen", "w1")
    g.vmem(f"buffer_load_dwordx4 {vr(vW2)}, v{vNo}, s[{sW2}:{sW2+3}], 0 offen", "w2")
    A("s_movk_i32 s27, 4096")
    g.vmem(f"buffer_load_dwordx4 {vr(vW2+4)}, v{vNo}, s[{sW2}:{sW2+3}], s27 offen", "w2")
    A("s_lshl_b32 s26, s20, 17")
    A("s_lshl_b32 s27, s3, 8")
    A("s_add_u32 s26, s26, s27")
    A("s_sub_u32 s27, 0x400000, s26")
    srd(g, sWO, 12, 13, "s26", "s27")
    stamp()
    limit["v"] = n_pre_g
    g.auto = AUTO
    A(f"v_and_b32 v{vT}, 1, v{vJ}")
    A(f"v_lshlrev_b32 v{vT}, 4, v{vT}")
    A(f"v_mov_b32 v{vT+1}, 0xffff")
    A(f"v_lshlrev_b32 v{vT+1}, v{vT}, v{vT+1}")
    A(f"v_bfe_u32 v{vT}, v{vJ}, 1, 2")
    for r in range(4):
        A(f"v_cmp_eq_u32 vcc, {r}, v{vT}")
        g.nop(2)
        A(f"v_cndmask_b32 v{vM+r}, 0, v{vT+1}, vcc")

    g.wait("xa")
    X = vT
    for k in range(4):
        A(f"v_lshlrev_b32 v{X+2*k}, 16, v{vXA+k}")
        A(f"v_and_b32 v{X+2*k+1}, 0xffff0000, v{vXA+k}")
    S, Tm = vT + 8, vT + 9
    A(f"v_add_f32 v{S}, v{X}, v{X+1}")
    for k in range(2, 8):
        A(f"v_add_f32 v{S}, v{S}, v{X+k}")
    allreduce64(g, "add", S, Tm)
    A(f"v_mul_f32 v{S}, 0x3b000000, v{S}")
    Q = vT + 10
    for k in range(8):
        A(f"v_sub_f32 v{X+k}, v{X+k}, v{S}")
    A(f"v_mul_f32 v{Q}, v{X}, v{X}")
    for k in range(1, 8):
        A(f"v_fmac_f32 v{Q}, v{X+k}, v{X+k}")
    allreduce64(g, "add", Q, Tm)
    A(f"v_mul_f32 v{Q}, 0x3b000000, v{Q}")
    bf16r(g, S)
    bf16r(g, Q)
    A(f"v_add_f32 v{Q}, {hex(EPS)}, v{Q}")
    bf16r(g, Q)
    A(f"v_sqrt_f32 v{Q}, v{Q}")
    g.nop(1)
    bf16r(g, Q)
    RS = vT + 11
    A(f"v_rcp_f32 v{RS}, v{Q}")
    g.nop(1)
    MEAN, SD = S, Q

    def normalize(src, t0, t1):
        A(f"v_sub_f32 v{src}, v{src}, v{MEAN}")
        bf16r(g, src)
        A(f"v_mul_f32 v{t0}, v{src}, v{RS}")
        A(f"v_fma_f32 v{t1}, -v{t0}, v{SD}, v{src}")
        A(f"v_fma_f32 v{t0}, v{t1}, v{RS}, v{t0}")

    vXP = vT + 14
    g.wait("xm")
    for k in range(16):
        A(f"v_lshlrev_b32 v{X}, 16, v{vXM+k}")
        A(f"v_and_b32 v{X+1}, 0xffff0000, v{vXM+k}")
        normalize(X, X + 2, X + 3)
        normalize(X + 1, X + 4, X + 5)
        A(f"v_cvt_pk_bf16_f32 v{vXP+k}, v{X+2}, v{X+4}")
    events.add("ln_done")
    g.wait("xt")
    for xt in (vXT, vXT2):
        A(f"v_lshlrev_b32 v{xt}, 16, v{xt}")
        normalize(xt, X + 2, X + 3)
        A(f"v_cvt_pk_bf16_f32 v{xt}, v{X+2}, v{X+2}")
        A(f"v_lshlrev_b32 v{xt}, 16, v{xt}")
    g.wait("w1")
    Hh = vT
    for k in range(4):
        A(f"v_lshlrev_b32 v{Hh+2*k}, 16, v{vW1+k}")
        A(f"v_and_b32 v{Hh+2*k+1}, 0xffff0000, v{vW1+k}")
        A(f"v_lshlrev_b32 v{Hh+10}, 16, v{vW1+4+k}")
        A(f"v_and_b32 v{Hh+11}, 0xffff0000, v{vW1+4+k}")
        A(f"v_mul_f32 v{Hh+2*k}, v{Hh+2*k}, v{vXT}")
        A(f"v_mul_f32 v{Hh+2*k+1}, v{Hh+2*k+1}, v{vXT}")
        A(f"v_fmac_f32 v{Hh+2*k}, v{Hh+10}, v{vXT2}")
        A(f"v_fmac_f32 v{Hh+2*k+1}, v{Hh+11}, v{vXT2}")
    treduce(g, [Hh + k for k in range(8)], 8)
    aH = vT + 9
    A(f"v_lshrrev_b32 v{aH}, 3, v{vL}")
    A(f"v_lshlrev_b32 v{aH}, 4, v{aH}")
    A("s_lshl_b32 s26, s3, 2")
    A(f"v_add_u32 v{aH}, s26, v{aH}")
    A(f"ds_write_b32 v{aH}, v{Hh} offset:{L_HP}")

    A("s_mov_b32 s98, 0x01000100")
    A("s_mov_b32 s99, 0x03020302")
    PD = vT + 12

    def prep(pairs, t):
        d = PD + (t % 2)
        A(f"v_perm_b32 v{d}, v{pairs+t//2}, v{pairs+t//2}, s{98+(t%2)}")
        for r in range(4):
            A(f"v_and_b32 v{vA+4*(t%2)+r}, v{vM+r}, v{d}")

    def gemv(tagname, D, pairs, ensure=False):
        prep(pairs, 0)
        for t in range(32):
            if t + 1 < 32:
                prep(pairs, t + 1)
            else:
                g.nop(2)
            if ensure:
                while (tagname, t) not in g.vm and (tagname, t) not in issued_tags():
                    assert pump(1, limit["v"]) == 1
            g.wait((tagname, t))
            c = "0" if t == 0 else vr(D)
            A(f"v_mfma_f32_16x16x32_bf16 {vr(D)}, {vr(vA+4*(t%2))}, {vr(vW+4*t)}, {c}")

    def issued_tags():
        return set(p[2] for p in plan[:st["next"]])

    stamp()
    g.auto = P.get("auto2", 4)
    gemv("wq", vD, vXP, ensure=True)
    events.add("wq_done")
    stamp()
    g.auto = AUTO
    aQ = vT + 8
    A(f"v_and_b32 v{aQ}, 1, v{vG}")
    A(f"v_lshlrev_b32 v{aQ}, 4, v{aQ}")
    A(f"v_lshl_add_u32 v{aQ}, v{vJ}, 5, v{aQ}")
    A("s_lshl_b32 s26, s3, 9")
    A(f"v_add_u32 v{aQ}, s26, v{aQ}")
    g.nop(4)
    A(f"ds_write_b128 v{aQ}, {vr(vD)} offset:{L_QP}")
    A("s_waitcnt lgkmcnt(0)")
    A("s_barrier")
    A("s_mul_i32 s73, s72, 0x9E3779B1")
    A("s_add_u32 s73, s73, 0x7F4A7C15")
    A("s_mul_i32 s74, s72, 0x85EBCA77")
    A("s_add_u32 s74, s74, 0xC2B2AE3D")
    aR = vT + 8
    QS = vT + 14
    A(f"v_lshlrev_b32 v{aR}, 3, v{vL}")
    for w in range(4):
        A(f"ds_read_b64 v[{QS+2*w}:{QS+2*w+1}], v{aR} offset:{L_QP + w*512}")
    A("s_lshl_b32 s26, s3, 4")
    A(f"v_mov_b32 v{aH}, s26")
    A(f"ds_read_b128 {vr(vT)}, v{aH} offset:{L_HP}")
    A(f"ds_read_b128 {vr(vT+4)}, v{aH} offset:{L_HP+64}")
    A("s_waitcnt lgkmcnt(0)")
    for w in range(1, 4):
        A(f"v_add_f32 v{QS}, v{QS}, v{QS+2*w}")
        A(f"v_add_f32 v{QS+1}, v{QS+1}, v{QS+2*w+1}")
    A(f"v_cvt_pk_bf16_f32 v{QS}, v{QS}, v{QS+1}")
    A(f"v_lshlrev_b32 v{aR}, 2, v{vL}")
    A("s_lshl_b32 s26, s3, 8")
    A(f"v_add_u32 v{aR}, s26, v{aR}")
    A(f"ds_write_b32 v{aR}, v{QS} offset:{L_QB}")
    Ha, Hb = vT, vT + 4
    for k in range(1, 4):
        A(f"v_add_f32 v{Ha}, v{Ha}, v{vT+k}")
        A(f"v_add_f32 v{Hb}, v{Hb}, v{vT+4+k}")
    bf16r(g, Ha)
    bf16r(g, Hb)

    def silu(v, t):
        A(f"v_mul_f32 v{t}, {hex(LOG2E ^ 0x80000000)}, v{v}")
        A(f"v_exp_f32 v{t}, v{t}")
        g.nop(1)
        A(f"v_add_f32 v{t}, 1.0, v{t}")
        A(f"v_rcp_f32 v{t+1}, v{t}")
        g.nop(1)
        A(f"v_mul_f32 v{t+2}, v{v}, v{t+1}")
        A(f"v_fma_f32 v{t+3}, -v{t+2}, v{t}, v{v}")
        A(f"v_fma_f32 v{t+2}, v{t+3}, v{t+1}, v{t+2}")
        A(f"v_cmp_lt_f32 vcc, 0x7f000000, v{t}")
        A(f"v_mul_f32 v{t+3}, v{v}, v{t+1}")
        g.nop(1)
        A(f"v_cndmask_b32 v{v}, v{t+2}, v{t+3}, vcc")
        bf16r(g, v)

    A("s_waitcnt lgkmcnt(0)")
    aB = vT + 8
    A(f"v_lshlrev_b32 v{aB}, 4, v{vJ}")
    A(f"v_add_u32 v{aB}, s26, v{aB}")
    A(f"ds_read_b128 {vr(vQ)}, v{aB} offset:{L_QB}")
    silu(Ha, vT + 9)
    silu(Hb, vT + 9)
    g.wait("w2")
    Yg = vT + 14
    for k in range(4):
        A(f"v_lshlrev_b32 v{Yg+2*k}, 16, v{vW2+k}")
        A(f"v_and_b32 v{Yg+2*k+1}, 0xffff0000, v{vW2+k}")
        A(f"v_lshlrev_b32 v{vT+10}, 16, v{vW2+4+k}")
        A(f"v_and_b32 v{vT+11}, 0xffff0000, v{vW2+4+k}")
        A(f"v_mul_f32 v{Yg+2*k}, v{Yg+2*k}, v{Ha}")
        A(f"v_mul_f32 v{Yg+2*k+1}, v{Yg+2*k+1}, v{Ha}")
        A(f"v_fmac_f32 v{Yg+2*k}, v{vT+10}, v{Hb}")
        A(f"v_fmac_f32 v{Yg+2*k+1}, v{vT+11}, v{Hb}")
    events.add("g_done")
    limit["v"] = n_pre_qk
    aY = vT + 1
    A(f"v_lshlrev_b32 v{aY}, 5, v{vL}")
    A("s_lshl_b32 s26, s3, 11")
    A(f"v_add_u32 v{aY}, s26, v{aY}")
    A(f"ds_write_b128 v{aY}, {vr(Yg)} offset:{L_YP}")
    A(f"ds_write_b128 v{aY}, {vr(Yg+4)} offset:{L_YP+16}")
    g.auto = 0
    pump(1000, n_pre_qk)
    stamp()

    a = [vT + k for k in range(4)]
    b0, b1 = vT + 4, vT + 5
    PQ = P.get("pq", 6)

    def qk(i):
        g.wait(("k", i, 3))
        for c in range(4):
            for t in range(4):
                if c == 0:
                    A(f"v_dot2_f32_bf16 v{a[t]}, v{slot(4*i+t)}, v{vQ}, 0")
                else:
                    A(f"v_dot2c_f32_bf16 v{a[t]}, v{slot(4*i+t)+c}, v{vQ+c}")
        events.add(("kt", i))
        pump(PQ)
        A(f"v_add_f32_dpp v{b0}, v{a[0]}, v{a[0]} row_ror:8 row_mask:0xf bank_mask:0x3")
        A(f"v_add_f32_dpp v{b1}, v{a[1]}, v{a[1]} row_ror:8 row_mask:0xf bank_mask:0x3")
        A(f"v_add_f32_dpp v{b0}, v{a[2]}, v{a[2]} row_ror:8 row_mask:0xf bank_mask:0xc")
        A(f"v_add_f32_dpp v{b1}, v{a[3]}, v{a[3]} row_ror:8 row_mask:0xf bank_mask:0xc")
        g.nop(2)
        c_ = vSC + i
        A(f"v_add_f32_dpp v{c_}, v{b0}, v{b0} row_half_mirror row_mask:0xf bank_mask:0x5")
        A(f"v_add_f32_dpp v{c_}, v{b1}, v{b1} row_half_mirror row_mask:0xf bank_mask:0xa")
        g.nop(2)
        A(f"v_add_f32_dpp v{c_}, v{c_}, v{c_} quad_perm:[1,0,3,2] row_mask:0xf bank_mask:0xf")
        g.nop(2)
        A(f"v_add_f32_dpp v{c_}, v{c_}, v{c_} quad_perm:[2,3,0,1] row_mask:0xf bank_mask:0xf")
        bf16r(g, c_)
        A(f"v_mul_f32 v{c_}, {hex(SCALE)}, v{c_}")
        bf16r(g, c_)

    A("s_waitcnt lgkmcnt(0)")
    A("s_barrier")
    GS = vT + 6
    A(f"v_lshlrev_b32 v{GS+8-1+0}, 3, v{vTID}") if False else None
    A(f"v_lshlrev_b32 v{vT+4}, 3, v{vTID}")
    for w in range(4):
        A(f"ds_read_b64 v[{GS+2*w}:{GS+2*w+1}], v{vT+4} offset:{L_YP + w*2048}")
    qk(0)
    A("s_waitcnt lgkmcnt(0)")
    for w in range(1, 4):
        A(f"v_add_f32 v{GS}, v{GS}, v{GS+2*w}")
        A(f"v_add_f32 v{GS+1}, v{GS+1}, v{GS+2*w+1}")
    A(f"v_mov_b32 v{GS+2}, v{GS+1}")
    A(f"v_mov_b32 v{GS+1}, s73")
    A(f"v_mov_b32 v{GS+3}, s74")
    A(f"s_lshl_b32 s26, s23, 12")
    A(f"s_add_u32 s26, s26, {WS_G}")
    A("s_lshl_b32 s27, s25, 12")
    srd(g, sGs, 14, 15, "s26", "s27")
    A(f"v_lshlrev_b32 v{GS+4}, 4, v{vTID}")
    g.vmem(f"buffer_store_dwordx4 {vr(GS)}, v{GS+4}, s[{sGs}:{sGs+3}], 0 offen {HF}", "gst")
    for i in range(1, NT):
        qk(i)
    stamp()
    A(f"v_max3_f32 v{vMx}, v{vSC}, v{vSC+1}, v{vSC+2}")
    for k in range(3, NT - 1, 2):
        A(f"v_max3_f32 v{vMx}, v{vMx}, v{vSC+k}, v{vSC+k+1}")
    A(f"v_max_f32 v{vMx}, v{vMx}, v{vSC+NT-1}")
    for ctl in ("row_ror:4", "row_ror:8"):
        g.nop(2)
        A(f"v_max_f32_dpp v{vMx}, v{vMx}, v{vMx} {ctl} row_mask:0xf bank_mask:0xf")
    rows_allreduce(g, "max", vMx, vT)
    A("s_lshl_b32 s26, s3, 2")
    A(f"v_mov_b32 v{vT}, s26")
    A(f"ds_write_b32 v{vT}, v{vMx} offset:{L_MX}")
    pump(4)
    A("s_waitcnt lgkmcnt(0)")
    A("s_barrier")
    A(f"v_mov_b32 v{vT}, 0")
    A(f"ds_read_b128 {vr(vT+4)}, v{vT} offset:{L_MX}")
    A("s_waitcnt lgkmcnt(0)")
    A(f"v_max3_f32 v{vMx}, v{vT+4}, v{vT+5}, v{vT+6}")
    A(f"v_max_f32 v{vMx}, v{vMx}, v{vT+7}")
    A(f"s_mov_b32 s26, {hex(LOG2E)}")
    A(f"v_mul_f32 v{vT}, s26, v{vMx}")
    for k in range(NT):
        A(f"v_fma_f32 v{vSC+k}, v{vSC+k}, s26, -v{vT}")
    for k in range(NT):
        A(f"v_exp_f32 v{vSC+k}, v{vSC+k}")
    g.nop(1)
    A(f"v_add_f32 v{vLs}, v{vSC}, v{vSC+1}")
    for k in range(2, NT):
        A(f"v_add_f32 v{vLs}, v{vLs}, v{vSC+k}")
    for k in range(NT):
        A(f"v_cvt_pk_bf16_f32 v{vSC+k}, v{vSC+k}, v{vSC+k}")
    for ctl in ("row_ror:4", "row_ror:8"):
        g.nop(2)
        A(f"v_add_f32_dpp v{vLs}, v{vLs}, v{vLs} {ctl} row_mask:0xf bank_mask:0xf")
    rows_allreduce(g, "add", vLs, vT)
    A("s_lshl_b32 s26, s22, 2")
    A("s_add_u32 s26, s26, s3")
    A("s_lshl_b32 s26, s26, 4")
    A(f"s_add_u32 s26, s26, {WS_ML}")
    srd(g, sGs, 14, 15, "s26", 16)
    A(f"v_mov_b32 v{vT}, v{vMx}")
    A(f"v_mov_b32 v{vT+1}, s73")
    A(f"v_mov_b32 v{vT+2}, v{vLs}")
    A(f"v_mov_b32 v{vT+3}, s74")
    A(f"v_lshlrev_b32 v{vT+4}, 4, v{vL}")
    g.vmem(f"buffer_store_dwordx4 {vr(vT)}, v{vT+4}, s[{sGs}:{sGs+3}], 0 offen {HF}", "mlst")
    stamp()
    def pand(tt):
        for r in range(4):
            A(f"v_and_b32_dpp v{vA+4*(tt%2)+r}, v{vSC+tt//4}, v{vM+r} row_newbcast:{4*(tt%4)} row_mask:0xf bank_mask:0xf")
    NV = 4 * NT
    RML = vR
    RG = [vR + 4 + 4 * k for k in range(GPP)]
    vOy, vOm, vDf, vXo = vR + 24, vR + 25, vR + 26, vR + 27
    vGm = [vR + 28 + k for k in range(GPP)]
    PPL = 256 // GPP
    lg = {1: 0, 2: 1, 4: 2}[GPP]
    GLT = P.get("glt", 36)
    pand(0)
    for t in range(NV):
        if t + 1 < NV:
            pand(t + 1)
        else:
            g.nop(2)
        while ("v", t) not in issued_tags():
            assert pump(1) == 1
        g.wait(("v", t))
        c = "0" if t == 0 else vr(vD)
        A(f"v_mfma_f32_16x16x32_bf16 {vr(vD)}, {vr(vA+4*(t%2))}, a[{4*t}:{4*t+3}], {c}")
        pump(1)
        if t == GLT:
            A("s_lshl_b32 s26, s20, 9")
            A(f"s_add_u32 s26, s26, {WS_ML}")
            srd(g, sK, 14, 15, "s26", 512)
            A(f"v_and_b32 v{vOm}, 31, v{vL}")
            A(f"v_lshlrev_b32 v{vOm}, 4, v{vOm}")
            g.vmem(f"buffer_load_dwordx4 {vr(RML)}, v{vOm}, s[{sK}:{sK+3}], 0 offen {HF}", "mlg")
            A(f"v_lshrrev_b32 v{vT}, {lg}, v{vTID}")
            A(f"v_and_b32 v{vT+1}, {GPP-1}, v{vTID}")
            A(f"v_lshlrev_b32 v{vT+1}, 4, v{vT+1}")
            A(f"v_lshl_add_u32 v{vOy}, v{vT}, 12, v{vT+1}")
            for k in range(GPP):
                A(f"v_cmp_gt_u32 vcc, {max(NUNITS - k*PPL, 0)}, v{vT}")
                A(f"v_mov_b32 v{vGm[k]}, 0")
                g.nop(1)
                A(f"v_cndmask_b32 v{vGm[k]}, v{vGm[k]}, -1, vcc")
            A(f"s_and_b32 s24, s2, {NRED-1}")
            A(f"s_lshl_b32 s26, s24, {4+lg}")
            A(f"s_add_u32 s27, s26, {WS_G}")
            A(f"s_sub_u32 s24, {NUNITS*4096}, s26")
            srd(g, sW1, 14, 15, "s27", "s24")
            for k in range(GPP):
                if k * PPL < NUNITS:
                    A(f"s_mov_b32 s26, {k*PPL*4096}")
                    g.vmem(f"buffer_load_dwordx4 {vr(RG[k])}, v{vOy}, s[{sW1}:{sW1+3}], s26 offen {HF}", "gg")
    assert st["next"] == len(plan), (st["next"], len(plan))
    stamp()
    aQ = vT + 8
    A(f"v_and_b32 v{aQ}, 1, v{vG}")
    A(f"v_lshlrev_b32 v{aQ}, 4, v{aQ}")
    A(f"v_lshl_add_u32 v{aQ}, v{vJ}, 5, v{aQ}")
    A("s_lshl_b32 s26, s3, 9")
    A(f"v_add_u32 v{aQ}, s26, v{aQ}")
    g.nop(4)
    A(f"ds_write_b128 v{aQ}, {vr(vD)} offset:{L_OP}")
    A(f"v_lshlrev_b32 v{aR}, 3, v{vL}")
    g.wait("gg")
    A("s_mov_b32 s24, 0")
    g.label(name + "_mlchk")
    A(f"v_xor_b32 v{vT}, s73, v{RML+1}")
    A(f"v_xor_b32 v{vT+1}, s74, v{RML+3}")
    A(f"v_or_b32 v{vT}, v{vT}, v{vT+1}")
    A(f"v_cmp_ne_u32 vcc, 0, v{vT}")
    A("s_add_u32 s24, s24, 1")
    A(f"s_cbranch_vccz {name}_mlok")
    A("s_cmp_ge_u32 s24, 0x40000")
    A(f"s_cbranch_scc1 {name}_mlok")
    A(f"buffer_load_dwordx4 {vr(RML)}, v{vOm}, s[{sK}:{sK+3}], 0 offen {HF}")
    A("s_waitcnt vmcnt(0)")
    A(f"s_branch {name}_mlchk")
    g.label(name + "_mlok")
    Mh, E_, L_, C_ = vT, vT + 1, vT + 2, vT + 3
    A(f"v_mov_b32 v{Mh}, v{RML}")
    for ctl in ("quad_perm:[1,0,3,2]", "quad_perm:[2,3,0,1]", "row_half_mirror", "row_mirror"):
        g.nop(2)
        A(f"v_max_f32_dpp v{Mh}, v{Mh}, v{Mh} {ctl} row_mask:0xf bank_mask:0xf")
    A(f"v_mov_b32 v{vT+4}, v{Mh}")
    g.nop(2)
    A(f"v_permlane16_swap_b32 v{Mh}, v{vT+4}")
    g.nop(1)
    A(f"v_max_f32 v{Mh}, v{Mh}, v{vT+4}")
    A(f"v_sub_f32 v{E_}, v{RML}, v{Mh}")
    A(f"v_sub_f32 v{C_}, v{vMx}, v{Mh}")
    A(f"v_mul_f32 v{E_}, {hex(LOG2E)}, v{E_}")
    A(f"v_mul_f32 v{C_}, {hex(LOG2E)}, v{C_}")
    A(f"v_exp_f32 v{E_}, v{E_}")
    A(f"v_exp_f32 v{C_}, v{C_}")
    g.nop(1)
    A(f"v_mul_f32 v{L_}, v{E_}, v{RML+2}")
    for ctl in ("quad_perm:[1,0,3,2]", "quad_perm:[2,3,0,1]", "row_half_mirror", "row_mirror"):
        g.nop(2)
        A(f"v_add_f32_dpp v{L_}, v{L_}, v{L_} {ctl} row_mask:0xf bank_mask:0xf")
    A(f"v_mov_b32 v{vT+4}, v{L_}")
    g.nop(2)
    A(f"v_permlane16_swap_b32 v{L_}, v{vT+4}")
    g.nop(1)
    A(f"v_add_f32 v{L_}, v{L_}, v{vT+4}")
    A(f"v_rcp_f32 v{vT+4}, v{L_}")
    g.nop(1)
    A(f"v_mul_f32 v{vT+5}, v{C_}, v{vT+4}")
    A(f"v_fma_f32 v{vT+6}, -v{vT+5}, v{L_}, v{C_}")
    A(f"v_fma_f32 v{C_}, v{vT+6}, v{vT+4}, v{vT+5}")
    A("s_waitcnt lgkmcnt(0)")
    A("s_barrier")
    for w in range(4):
        A(f"ds_read_b64 v[{QS+2*w}:{QS+2*w+1}], v{aR} offset:{L_OP + w*512}")
    A(f"v_lshlrev_b32 v{vT+1}, 2, v{vL}")
    A("s_lshl_b32 s26, s3, 8")
    A(f"v_add_u32 v{vT+1}, s26, v{vT+1}")
    A(f"v_lshlrev_b32 v{vT+2}, 6, v{vG}")
    A(f"v_add_u32 v{vT+2}, s26, v{vT+2}")
    A("s_waitcnt lgkmcnt(0)")
    for w in range(1, 4):
        A(f"v_add_f32 v{QS}, v{QS}, v{QS+2*w}")
        A(f"v_add_f32 v{QS+1}, v{QS+1}, v{QS+2*w+1}")
    A(f"v_mul_f32 v{QS}, v{QS}, v{C_}")
    A(f"v_mul_f32 v{QS+1}, v{QS+1}, v{C_}")
    A(f"v_cvt_pk_bf16_f32 v{QS}, v{QS}, v{QS+1}")
    A(f"ds_write_b32 v{vT+1}, v{QS} offset:{L_OB}")
    A("s_waitcnt lgkmcnt(0)")
    for k in range(4):
        A(f"ds_read_b128 {vr(QS+4*k)}, v{vT+2} offset:{L_OB+16*k}")
    GR = vT + 8
    A(f"v_mov_b32 v{GR+1}, s73")
    A(f"v_mov_b32 v{GR+3}, s74")
    A(f"v_and_b32 v{vT+4}, 1, v{vG}")
    A(f"v_lshlrev_b32 v{vT+4}, 5, v{vT+4}")
    A(f"v_lshl_add_u32 v{vT+4}, v{vJ}, 6, v{vT+4}")
    A(f"v_lshrrev_b32 v{vT+5}, 1, v{vG}")
    A(f"v_lshl_add_u32 v{vT+4}, v{vT+5}, 4, v{vT+4}")
    A("s_lshl_b32 s26, s22, 12")
    A("s_lshl_b32 s27, s3, 10")
    A("s_add_u32 s26, s26, s27")
    A(f"s_add_u32 s26, s26, {WS_Y}")
    srd(g, sY, 14, 15, "s26", 1024)
    A(f"v_cmp_lt_u32 s[26:27], v{vL}, 32")
    A("s_waitcnt lgkmcnt(0)")
    gemv("wo", vD, QS)
    stamp()
    g.nop(8)
    A(f"v_cndmask_b32 v{GR}, v{vD+2}, v{vD}, s[26:27]")
    A(f"v_cndmask_b32 v{GR+2}, v{vD+3}, v{vD+1}, s[26:27]")
    g.vmem(f"buffer_store_dwordx4 {vr(GR)}, v{vT+4}, s[{sY}:{sY+3}], 0 offen {HF}", "yst")
    stamp()
    if P.get("nofinal"):
        A(f"s_branch {name}_fin")
    if NRED < 256:
        A(f"s_cmp_ge_u32 s2, {NRED}")
        A(f"s_cbranch_scc1 {name}_fin")
    RY = [vW + 4 * k for k in range(GPP)]
    A(f"s_lshl_b32 s26, s2, {4+lg}")
    A(f"s_add_u32 s27, s26, {WS_Y}")
    A(f"s_sub_u32 s24, {256*4096}, s26")
    srd(g, sY, 14, 15, "s27", "s24")
    def ypoll():
        for k in range(GPP):
            A(f"s_mov_b32 s26, {k*PPL*4096}")
            A(f"buffer_load_dwordx4 {vr(RY[k])}, v{vOy}, s[{sY}:{sY+3}], s26 offen {HF}")
    A(f"s_lshl_b32 s27, s2, {2+lg}")
    srd(g, sV, 4, 5, "s27", 4 * GPP)
    srd(g, sWQ, 70, 71, "s27", 4 * GPP)
    A(f"v_and_b32 v{vT+2}, {2*GPP-1}, v{vL}")
    A(f"v_lshlrev_b32 v{vT+2}, 1, v{vT+2}")
    A(f"buffer_load_ushort v{vXo}, v{vT+2}, s[{sV}:{sV+3}], 0 offen")
    A("s_mov_b32 s24, 0")
    g.label(name + "_gchk")
    first = True
    for k in range(GPP):
        if k * PPL < NUNITS:
            A(f"v_xor_b32 v{vT}, s73, v{RG[k]+1}")
            A(f"v_xor_b32 v{vT+1}, s74, v{RG[k]+3}")
            A(f"v_or_b32 v{vT}, v{vT}, v{vT+1}")
            if first:
                A(f"v_and_b32 v{vDf}, v{vT}, v{vGm[k]}")
            else:
                A(f"v_and_or_b32 v{vDf}, v{vT}, v{vGm[k]}, v{vDf}")
            first = False
    A(f"v_cmp_ne_u32 vcc, 0, v{vDf}")
    A("s_add_u32 s24, s24, 1")
    A(f"s_cbranch_vccz {name}_gok")
    A("s_cmp_ge_u32 s24, 0x40000")
    A(f"s_cbranch_scc1 {name}_gok")
    for k in range(GPP):
        if k * PPL < NUNITS:
            A(f"s_mov_b32 s26, {k*PPL*4096}")
            A(f"buffer_load_dwordx4 {vr(RG[k])}, v{vOy}, s[{sW1}:{sW1+3}], s26 offen {HF}")
    A("s_waitcnt vmcnt(0)")
    A(f"s_branch {name}_gchk")
    g.label(name + "_gok")
    a0, a1, a2, a3 = vT + 8, vT + 9, vT + 10, vT + 11
    A(f"v_mov_b32 v{a2}, v{RG[0]}")
    A(f"v_mov_b32 v{a3}, v{RG[0]+2}")
    for k in range(1, GPP):
        if k * PPL < NUNITS:
            A(f"v_add_f32 v{a2}, v{a2}, v{RG[k]}")
            A(f"v_add_f32 v{a3}, v{a3}, v{RG[k]+2}")
    A("s_mov_b32 s24, 0")
    g.label(name + "_poll")
    ypoll()
    A("s_waitcnt vmcnt(0)")
    first = True
    for k in range(GPP):
        A(f"v_xor_b32 v{vT}, s73, v{RY[k]+1}")
        A(f"v_xor_b32 v{vT+1}, s74, v{RY[k]+3}")
        if first:
            A(f"v_or_b32 v{vDf}, v{vT}, v{vT+1}")
        else:
            A(f"v_or3_b32 v{vDf}, v{vDf}, v{vT}, v{vT+1}")
        first = False
    A(f"v_cmp_ne_u32 vcc, 0, v{vDf}")
    A("s_add_u32 s24, s24, 1")
    A("s_and_b64 exec, exec, vcc")
    A(f"s_cbranch_execz {name}_got")
    A(f"s_cmp_ge_u32 s24, 0x40000")
    A(f"s_cbranch_scc1 {name}_got")
    if SLEEP:
        A(f"s_sleep {SLEEP}")
    A(f"s_branch {name}_poll")
    g.label(name + "_got")
    A("s_mov_b64 exec, -1")
    A(f"v_mov_b32 v{a0}, v{RY[0]}")
    A(f"v_mov_b32 v{a1}, v{RY[0]+2}")
    for k in range(1, GPP):
        A(f"v_add_f32 v{a0}, v{a0}, v{RY[k]}")
        A(f"v_add_f32 v{a1}, v{a1}, v{RY[k]+2}")
    g.nop(2)
    A(f"v_permlane32_swap_b32 v{a0}, v{a2}")
    A(f"v_permlane32_swap_b32 v{a1}, v{a3}")
    g.nop(1)
    A(f"v_add_f32 v{a0}, v{a0}, v{a2}")
    A(f"v_add_f32 v{a1}, v{a1}, v{a3}")
    g.nop(2)
    A(f"v_permlane16_swap_b32 v{a0}, v{a1}")
    g.nop(1)
    A(f"v_add_f32 v{a0}, v{a0}, v{a1}")
    rot = ("row_ror:8", "row_ror:4", "row_ror:2") + (("row_ror:1",) if GPP == 1 else ())
    for ctl in rot:
        g.nop(2)
        A(f"v_add_f32_dpp v{a0}, v{a0}, v{a0} {ctl} row_mask:0xf bank_mask:0xf")
    A(f"v_and_b32 v{vT+12}, {GPP-1}, v{vL}")
    A(f"v_lshl_add_u32 v{vT+12}, v{vG}, {lg}, v{vT+12}")
    A(f"v_lshlrev_b32 v{vT+12}, 4, v{vT+12}")
    A("s_lshl_b32 s26, s3, 2")
    A(f"v_add_u32 v{vT+12}, s26, v{vT+12}")
    A(f"ds_write_b32 v{vT+12}, v{a0} offset:{L_RED}")
    A("s_waitcnt lgkmcnt(0)")
    A("s_barrier")
    A("s_cmp_lg_u32 s3, 0")
    A(f"s_cbranch_scc1 {name}_fin")
    A(f"v_and_b32 v{vT}, 1, v{vL}")
    A(f"v_bfe_u32 v{vT+1}, v{vL}, 1, {max(lg,1)}")
    if GPP == 1:
        A(f"v_mov_b32 v{vT+1}, 0")
    A(f"v_lshl_add_u32 v{vT}, v{vT}, {lg}, v{vT+1}")
    A(f"v_lshlrev_b32 v{vT}, 4, v{vT}")
    A(f"ds_read_b128 {vr(vT+4)}, v{vT} offset:{L_RED}")
    A(f"ds_read_b128 {vr(vT+12)}, v{vT} offset:{L_RED+2*GPP*16}")
    A("s_waitcnt lgkmcnt(0)")
    for k in range(1, 4):
        A(f"v_add_f32 v{vT+4}, v{vT+4}, v{vT+4+k}")
        A(f"v_add_f32 v{vT+12}, v{vT+12}, v{vT+12+k}")
    sv, gv = vT + 4, vT + 12
    bf16r(g, sv)
    bf16r(g, gv)
    silu(gv, vT + 20)
    A(f"v_mul_f32 v{sv}, v{sv}, v{gv}")
    bf16r(g, sv)
    A(f"v_lshlrev_b32 v{vXo}, 16, v{vXo}")
    A(f"v_add_f32 v{sv}, v{sv}, v{vXo}")
    A(f"v_cvt_pk_bf16_f32 v{sv}, v{sv}, v{sv}")
    A(f"v_and_b32 v{vT+2}, {2*GPP-1}, v{vL}")
    A(f"v_lshlrev_b32 v{vT+2}, 1, v{vT+2}")
    A(f"s_mov_b32 exec_lo, {(1 << (2*GPP)) - 1}")
    A("s_mov_b32 exec_hi, 0")
    A(f"buffer_store_short v{sv}, v{vT+2}, s[{sWQ}:{sWQ+3}], 0 offen {P.get('outflags', 'sc0 sc1')}")
    A("s_cmp_lg_u32 s2, 0")
    A(f"s_cbranch_scc1 {name}_fin")
    A(f"s_mov_b32 s27, {WS_EP}")
    srd(g, sGs, 14, 15, "s27", 4)
    A("s_mov_b32 exec_lo, 1")
    A(f"v_mov_b32 v{vT}, s73")
    A(f"v_mov_b32 v{vT+1}, 0")
    A(f"buffer_store_dword v{vT}, v{vT+1}, s[{sGs}:{sGs+3}], 0 offen sc0 sc1")
    g.label(name + "_fin")
    if PROF:
        A("s_cmp_lg_u32 s3, 0")
        A(f"s_cbranch_scc1 {name}_end")
        A("s_waitcnt vmcnt(0)")
        stamp()
        A("s_waitcnt lgkmcnt(0)")
        A("s_lshl_b32 s26, s2, 8")
        A(f"s_add_u32 s26, s26, {WS_PROF}")
        srd(g, sGs, 14, 15, "s26", 256)
        A("s_mov_b32 exec_lo, 1")
        A("s_mov_b32 exec_hi, 0")
        A(f"v_mov_b32 v{vT+2}, 0")
        for k in stamps:
            A(f"v_mov_b32 v{vT}, s{76+2*k}")
            A(f"v_mov_b32 v{vT+1}, s{77+2*k}")
            A(f"buffer_store_dwordx2 v[{vT}:{vT+1}], v{vT+2}, s[{sGs}:{sGs+3}], 0 offen offset:{8*k}")
            A("s_nop 2")
    g.label(name + "_end")
    A("s_endpgm")
    return nv, NACC, lds


def descriptor2(name, nv, nacc, ns=102):
    return f""".p2align 6
.amdhsa_kernel {name}
  .amdhsa_next_free_vgpr {nv + nacc}
  .amdhsa_next_free_sgpr {ns}
  .amdhsa_accum_offset {nv}
  .amdhsa_group_segment_fixed_size 0
  .amdhsa_kernarg_size 88
  .amdhsa_user_sgpr_count 2
  .amdhsa_user_sgpr_kernarg_segment_ptr 1
  .amdhsa_system_sgpr_workgroup_id_x 1
.end_amdhsa_kernel
"""


def build(**P):
    P.setdefault("name", KNAME)
    g = G2()
    nv1, nacc, lds1 = kernel(g, P)
    body1 = g.text()
    out = HEADER
    out += f"; @launch grid=(256,1,1) block=(256,1,1) lds={lds1}\n"
    out += '.amdgcn_target "amdgcn-amd-amdhsa--gfx950"\n.text\n'
    out += f".globl {P['name']}\n.p2align 8\n.type {P['name']},@function\n" + body1
    out += '.section .rodata,"a"\n'
    out += descriptor2(P["name"], nv1, nacc)
    return out


if __name__ == "__main__":
    P = {}
    for a in sys.argv[1:]:
        k, v = a.split("=", 1)
        try:
            v = eval(v)
        except Exception:
            pass
        P[k] = v
    sys.stdout.write(build(**P))
```

```python
import sys
from gen import Gen, vr, allreduce64, rows_allreduce, bf16r, treduce, srd, KNAME, HEADER, LOG2E, SCALE, EPS, NUNITS
from gen4 import G2, descriptor2

WS_EP = 0
WS_ML = 4096
WS_Y = 32768
WS_G = 32768 + (1 << 20)
WS_Q = 2 << 20
WS_PROF = 4 << 20


def kernel(g, P):
    RING = 16
    KVF = P.get("kvflags", "nt")
    name = P["name"]
    PROF = P.get("prof", 0)
    SLEEP = P.get("sleep", 1)
    GPP = P.get("gpp", 8)
    NRED = 256 // GPP
    RED0 = P.get("red0", 256 - NRED)
    NV1 = P.get("nv1", 32)
    AUTO = P.get("auto", 8)
    PRE = P.get("pre", 4)
    HF = P.get("hflags", "sc0 sc1")
    NT = 16
    DEPTH = P.get("depth", 0)
    vTID = 0
    vL, vJ, vG = 1, 2, 3
    vM = 4
    vNo = 8
    vMx, vLs = 12, 13
    vQ = 14
    vXT, vXT2 = 18, 19
    vA = 20
    vD = 28
    vT = 32
    vCc = 62
    vWOo = 63
    vR = 64
    vW = 128
    nv = 256
    NACC = 256
    vSC = vT + 14

    def slot(j):
        return vR + 4 * (j % RING)

    vXA = vW
    vXM = vW + 4
    vWQ = vW + 8
    vW1 = vW + 24
    vW2 = vW + 32
    vQG = vW + 40
    vWQo = vW + 48

    L_QP = 0
    L_QB = 2048
    L_HP = 3072
    L_MX = 3200
    L_RED = 3328
    L_YP = 4096
    L_OP = 12288
    L_OB = 14336
    L_Q2 = 16384
    lds = 18432

    A = g.A
    stamps = []

    def stamp():
        if PROF:
            k = len(stamps)
            A(f"s_memrealtime s[{76+2*k}:{77+2*k}]")
            stamps.append(k)

    sX, sK, sV, sWQ, sWO, sW1, sW2, sY, sGs = 28, 32, 36, 40, 44, 48, 52, 56, 60

    events = set()
    plan = []

    def kv_text(kind, i, t):
        sr = sK if kind == "k" else sV
        so = 64 + i // 4
        vo = vNo + i % 4
        dst = vr(slot(4 * i + t)) if kind == "k" else f"a[{16*i+4*t}:{16*i+4*t+3}]"
        return [f"buffer_load_dwordx4 {dst}, v{vo}, s[{sr}:{sr+3}], s{so} offen offset:{t*1024} {KVF}"]

    def K(i, cond=None):
        return [(cond, kv_text("k", i, t), ("k", i, t)) for t in range(4)]

    def V(j):
        return (None, kv_text("v", j // 4, j % 4), ("v", j))

    def WO(t):
        return ("w_free", [f"s_mov_b32 s69, {(t//4)*4096}", f"buffer_load_dwordx4 {vr(vW+4*t)}, v{vWOo}, s[{sWO}:{sWO+3}], s69 offen offset:{(t%4)*1024}"], ("wo", t))

    KFIRST = P.get("kfirst", 4)
    for i in range(KFIRST):
        plan += K(i)
    plan += [V(j) for j in range(NV1)]
    for i in range(KFIRST, 4):
        plan += K(i)
    n_pre_qk = len(plan)
    rest = [WO(t) for t in range(32)]
    for i in range(4, NT):
        plan += K(i, ("kt", i - 4))
        if i >= 6:
            plan += [rest.pop(0), rest.pop(0), rest.pop(0)]
    tail = [V(j) for j in range(NV1, 64)]
    while rest or tail:
        if rest:
            plan.append(rest.pop(0))
        for _ in range(2):
            if tail:
                plan.append(tail.pop(0))
    st = {"next": 0}

    def pump(n, upto=None):
        done = 0
        while done < n and st["next"] < len(plan):
            if upto is not None and st["next"] >= upto:
                break
            cond, text, tag = plan[st["next"]]
            if cond is not None and cond not in events:
                break
            if DEPTH and len(g.vm) >= DEPTH:
                Gen.A(g, f"s_waitcnt vmcnt({DEPTH-1})")
                g.vm = g.vm[len(g.vm) - (DEPTH - 1):]
            for s in text[:-1]:
                g.A(s)
            g.vmem(text[-1], tag)
            st["next"] += 1
            done += 1
        return done

    def issued_tags():
        return set(p[2] for p in plan[:st["next"]])

    limit = {"v": n_pre_qk}
    g.pump = lambda n: pump(n, limit["v"])

    g.label(name)
    stamp()
    A("s_load_dwordx8 s[4:11], s[0:1], 0")
    A("s_load_dwordx2 s[14:15], s[0:1], 80")
    A("s_load_dwordx2 s[12:13], s[0:1], 32")
    A("s_load_dwordx4 s[16:19], s[0:1], 48")
    A("s_load_dwordx2 s[70:71], s[0:1], 64")
    A("s_cmp_ge_u32 s2, 256")
    A(f"s_cbranch_scc1 {name}_end")
    A(f"v_lshrrev_b32 v{vT}, 6, v{vTID}")
    A(f"v_and_b32 v{vL}, 63, v{vTID}")
    A(f"v_readfirstlane_b32 s3, v{vT}")
    A(f"v_and_b32 v{vJ}, 15, v{vL}")
    A(f"v_lshrrev_b32 v{vG}, 4, v{vL}")
    A(f"v_lshlrev_b32 v{vNo}, 4, v{vL}")
    for b in range(1, 4):
        A(f"v_add_u32 v{vNo+b}, {b*16384}, v{vNo}")
    A("s_and_b32 s20, s2, 7")
    A("s_lshl_b32 s20, s20, 2")
    A("s_lshr_b32 s21, s2, 3")
    A("s_and_b32 s22, s21, 3")
    A("s_add_u32 s20, s20, s22")
    A("s_lshr_b32 s21, s2, 5")
    A("s_lshl_b32 s22, s20, 3")
    A("s_add_u32 s22, s22, s21")
    A("s_lshl_b32 s64, s3, 12")
    for a_ in range(1, 4):
        A(f"s_add_u32 s{64+a_}, s64, {a_*65536}")
    A("s_lshl_b32 s26, s22, 18")
    A(f"v_lshlrev_b32 v{vT}, 4, v{vJ}")
    A(f"v_lshl_add_u32 v{vWQo}, v{vG}, 15, v{vT}")
    A(f"v_lshl_add_u32 v{vWOo}, v{vG}, 15, v{vT}")
    A(f"v_lshlrev_b32 v{vT+3}, 3, v{vG}")
    A(f"v_lshlrev_b32 v{vT+4}, 1, v{vTID}")
    A("s_lshl_b32 s24, s21, 6")
    A("s_lshl_b32 s25, s3, 4")
    A("s_add_u32 s24, s24, s25")
    A("s_lshl_b32 s23, s24, 13")
    A("s_lshl_b32 s25, s20, 8")
    A("s_add_u32 s23, s23, s25")
    A("s_sub_u32 s25, 0x400000, s23")
    A("s_lshl_b32 s24, s24, 1")
    A("s_waitcnt lgkmcnt(0)")
    A(f"s_load_dword s72, s[14:15], {WS_EP}")
    srd(g, sX, 4, 5, None, 1024)
    g.vmem(f"buffer_load_dwordx4 {vr(vXA)}, v{vNo}, s[{sX}:{sX+3}], 0 offen", "xa")
    g.vmem(f"buffer_load_dwordx2 v[{vXM}:{vXM+1}], v{vT+3}, s[{sX}:{sX+3}], s24 offen", "xm")
    srd(g, sWQ, 10, 11, "s23", "s25")
    for t in range(4):
        A(f"s_mov_b32 s68, {t*8192}")
        g.vmem(f"buffer_load_dwordx4 {vr(vWQ+4*t)}, v{vWQo}, s[{sWQ}:{sWQ+3}], s68 offen", ("wq", t))
    srd(g, sK, 6, 7, "s26", 262144)
    srd(g, sV, 8, 9, "s26", 262144)
    pump(PRE)
    g.vmem(f"buffer_load_ushort v{vXT}, v{vT+4}, s[{sX}:{sX+3}], 0 offen", "xt")
    g.vmem(f"buffer_load_ushort v{vXT2}, v{vT+4}, s[{sX}:{sX+3}], 0 offen offset:512", "xt")
    A("s_and_b32 s23, s2, 7")
    A("s_mul_i32 s23, s23, 22")
    A("s_lshr_b32 s24, s2, 3")
    A("s_add_u32 s23, s23, s24")
    A("s_cmp_lt_u32 s24, 22")
    A("s_cselect_b32 s23, s23, 0xffff")
    A(f"s_cmp_lt_u32 s23, {NUNITS}")
    A("s_cselect_b32 s25, 1, 0")
    A("s_cselect_b32 s23, s23, 0")
    if P.get("nog"): A("s_mov_b32 s25, 0")
    A("s_lshl_b32 s26, s23, 4")
    A(f"s_sub_u32 s27, {512*2752}, s26")
    A("s_mul_i32 s27, s27, s25")
    srd(g, sW1, 16, 17, "s26", "s27")
    A("s_lshl_b32 s26, s23, 3")
    A("s_add_u32 s26, s26, s3")
    A("s_lshl_b32 s26, s26, 10")
    A("s_mul_i32 s27, s25, 5120")
    srd(g, sW2, 18, 19, "s26", "s27")
    A("s_movk_i32 s26, 2752")
    A(f"v_mul_lo_u32 v{vT+5}, v{vTID}, s26")
    A(f"s_mov_b32 s27, {256*2752}")
    g.vmem(f"buffer_load_dwordx4 {vr(vW1)}, v{vT+5}, s[{sW1}:{sW1+3}], 0 offen", "w1")
    g.vmem(f"buffer_load_dwordx4 {vr(vW1+4)}, v{vT+5}, s[{sW1}:{sW1+3}], s27 offen", "w1")
    g.vmem(f"buffer_load_dwordx4 {vr(vW2)}, v{vNo}, s[{sW2}:{sW2+3}], 0 offen", "w2")
    A("s_movk_i32 s27, 4096")
    g.vmem(f"buffer_load_dwordx4 {vr(vW2+4)}, v{vNo}, s[{sW2}:{sW2+3}], s27 offen", "w2")
    A("s_lshl_b32 s26, s20, 17")
    A("s_lshl_b32 s27, s3, 8")
    A("s_add_u32 s26, s26, s27")
    A("s_sub_u32 s27, 0x400000, s26")
    if P.get("nowo"): A("s_mov_b32 s27, 0")
    srd(g, sWO, 12, 13, "s26", "s27")
    stamp()
    pump(P.get("pre2", 4))
    A(f"v_and_b32 v{vT}, 1, v{vJ}")
    A(f"v_lshlrev_b32 v{vT}, 4, v{vT}")
    A(f"v_mov_b32 v{vT+1}, 0xffff")
    A(f"v_lshlrev_b32 v{vT+1}, v{vT}, v{vT+1}")
    A(f"v_bfe_u32 v{vT}, v{vJ}, 1, 2")
    for r in range(4):
        A(f"v_cmp_eq_u32 vcc, {r}, v{vT}")
        g.nop(2)
        A(f"v_cndmask_b32 v{vM+r}, 0, v{vT+1}, vcc")

    g.wait("xa")
    X = vT
    for k in range(4):
        A(f"v_lshlrev_b32 v{X+2*k}, 16, v{vXA+k}")
        A(f"v_and_b32 v{X+2*k+1}, 0xffff0000, v{vXA+k}")
    S, Tm = vT + 8, vT + 9
    A(f"v_add_f32 v{S}, v{X}, v{X+1}")
    for k in range(2, 8):
        A(f"v_add_f32 v{S}, v{S}, v{X+k}")
    allreduce64(g, "add", S, Tm)
    A(f"v_mul_f32 v{S}, 0x3b000000, v{S}")
    Q = vT + 10
    for k in range(8):
        A(f"v_sub_f32 v{X+k}, v{X+k}, v{S}")
    A(f"v_mul_f32 v{Q}, v{X}, v{X}")
    for k in range(1, 8):
        A(f"v_fmac_f32 v{Q}, v{X+k}, v{X+k}")
    allreduce64(g, "add", Q, Tm)
    A(f"v_mul_f32 v{Q}, 0x3b000000, v{Q}")
    bf16r(g, S)
    bf16r(g, Q)
    A(f"v_add_f32 v{Q}, {hex(EPS)}, v{Q}")
    bf16r(g, Q)
    A(f"v_sqrt_f32 v{Q}, v{Q}")
    g.nop(1)
    bf16r(g, Q)
    RS = vT + 11
    A(f"v_rcp_f32 v{RS}, v{Q}")
    g.nop(1)
    MEAN, SD = S, Q

    def normalize(src, t0, t1):
        A(f"v_sub_f32 v{src}, v{src}, v{MEAN}")
        bf16r(g, src)
        A(f"v_mul_f32 v{t0}, v{src}, v{RS}")
        A(f"v_fma_f32 v{t1}, -v{t0}, v{SD}, v{src}")
        A(f"v_fma_f32 v{t0}, v{t1}, v{RS}, v{t0}")

    vXP = vT + 14
    g.wait("xm")
    for k in range(2):
        A(f"v_lshlrev_b32 v{X}, 16, v{vXM+k}")
        A(f"v_and_b32 v{X+1}, 0xffff0000, v{vXM+k}")
        normalize(X, X + 2, X + 3)
        normalize(X + 1, X + 4, X + 5)
        A(f"v_cvt_pk_bf16_f32 v{vXP+2*k}, v{X+2}, v{X+2}")
        A(f"v_cvt_pk_bf16_f32 v{vXP+2*k+1}, v{X+4}, v{X+4}")

    def ands(src, aset):
        for r in range(4):
            A(f"v_and_b32 v{vA+4*aset+r}, v{vM+r}, v{src}")

    ands(vXP, 0)
    for t in range(4):
        if t < 3:
            ands(vXP + t + 1, (t + 1) % 2)
        else:
            g.nop(2)
        g.wait(("wq", t))
        c = "0" if t == 0 else vr(vD)
        A(f"v_mfma_f32_16x16x32_bf16 {vr(vD)}, {vr(vA+4*(t%2))}, {vr(vWQ+4*t)}, {c}")
    aQ = vT + 6
    A(f"v_and_b32 v{aQ}, 1, v{vG}")
    A(f"v_lshlrev_b32 v{aQ}, 4, v{aQ}")
    A(f"v_lshl_add_u32 v{aQ}, v{vJ}, 5, v{aQ}")
    A("s_lshl_b32 s26, s3, 9")
    A(f"v_add_u32 v{aQ}, s26, v{aQ}")
    g.nop(4)
    A(f"ds_write_b128 v{aQ}, {vr(vD)} offset:{L_QP}")
    stamp()
    A("s_waitcnt lgkmcnt(0)")
    A("s_barrier")
    A("s_mul_i32 s73, s72, 0x9E3779B1")
    A("s_add_u32 s73, s73, 0x7F4A7C15")
    A("s_mul_i32 s74, s72, 0x85EBCA77")
    A("s_add_u32 s74, s74, 0xC2B2AE3D")
    QS = vT + 14
    aR = vT + 6
    A("s_cmp_lg_u32 s3, 0")
    A(f"s_cbranch_scc1 {name}_noq")
    A(f"v_lshlrev_b32 v{aR}, 3, v{vL}")
    for w in range(4):
        A(f"ds_read_b64 v[{QS+2*w}:{QS+2*w+1}], v{aR} offset:{L_QP + w*512}")
    A("s_lshl_b32 s26, s22, 10")
    A(f"s_add_u32 s26, s26, {WS_Q}")
    srd(g, sGs, 14, 15, "s26", 1024)
    A("s_waitcnt lgkmcnt(0)")
    for w in range(1, 4):
        A(f"v_add_f32 v{QS}, v{QS}, v{QS+2*w}")
        A(f"v_add_f32 v{QS+1}, v{QS+1}, v{QS+2*w+1}")
    A(f"v_mov_b32 v{QS+2}, v{QS+1}")
    A(f"v_mov_b32 v{QS+1}, s73")
    A(f"v_mov_b32 v{QS+3}, s74")
    A(f"buffer_store_dwordx4 {vr(QS)}, v{vNo}, s[{sGs}:{sGs+3}], 0 offen {HF}")
    g.label(name + "_noq")
    stamp()
    pump(P.get("pre2b", 4))
    g.auto = AUTO
    g.wait("xt")
    for xt in (vXT, vXT2):
        A(f"v_lshlrev_b32 v{xt}, 16, v{xt}")
        normalize(xt, X + 2, X + 3)
        A(f"v_cvt_pk_bf16_f32 v{xt}, v{X+2}, v{X+2}")
        A(f"v_lshlrev_b32 v{xt}, 16, v{xt}")
    g.wait("w1")
    Hh = vT
    for k in range(4):
        A(f"v_lshlrev_b32 v{Hh+2*k}, 16, v{vW1+k}")
        A(f"v_and_b32 v{Hh+2*k+1}, 0xffff0000, v{vW1+k}")
        A(f"v_lshlrev_b32 v{Hh+10}, 16, v{vW1+4+k}")
        A(f"v_and_b32 v{Hh+11}, 0xffff0000, v{vW1+4+k}")
        A(f"v_mul_f32 v{Hh+2*k}, v{Hh+2*k}, v{vXT}")
        A(f"v_mul_f32 v{Hh+2*k+1}, v{Hh+2*k+1}, v{vXT}")
        A(f"v_fmac_f32 v{Hh+2*k}, v{Hh+10}, v{vXT2}")
        A(f"v_fmac_f32 v{Hh+2*k+1}, v{Hh+11}, v{vXT2}")
    treduce(g, [Hh + k for k in range(8)], 8)
    aH = vT + 9
    A(f"v_lshrrev_b32 v{aH}, 3, v{vL}")
    A(f"v_lshlrev_b32 v{aH}, 4, v{aH}")
    A("s_lshl_b32 s26, s3, 2")
    A(f"v_add_u32 v{aH}, s26, v{aH}")
    A(f"ds_write_b32 v{aH}, v{Hh} offset:{L_HP}")
    g.auto = 0
    A("s_lshl_b32 s26, s20, 13")
    A("s_lshl_b32 s27, s3, 11")
    A("s_add_u32 s26, s26, s27")
    A(f"s_add_u32 s26, s26, {WS_Q}")
    srd(g, sGs, 14, 15, "s26", 2048)
    g.vm_save = None
    A("s_mov_b32 s24, 0")
    pump(P.get("pre3", 12))
    g.vmem(f"buffer_load_dwordx4 {vr(vQG)}, v{vNo}, s[{sGs}:{sGs+3}], 0 offen {HF}", "qg")
    g.vmem(f"buffer_load_dwordx4 {vr(vQG+4)}, v{vNo}, s[{sGs}:{sGs+3}], 0 offen offset:1024 {HF}", "qg")
    pump(P.get("pre4", 12))
    g.wait("qg")
    saved_vm = list(g.vm)
    g.label(name + "_qchk")
    A(f"v_xor_b32 v{vT}, s73, v{vQG+1}")
    A(f"v_xor_b32 v{vT+1}, s74, v{vQG+3}")
    A(f"v_xor_b32 v{vT+2}, s73, v{vQG+5}")
    A(f"v_xor_b32 v{vT+3}, s74, v{vQG+7}")
    A(f"v_or3_b32 v{vT}, v{vT}, v{vT+1}, v{vT+2}")
    A(f"v_or_b32 v{vT}, v{vT}, v{vT+3}")
    A(f"v_cmp_ne_u32 vcc, 0, v{vT}")
    A("s_add_u32 s24, s24, 1")
    if P.get("noqwait"): A(f"s_branch {name}_qok")
    A(f"s_cbranch_vccz {name}_qok")
    A("s_cmp_ge_u32 s24, 0x40000")
    A(f"s_cbranch_scc1 {name}_qok")
    A(f"buffer_load_dwordx4 {vr(vQG)}, v{vNo}, s[{sGs}:{sGs+3}], 0 offen {HF}")
    A(f"buffer_load_dwordx4 {vr(vQG+4)}, v{vNo}, s[{sGs}:{sGs+3}], 0 offen offset:1024 {HF}")
    A("s_waitcnt vmcnt(0)")
    A(f"s_branch {name}_qchk")
    g.label(name + "_qok")
    A(f"v_add_f32 v{vT}, v{vQG}, v{vQG+4}")
    A(f"v_add_f32 v{vT+1}, v{vQG+2}, v{vQG+6}")
    A(f"v_lshlrev_b32 v{aR}, 3, v{vL}")
    A("s_lshl_b32 s26, s3, 9")
    A(f"v_add_u32 v{aR}, s26, v{aR}")
    A(f"ds_write_b64 v{aR}, v[{vT}:{vT+1}] offset:{L_Q2}")
    A("s_waitcnt lgkmcnt(0)")
    A("s_barrier")
    stamp()
    A(f"v_lshlrev_b32 v{aR}, 3, v{vL}")
    for w in range(4):
        A(f"ds_read_b64 v[{QS+2*w}:{QS+2*w+1}], v{aR} offset:{L_Q2 + w*512}")
    A("s_lshl_b32 s26, s3, 4")
    A(f"v_mov_b32 v{aH}, s26")
    A(f"ds_read_b128 {vr(vT)}, v{aH} offset:{L_HP}")
    A(f"ds_read_b128 {vr(vT+10)}, v{aH} offset:{L_HP+64}")
    A("s_waitcnt lgkmcnt(0)")
    for w in range(1, 4):
        A(f"v_add_f32 v{QS}, v{QS}, v{QS+2*w}")
        A(f"v_add_f32 v{QS+1}, v{QS+1}, v{QS+2*w+1}")
    A(f"v_cvt_pk_bf16_f32 v{QS}, v{QS}, v{QS+1}")
    A(f"v_lshlrev_b32 v{aR}, 2, v{vL}")
    A("s_lshl_b32 s26, s3, 8")
    A(f"v_add_u32 v{aR}, s26, v{aR}")
    A(f"ds_write_b32 v{aR}, v{QS} offset:{L_QB}")
    Ha, Hb = vT, vT + 10
    for k in range(1, 4):
        A(f"v_add_f32 v{Ha}, v{Ha}, v{vT+k}")
        A(f"v_add_f32 v{Hb}, v{Hb}, v{vT+10+k}")
    A("s_waitcnt lgkmcnt(0)")
    A(f"v_lshlrev_b32 v{aR}, 4, v{vJ}")
    A(f"v_add_u32 v{aR}, s26, v{aR}")
    A(f"ds_read_b128 {vr(vQ)}, v{aR} offset:{L_QB}")
    bf16r(g, Ha)
    bf16r(g, Hb)

    def silu(v, t):
        A(f"v_mul_f32 v{t}, {hex(LOG2E ^ 0x80000000)}, v{v}")
        A(f"v_exp_f32 v{t}, v{t}")
        g.nop(1)
        A(f"v_add_f32 v{t}, 1.0, v{t}")
        A(f"v_rcp_f32 v{t+1}, v{t}")
        g.nop(1)
        A(f"v_mul_f32 v{t+2}, v{v}, v{t+1}")
        A(f"v_fma_f32 v{t+3}, -v{t+2}, v{t}, v{v}")
        A(f"v_fma_f32 v{t+2}, v{t+3}, v{t+1}, v{t+2}")
        A(f"v_cmp_lt_f32 vcc, 0x7f000000, v{t}")
        A(f"v_mul_f32 v{t+3}, v{v}, v{t+1}")
        g.nop(1)
        A(f"v_cndmask_b32 v{v}, v{t+2}, v{t+3}, vcc")
        bf16r(g, v)

    a = [vT + 1, vT + 2, vT + 3, vT + 4]
    b0, b1 = vT + 5, vT + 6
    PQ = P.get("pq", 8)

    def qk(i):
        while ("k", i, 3) not in issued_tags():
            assert pump(1) == 1
        g.wait(("k", i, 3))
        for c in range(4):
            for t in range(4):
                if c == 0:
                    A(f"v_dot2_f32_bf16 v{a[t]}, v{slot(4*i+t)}, v{vQ}, 0")
                else:
                    A(f"v_dot2c_f32_bf16 v{a[t]}, v{slot(4*i+t)+c}, v{vQ+c}")
        events.add(("kt", i))
        pump(PQ)
        A(f"v_add_f32_dpp v{b0}, v{a[0]}, v{a[0]} row_ror:8 row_mask:0xf bank_mask:0x3")
        A(f"v_add_f32_dpp v{b1}, v{a[1]}, v{a[1]} row_ror:8 row_mask:0xf bank_mask:0x3")
        A(f"v_add_f32_dpp v{b0}, v{a[2]}, v{a[2]} row_ror:8 row_mask:0xf bank_mask:0xc")
        A(f"v_add_f32_dpp v{b1}, v{a[3]}, v{a[3]} row_ror:8 row_mask:0xf bank_mask:0xc")
        g.nop(2)
        c_ = vSC + i
        A(f"v_add_f32_dpp v{c_}, v{b0}, v{b0} row_half_mirror row_mask:0xf bank_mask:0x5")
        A(f"v_add_f32_dpp v{c_}, v{b1}, v{b1} row_half_mirror row_mask:0xf bank_mask:0xa")
        g.nop(2)
        A(f"v_add_f32_dpp v{c_}, v{c_}, v{c_} quad_perm:[1,0,3,2] row_mask:0xf bank_mask:0xf")
        g.nop(2)
        A(f"v_add_f32_dpp v{c_}, v{c_}, v{c_} quad_perm:[2,3,0,1] row_mask:0xf bank_mask:0xf")
        bf16r(g, c_)
        A(f"v_mul_f32 v{c_}, {hex(SCALE)}, v{c_}")
        bf16r(g, c_)

    limit["v"] = None
    A("s_waitcnt lgkmcnt(0)")
    stamp()
    qk(0)
    qk(1)
    silu(Ha, vT + 6)
    silu(Hb, vT + 6)
    g.wait("w2")
    Yg = vW + 48
    for k in range(4):
        A(f"v_lshlrev_b32 v{Yg+2*k}, 16, v{vW2+k}")
        A(f"v_and_b32 v{Yg+2*k+1}, 0xffff0000, v{vW2+k}")
        A(f"v_lshlrev_b32 v{vT+6}, 16, v{vW2+4+k}")
        A(f"v_and_b32 v{vT+7}, 0xffff0000, v{vW2+4+k}")
        A(f"v_mul_f32 v{Yg+2*k}, v{Yg+2*k}, v{Ha}")
        A(f"v_mul_f32 v{Yg+2*k+1}, v{Yg+2*k+1}, v{Ha}")
        A(f"v_fmac_f32 v{Yg+2*k}, v{vT+6}, v{Hb}")
        A(f"v_fmac_f32 v{Yg+2*k+1}, v{vT+7}, v{Hb}")
    aY = vT + 7
    A(f"v_lshlrev_b32 v{aY}, 5, v{vL}")
    A("s_lshl_b32 s26, s3, 11")
    A(f"v_add_u32 v{aY}, s26, v{aY}")
    A(f"ds_write_b128 v{aY}, {vr(Yg)} offset:{L_YP}")
    A(f"ds_write_b128 v{aY}, {vr(Yg+4)} offset:{L_YP+16}")
    A("s_waitcnt lgkmcnt(0)")
    events.add("w_free")
    A("s_barrier")
    GS = vT + 6
    A(f"v_lshlrev_b32 v{vT}, 3, v{vTID}")
    for w in range(4):
        A(f"ds_read_b64 v[{GS+2*w}:{GS+2*w+1}], v{vT} offset:{L_YP + w*2048}")
    A("s_waitcnt lgkmcnt(0)")
    for w in range(1, 4):
        A(f"v_add_f32 v{GS}, v{GS}, v{GS+2*w}")
        A(f"v_add_f32 v{GS+1}, v{GS+1}, v{GS+2*w+1}")
    A(f"v_mov_b32 v{GS+2}, v{GS+1}")
    A(f"v_mov_b32 v{GS+1}, s73")
    A(f"v_mov_b32 v{GS+3}, s74")
    A(f"s_lshl_b32 s26, s23, 12")
    A(f"s_add_u32 s26, s26, {WS_G}")
    A("s_lshl_b32 s27, s25, 12")
    srd(g, sGs, 14, 15, "s26", "s27")
    A(f"v_lshlrev_b32 v{GS+4}, 4, v{vTID}")
    g.vmem(f"buffer_store_dwordx4 {vr(GS)}, v{GS+4}, s[{sGs}:{sGs+3}], 0 offen {HF}", "gst")
    pump(4)
    for i in range(2, NT):
        qk(i)
    stamp()
    A(f"v_max3_f32 v{vMx}, v{vSC}, v{vSC+1}, v{vSC+2}")
    for k in range(3, NT - 1, 2):
        A(f"v_max3_f32 v{vMx}, v{vMx}, v{vSC+k}, v{vSC+k+1}")
    A(f"v_max_f32 v{vMx}, v{vMx}, v{vSC+NT-1}")
    for ctl in ("row_ror:4", "row_ror:8"):
        g.nop(2)
        A(f"v_max_f32_dpp v{vMx}, v{vMx}, v{vMx} {ctl} row_mask:0xf bank_mask:0xf")
    rows_allreduce(g, "max", vMx, vT)
    A("s_lshl_b32 s26, s3, 2")
    A(f"v_mov_b32 v{vT}, s26")
    A(f"ds_write_b32 v{vT}, v{vMx} offset:{L_MX}")
    pump(4)
    A("s_waitcnt lgkmcnt(0)")
    A("s_barrier")
    A(f"v_mov_b32 v{vT}, 0")
    A(f"ds_read_b128 {vr(vT+4)}, v{vT} offset:{L_MX}")
    A("s_waitcnt lgkmcnt(0)")
    A(f"v_max3_f32 v{vMx}, v{vT+4}, v{vT+5}, v{vT+6}")
    A(f"v_max_f32 v{vMx}, v{vMx}, v{vT+7}")
    A(f"s_mov_b32 s26, {hex(LOG2E)}")
    A(f"v_mul_f32 v{vT}, s26, v{vMx}")
    for k in range(NT):
        A(f"v_fma_f32 v{vSC+k}, v{vSC+k}, s26, -v{vT}")
    for k in range(NT):
        A(f"v_exp_f32 v{vSC+k}, v{vSC+k}")
    g.nop(1)
    A(f"v_add_f32 v{vLs}, v{vSC}, v{vSC+1}")
    for k in range(2, NT):
        A(f"v_add_f32 v{vLs}, v{vLs}, v{vSC+k}")
    for k in range(NT):
        A(f"v_cvt_pk_bf16_f32 v{vSC+k}, v{vSC+k}, v{vSC+k}")
    for ctl in ("row_ror:4", "row_ror:8"):
        g.nop(2)
        A(f"v_add_f32_dpp v{vLs}, v{vLs}, v{vLs} {ctl} row_mask:0xf bank_mask:0xf")
    rows_allreduce(g, "add", vLs, vT)
    A("s_lshl_b32 s26, s22, 2")
    A("s_add_u32 s26, s26, s3")
    A("s_lshl_b32 s26, s26, 4")
    A(f"s_add_u32 s26, s26, {WS_ML}")
    srd(g, sGs, 14, 15, "s26", 16)
    A(f"v_mov_b32 v{vT}, v{vMx}")
    A(f"v_mov_b32 v{vT+1}, s73")
    A(f"v_mov_b32 v{vT+2}, v{vLs}")
    A(f"v_mov_b32 v{vT+3}, s74")
    A(f"v_lshlrev_b32 v{vT+4}, 4, v{vL}")
    g.vmem(f"buffer_store_dwordx4 {vr(vT)}, v{vT+4}, s[{sGs}:{sGs+3}], 0 offen {HF}", "mlst")
    stamp()
    def pand(tt):
        for r in range(4):
            A(f"v_and_b32_dpp v{vA+4*(tt%2)+r}, v{vSC+tt//4}, v{vM+r} row_newbcast:{4*(tt%4)} row_mask:0xf bank_mask:0xf")
    NV = 4 * NT
    RML = vR
    NGL = (NUNITS + (256 // GPP) - 1) // (256 // GPP)
    RG = [vR + 4 + 4 * k for k in range(NGL)]
    assert 4 + 4 * NGL <= 40
    vOy, vOm, vDf, vXo = vR + 40, vR + 41, vR + 42, vR + 43
    vGm = vR + 44
    PPL = 256 // GPP
    lg = {1: 0, 2: 1, 4: 2, 8: 3}[GPP]
    GLT = P.get("glt", 32)
    CLT = P.get("clt", 56)

    def ml_check_and_c():
        g.wait("mlg")
        A("s_mov_b32 s24, 0")
        g.label(name + "_mlchk")
        A(f"v_xor_b32 v{vT}, s73, v{RML+1}")
        A(f"v_xor_b32 v{vT+1}, s74, v{RML+3}")
        A(f"v_or_b32 v{vT}, v{vT}, v{vT+1}")
        A(f"v_cmp_ne_u32 vcc, 0, v{vT}")
        A("s_add_u32 s24, s24, 1")
        if P.get("nomlwait"): A(f"s_branch {name}_mlok")
        A(f"s_cbranch_vccz {name}_mlok")
        A("s_cmp_ge_u32 s24, 0x40000")
        A(f"s_cbranch_scc1 {name}_mlok")
        A(f"buffer_load_dwordx4 {vr(RML)}, v{vOm}, s[{sK}:{sK+3}], 0 offen {HF}")
        A("s_waitcnt vmcnt(0)")
        A(f"s_branch {name}_mlchk")
        g.label(name + "_mlok")
        Mh, E_, L_, C_ = vT, vT + 1, vT + 2, vCc
        A(f"v_mov_b32 v{Mh}, v{RML}")
        for ctl in ("quad_perm:[1,0,3,2]", "quad_perm:[2,3,0,1]", "row_half_mirror", "row_mirror"):
            g.nop(2)
            A(f"v_max_f32_dpp v{Mh}, v{Mh}, v{Mh} {ctl} row_mask:0xf bank_mask:0xf")
        A(f"v_mov_b32 v{vT+4}, v{Mh}")
        g.nop(2)
        A(f"v_permlane16_swap_b32 v{Mh}, v{vT+4}")
        g.nop(1)
        A(f"v_max_f32 v{Mh}, v{Mh}, v{vT+4}")
        A(f"v_sub_f32 v{E_}, v{RML}, v{Mh}")
        A(f"v_sub_f32 v{C_}, v{vMx}, v{Mh}")
        A(f"v_mul_f32 v{E_}, {hex(LOG2E)}, v{E_}")
        A(f"v_mul_f32 v{C_}, {hex(LOG2E)}, v{C_}")
        A(f"v_exp_f32 v{E_}, v{E_}")
        A(f"v_exp_f32 v{C_}, v{C_}")
        g.nop(1)
        A(f"v_mul_f32 v{L_}, v{E_}, v{RML+2}")
        for ctl in ("quad_perm:[1,0,3,2]", "quad_perm:[2,3,0,1]", "row_half_mirror", "row_mirror"):
            g.nop(2)
            A(f"v_add_f32_dpp v{L_}, v{L_}, v{L_} {ctl} row_mask:0xf bank_mask:0xf")
        A(f"v_mov_b32 v{vT+4}, v{L_}")
        g.nop(2)
        A(f"v_permlane16_swap_b32 v{L_}, v{vT+4}")
        g.nop(1)
        A(f"v_add_f32 v{L_}, v{L_}, v{vT+4}")
        A(f"v_rcp_f32 v{vT+4}, v{L_}")
        g.nop(1)
        A(f"v_mul_f32 v{vT+5}, v{C_}, v{vT+4}")
        A(f"v_fma_f32 v{vT+6}, -v{vT+5}, v{L_}, v{C_}")
        A(f"v_fma_f32 v{C_}, v{vT+6}, v{vT+4}, v{vT+5}")

    pand(0)
    for t in range(NV):
        if t + 1 < NV:
            pand(t + 1)
        else:
            g.nop(2)
        while ("v", t) not in issued_tags():
            assert pump(1) == 1
        g.wait(("v", t))
        c = "0" if t == 0 else vr(vD)
        A(f"v_mfma_f32_16x16x32_bf16 {vr(vD)}, {vr(vA+4*(t%2))}, a[{4*t}:{4*t+3}], {c}")
        pump(1)
        if t == GLT:
            A("s_lshl_b32 s26, s20, 9")
            A(f"s_add_u32 s26, s26, {WS_ML}")
            srd(g, sK, 14, 15, "s26", 512)
            A(f"v_and_b32 v{vOm}, 31, v{vL}")
            A(f"v_lshlrev_b32 v{vOm}, 4, v{vOm}")
            g.vmem(f"buffer_load_dwordx4 {vr(RML)}, v{vOm}, s[{sK}:{sK+3}], 0 offen {HF}", "mlg")
            A(f"v_lshrrev_b32 v{vT}, {lg}, v{vTID}")
            A(f"v_and_b32 v{vT+1}, {GPP-1}, v{vTID}")
            A(f"v_lshlrev_b32 v{vT+1}, 4, v{vT+1}")
            A(f"v_lshl_add_u32 v{vOy}, v{vT}, 12, v{vT+1}")
            klast = NGL - 1
            A(f"v_cmp_gt_u32 vcc, {NUNITS - klast*PPL}, v{vT}")
            A(f"v_mov_b32 v{vGm}, 0")
            g.nop(1)
            A(f"v_cndmask_b32 v{vGm}, v{vGm}, -1, vcc")
            A(f"s_sub_u32 s24, s2, {RED0}")
            A(f"s_cmp_lt_u32 s24, {NRED}")
            A(f"s_cselect_b32 s21, 1, 0")
            A(f"s_cselect_b32 s24, s24, 0")
            A(f"s_lshl_b32 s26, s24, {4+lg}")
            A(f"s_add_u32 s27, s26, {WS_G}")
            A(f"s_sub_u32 s24, {NUNITS*4096}, s26")
            A(f"s_mul_i32 s24, s24, s21")
            srd(g, sW1, 14, 15, "s27", "s24")
            for k in range(NGL):
                A(f"s_mov_b32 s26, {k*PPL*4096}")
                g.vmem(f"buffer_load_dwordx4 {vr(RG[k])}, v{vOy}, s[{sW1}:{sW1+3}], s26 offen {HF}", "gg")
        if t == CLT:
            ml_check_and_c()
    assert st["next"] == len(plan), (st["next"], len(plan))
    stamp()
    aQ = vT + 8
    A(f"v_and_b32 v{aQ}, 1, v{vG}")
    A(f"v_lshlrev_b32 v{aQ}, 4, v{aQ}")
    A(f"v_lshl_add_u32 v{aQ}, v{vJ}, 5, v{aQ}")
    A("s_lshl_b32 s26, s3, 9")
    A(f"v_add_u32 v{aQ}, s26, v{aQ}")
    A(f"v_lshlrev_b32 v{vT+9}, 3, v{vL}")
    A(f"v_add_u32 v{vT+1}, s26, v{vT+9}")
    A(f"v_lshlrev_b32 v{vT+2}, 7, v{vG}")
    A(f"v_add_u32 v{vT+2}, s26, v{vT+2}")
    g.nop(1)
    A(f"ds_write_b128 v{aQ}, {vr(vD)} offset:{L_OP}")
    GR = vT + 4
    A(f"v_mov_b32 v{GR+1}, s73")
    A(f"v_mov_b32 v{GR+3}, s74")
    vSA = vT + 10
    A(f"v_and_b32 v{vSA}, 1, v{vG}")
    A(f"v_lshlrev_b32 v{vSA}, 5, v{vSA}")
    A(f"v_lshl_add_u32 v{vSA}, v{vJ}, 6, v{vSA}")
    A(f"v_lshrrev_b32 v{vT+11}, 1, v{vG}")
    A(f"v_lshl_add_u32 v{vSA}, v{vT+11}, 4, v{vSA}")
    A("s_lshl_b32 s26, s22, 12")
    A("s_lshl_b32 s27, s3, 10")
    A("s_add_u32 s26, s26, s27")
    A(f"s_add_u32 s26, s26, {WS_Y}")
    srd(g, sY, 14, 15, "s26", 1024)
    A(f"v_cmp_lt_u32 s[26:27], v{vL}, 32")
    A("s_waitcnt lgkmcnt(0)")
    A("s_barrier")
    O4 = vR + 48
    for w in range(4):
        A(f"ds_read_b64 v[{O4+2*w}:{O4+2*w+1}], v{vT+9} offset:{L_OP + w*512}")
    A("s_waitcnt lgkmcnt(0)")
    A(f"v_add_f32 v{O4}, v{O4}, v{O4+2}")
    A(f"v_add_f32 v{O4+1}, v{O4+1}, v{O4+3}")
    A(f"v_add_f32 v{O4+4}, v{O4+4}, v{O4+6}")
    A(f"v_add_f32 v{O4+5}, v{O4+5}, v{O4+7}")
    A(f"v_add_f32 v{O4}, v{O4}, v{O4+4}")
    A(f"v_add_f32 v{O4+1}, v{O4+1}, v{O4+5}")
    A(f"v_mul_f32 v{O4}, v{O4}, v{vCc}")
    A(f"v_mul_f32 v{O4+1}, v{O4+1}, v{vCc}")
    A(f"v_cvt_pk_bf16_f32 v{O4}, v{O4}, v{O4}")
    A(f"v_cvt_pk_bf16_f32 v{O4+1}, v{O4+1}, v{O4+1}")
    A(f"ds_write_b64 v{vT+1}, v[{O4}:{O4+1}] offset:{L_OB}")
    A("s_waitcnt lgkmcnt(0)")
    OD = vR
    OD = None
    return_regs = None
    ODr = [vSC + k for k in range(16)] + [vR + 48 + k for k in range(16)]
    for k in range(8):
        A(f"ds_read_b128 {vr(ODr[4*k])}, v{vT+2} offset:{L_OB+16*k}")

    def wand(t):
        for r in range(4):
            A(f"v_and_b32 v{vA+4*(t%2)+r}, v{vM+r}, v{ODr[t]}")
    A("s_waitcnt lgkmcnt(7)")
    wand(0)
    for t in range(32):
        if t + 1 < 32:
            if (t + 1) % 4 == 0:
                A(f"s_waitcnt lgkmcnt({7 - (t+1)//4})")
            wand(t + 1)
        else:
            g.nop(2)
        g.wait(("wo", t))
        c = "0" if t == 0 else vr(vD)
        A(f"v_mfma_f32_16x16x32_bf16 {vr(vD)}, {vr(vA+4*(t%2))}, {vr(vW+4*t)}, {c}")
    stamp()
    g.nop(8)
    A(f"v_cndmask_b32 v{GR}, v{vD+2}, v{vD}, s[26:27]")
    A(f"v_cndmask_b32 v{GR+2}, v{vD+3}, v{vD+1}, s[26:27]")
    g.vmem(f"buffer_store_dwordx4 {vr(GR)}, v{vSA}, s[{sY}:{sY+3}], 0 offen {HF}", "yst")
    stamp()
    if P.get("nofinal"):
        A(f"s_branch {name}_fin")
    A(f"s_sub_u32 s21, s2, {RED0}")
    A(f"s_cmp_ge_u32 s21, {NRED}")
    A(f"s_cbranch_scc1 {name}_fin")
    RY = [vW + 4 * k for k in range(GPP)]
    A(f"s_lshl_b32 s26, s21, {4+lg}")
    A(f"s_add_u32 s27, s26, {WS_Y}")
    A(f"s_sub_u32 s24, {256*4096}, s26")
    srd(g, sY, 14, 15, "s27", "s24")

    def ypoll():
        for k in range(GPP):
            A(f"s_mov_b32 s26, {k*PPL*4096}")
            A(f"buffer_load_dwordx4 {vr(RY[k])}, v{vOy}, s[{sY}:{sY+3}], s26 offen {HF}")
    A(f"s_lshl_b32 s27, s21, {2+lg}")
    srd(g, sV, 4, 5, "s27", 4 * GPP)
    srd(g, sWQ, 70, 71, "s27", 4 * GPP)
    A(f"v_and_b32 v{vT+2}, {2*GPP-1}, v{vL}")
    A(f"v_lshlrev_b32 v{vT+2}, 1, v{vT+2}")
    A(f"buffer_load_ushort v{vXo}, v{vT+2}, s[{sV}:{sV+3}], 0 offen")
    A("s_mov_b32 s24, 0")
    g.label(name + "_gchk")
    for k in range(NGL):
        A(f"v_xor_b32 v{vT}, s73, v{RG[k]+1}")
        A(f"v_xor_b32 v{vT+1}, s74, v{RG[k]+3}")
        if k == 0:
            A(f"v_or_b32 v{vDf}, v{vT}, v{vT+1}")
        elif k < NGL - 1:
            A(f"v_or3_b32 v{vDf}, v{vDf}, v{vT}, v{vT+1}")
        else:
            A(f"v_or_b32 v{vT}, v{vT}, v{vT+1}")
            A(f"v_and_or_b32 v{vDf}, v{vT}, v{vGm}, v{vDf}")
    A(f"v_cmp_ne_u32 vcc, 0, v{vDf}")
    A("s_add_u32 s24, s24, 1")
    A(f"s_cbranch_vccz {name}_gok")
    A("s_cmp_ge_u32 s24, 0x40000")
    A(f"s_cbranch_scc1 {name}_gok")
    for k in range(NGL):
        A(f"s_mov_b32 s26, {k*PPL*4096}")
        A(f"buffer_load_dwordx4 {vr(RG[k])}, v{vOy}, s[{sW1}:{sW1+3}], s26 offen {HF}")
    A("s_waitcnt vmcnt(0)")
    A(f"s_branch {name}_gchk")
    g.label(name + "_gok")
    a0, a1, a2, a3 = vT + 8, vT + 9, vT + 10, vT + 11
    A(f"v_mov_b32 v{a2}, v{RG[0]}")
    A(f"v_mov_b32 v{a3}, v{RG[0]+2}")
    for k in range(1, NGL):
        A(f"v_add_f32 v{a2}, v{a2}, v{RG[k]}")
        A(f"v_add_f32 v{a3}, v{a3}, v{RG[k]+2}")
    A("s_mov_b32 s24, 0")
    g.label(name + "_poll")
    ypoll()
    A("s_waitcnt vmcnt(0)")
    for k in range(GPP):
        A(f"v_xor_b32 v{vT}, s73, v{RY[k]+1}")
        A(f"v_xor_b32 v{vT+1}, s74, v{RY[k]+3}")
        if k == 0:
            A(f"v_or_b32 v{vDf}, v{vT}, v{vT+1}")
        else:
            A(f"v_or3_b32 v{vDf}, v{vDf}, v{vT}, v{vT+1}")
    A(f"v_cmp_ne_u32 vcc, 0, v{vDf}")
    A("s_add_u32 s24, s24, 1")
    A("s_and_b64 exec, exec, vcc")
    A(f"s_cbranch_execz {name}_got")
    A(f"s_cmp_ge_u32 s24, 0x40000")
    A(f"s_cbranch_scc1 {name}_got")
    if SLEEP:
        A(f"s_sleep {SLEEP}")
    A(f"s_branch {name}_poll")
    g.label(name + "_got")
    A("s_mov_b64 exec, -1")
    A(f"v_add_f32 v{a0}, v{RY[0]}, v{RY[1]}") if GPP > 1 else A(f"v_mov_b32 v{a0}, v{RY[0]}")
    A(f"v_add_f32 v{a1}, v{RY[0]+2}, v{RY[1]+2}") if GPP > 1 else A(f"v_mov_b32 v{a1}, v{RY[0]+2}")
    for k in range(2, GPP):
        A(f"v_add_f32 v{a0}, v{a0}, v{RY[k]}")
        A(f"v_add_f32 v{a1}, v{a1}, v{RY[k]+2}")
    g.nop(2)
    A(f"v_permlane32_swap_b32 v{a0}, v{a2}")
    A(f"v_permlane32_swap_b32 v{a1}, v{a3}")
    g.nop(1)
    A(f"v_add_f32 v{a0}, v{a0}, v{a2}")
    A(f"v_add_f32 v{a1}, v{a1}, v{a3}")
    g.nop(2)
    A(f"v_permlane16_swap_b32 v{a0}, v{a1}")
    g.nop(1)
    A(f"v_add_f32 v{a0}, v{a0}, v{a1}")
    rot = [r for r in (8, 4, 2, 1) if r >= GPP]
    for r in rot:
        g.nop(2)
        A(f"v_add_f32_dpp v{a0}, v{a0}, v{a0} row_ror:{r} row_mask:0xf bank_mask:0xf")
    A(f"v_and_b32 v{vT+12}, {GPP-1}, v{vL}")
    A(f"v_lshl_add_u32 v{vT+12}, v{vG}, {lg}, v{vT+12}")
    A(f"v_lshlrev_b32 v{vT+12}, 4, v{vT+12}")
    A("s_lshl_b32 s26, s3, 2")
    A(f"v_add_u32 v{vT+12}, s26, v{vT+12}")
    A(f"ds_write_b32 v{vT+12}, v{a0} offset:{L_RED}")
    A("s_waitcnt lgkmcnt(0)")
    A("s_barrier")
    A("s_cmp_lg_u32 s3, 0")
    A(f"s_cbranch_scc1 {name}_fin")
    A(f"v_and_b32 v{vT}, 1, v{vL}")
    A(f"v_bfe_u32 v{vT+1}, v{vL}, 1, {max(lg,1)}")
    if GPP == 1:
        A(f"v_mov_b32 v{vT+1}, 0")
    A(f"v_lshl_add_u32 v{vT}, v{vT}, {lg}, v{vT+1}")
    A(f"v_lshlrev_b32 v{vT}, 4, v{vT}")
    A(f"ds_read_b128 {vr(vT+4)}, v{vT} offset:{L_RED}")
    A(f"ds_read_b128 {vr(vT+12)}, v{vT} offset:{L_RED+2*GPP*16}")
    A("s_waitcnt lgkmcnt(0)")
    for k in range(1, 4):
        A(f"v_add_f32 v{vT+4}, v{vT+4}, v{vT+4+k}")
        A(f"v_add_f32 v{vT+12}, v{vT+12}, v{vT+12+k}")
    sv, gv = vT + 4, vT + 12
    bf16r(g, sv)
    bf16r(g, gv)
    silu(gv, vT + 20)
    A(f"v_mul_f32 v{sv}, v{sv}, v{gv}")
    bf16r(g, sv)
    A(f"v_lshlrev_b32 v{vXo}, 16, v{vXo}")
    A(f"v_add_f32 v{sv}, v{sv}, v{vXo}")
    A(f"v_cvt_pk_bf16_f32 v{sv}, v{sv}, v{sv}")
    A(f"v_and_b32 v{vT+2}, {2*GPP-1}, v{vL}")
    A(f"v_lshlrev_b32 v{vT+2}, 1, v{vT+2}")
    A(f"s_mov_b32 exec_lo, {(1 << (2*GPP)) - 1}")
    A("s_mov_b32 exec_hi, 0")
    A(f"buffer_store_short v{sv}, v{vT+2}, s[{sWQ}:{sWQ+3}], 0 offen {P.get('outflags', 'sc0 sc1')}")
    A(f"s_cmp_lg_u32 s21, 0")
    A(f"s_cbranch_scc1 {name}_fin")
    A(f"s_mov_b32 s27, {WS_EP}")
    srd(g, sGs, 14, 15, "s27", 4)
    A("s_mov_b32 exec_lo, 1")
    A(f"v_mov_b32 v{vT}, s73")
    A(f"v_mov_b32 v{vT+1}, 0")
    A(f"buffer_store_dword v{vT}, v{vT+1}, s[{sGs}:{sGs+3}], 0 offen sc0 sc1")
    g.label(name + "_fin")
    if PROF:
        A("s_cmp_lg_u32 s3, 0")
        A(f"s_cbranch_scc1 {name}_end")
        A("s_waitcnt vmcnt(0)")
        stamp()
        A("s_waitcnt lgkmcnt(0)")
        A("s_lshl_b32 s26, s2, 8")
        A(f"s_add_u32 s26, s26, {WS_PROF}")
        srd(g, sGs, 14, 15, "s26", 256)
        A("s_mov_b32 exec_lo, 1")
        A("s_mov_b32 exec_hi, 0")
        A(f"v_mov_b32 v{vT+2}, 0")
        for k in stamps:
            A(f"v_mov_b32 v{vT}, s{76+2*k}")
            A(f"v_mov_b32 v{vT+1}, s{77+2*k}")
            A(f"buffer_store_dwordx2 v[{vT}:{vT+1}], v{vT+2}, s[{sGs}:{sGs+3}], 0 offen offset:{8*k}")
            A("s_nop 2")
    g.label(name + "_end")
    A("s_endpgm")
    assert len(stamps) <= 12
    return nv, NACC, lds


def build(**P):
    P.setdefault("name", KNAME)
    g = G2()
    nv1, nacc, lds1 = kernel(g, P)
    body1 = g.text()
    out = HEADER
    out += f"; @launch grid=(256,1,1) block=(256,1,1) lds={lds1}\n"
    out += '.amdgcn_target "amdgcn-amd-amdhsa--gfx950"\n.text\n'
    out += f".globl {P['name']}\n.p2align 8\n.type {P['name']},@function\n" + body1
    out += '.section .rodata,"a"\n'
    out += descriptor2(P["name"], nv1, nacc)
    return out


if __name__ == "__main__":
    P = {}
    for a in sys.argv[1:]:
        k, v = a.split("=", 1)
        try:
            v = eval(v)
        except Exception:
            pass
        P[k] = v
    sys.stdout.write(build(**P))
```

```python
import sys
from gen import Gen, vr, allreduce64, rows_allreduce, bf16r, srd, KNAME, HEADER, LOG2E, SCALE, EPS, NUNITS
from gen4 import G2, descriptor2

WS_EP = 0
WS_ML = 4096
WS_Y = 32768
WS_G = 32768 + (1 << 20)
WS_Q = 2 << 20
WS_H = (2 << 20) + (256 << 10)
WS_PROF = 4 << 20
W1_BYTES = 512 * 2752


def kernel(g, P):
    RING = 16
    KVF = P.get("kvflags", "nt")
    name = P["name"]
    PROF = P.get("prof", 0)
    SLEEP = P.get("sleep", 1)
    GPP = P.get("gpp", 8)
    NRED = 256 // GPP
    RED0 = P.get("red0", 256 - NRED)
    NV1 = P.get("nv1", 24)
    AUTO = P.get("auto", 40)
    PRE = P.get("pre", 2)
    HF = P.get("hflags", "sc0 sc1")
    NT = 16
    DEPTH = P.get("depth", 12)
    vTID = 0
    vL, vJ, vG = 1, 2, 3
    vM = 4
    vNo = 8
    vMx, vLs = 12, 13
    vQ = 14
    vD2 = 16
    vA = 20
    vD = 28
    vT = 32
    vCc = 62
    vWOo = 63
    vR = 64
    vW = 128
    nv = 256
    NACC = 256
    vSC = vT + 14

    def slot(j):
        return vR + 4 * (j % RING)

    vXA = vW
    vXM = vW + 4
    vWQ = vW + 8
    vW1 = vW + 24
    vW2 = vW + 40
    vQG = vW + 48
    vHG = vW + 56
    vWQo = vW + 60
    vW1o = vW + 61
    vHo = vW + 62
    Yg = vW + 64

    L_QP = 0
    L_HP = 2048
    L_QB = 4096
    L_MX = 5120
    L_RED = 5248
    L_Q2 = 6144
    L_YP = 8192
    L_OP = 16384
    L_OB = 18432
    lds = 20480

    A = g.A
    stamps = []

    def stamp():
        if PROF:
            k = len(stamps)
            A(f"s_memrealtime s[{76+2*k}:{77+2*k}]")
            stamps.append(k)

    sX, sK, sV, sWQ, sWO, sW1, sW2, sY, sGs = 28, 32, 36, 40, 44, 48, 52, 56, 60

    events = set()
    plan = []

    def kv_text(kind, i, t):
        sr = sK if kind == "k" else sV
        so = 64 + i // 4
        vo = vNo + i % 4
        dst = vr(slot(4 * i + t)) if kind == "k" else f"a[{16*i+4*t}:{16*i+4*t+3}]"
        return [f"buffer_load_dwordx4 {dst}, v{vo}, s[{sr}:{sr+3}], s{so} offen offset:{t*1024} {KVF}"]

    def K(i, cond=None):
        return [(cond, kv_text("k", i, t), ("k", i, t)) for t in range(4)]

    def V(j):
        return (None, kv_text("v", j // 4, j % 4), ("v", j))

    def WO(t):
        return ("w_free", [f"s_mov_b32 s69, {(t//4)*4096}", f"buffer_load_dwordx4 {vr(vW+4*t)}, v{vWOo}, s[{sWO}:{sWO+3}], s69 offen offset:{(t%4)*1024}"], ("wo", t))

    NVA = P.get("nva", 8)
    plan += K(0) + K(1)
    plan += [V(j) for j in range(NVA)]
    plan += K(2) + K(3)
    plan += [V(j) for j in range(NVA, NV1)]
    n_pre_qk = len(plan)
    rest = [WO(t) for t in range(32)]
    WO0 = P.get("wo0", 8)
    per = -(-32 // (NT - WO0))
    for i in range(4, NT):
        plan += K(i, ("kt", i - 4))
        if i >= WO0:
            for _ in range(per):
                if rest:
                    plan.append(rest.pop(0))
    plan += rest
    plan += [V(j) for j in range(NV1, 64)]
    st = {"next": 0}

    def pump(n, upto=None):
        done = 0
        while done < n and st["next"] < len(plan):
            if upto is not None and st["next"] >= upto:
                break
            cond, text, tag = plan[st["next"]]
            if cond is not None and cond not in events:
                break
            if DEPTH and len(g.vm) >= DEPTH:
                Gen.A(g, f"s_waitcnt vmcnt({DEPTH-1})")
                g.vm = g.vm[len(g.vm) - (DEPTH - 1):]
            for s in text[:-1]:
                g.A(s)
            g.vmem(text[-1], tag)
            st["next"] += 1
            done += 1
        return done

    def issued_tags():
        return set(p[2] for p in plan[:st["next"]])

    limit = {"v": n_pre_qk}
    g.pump = lambda n: pump(n, limit["v"])

    g.label(name)
    stamp()
    A("s_load_dwordx8 s[4:11], s[0:1], 0")
    A("s_load_dwordx2 s[14:15], s[0:1], 80")
    A("s_load_dwordx4 s[16:19], s[0:1], 48")
    A("s_load_dwordx2 s[12:13], s[0:1], 32")
    A("s_load_dwordx2 s[70:71], s[0:1], 64")
    A("s_cmp_ge_u32 s2, 256")
    A(f"s_cbranch_scc1 {name}_end")
    A(f"v_lshrrev_b32 v{vT}, 6, v{vTID}")
    A(f"v_and_b32 v{vL}, 63, v{vTID}")
    A(f"v_readfirstlane_b32 s3, v{vT}")
    A(f"v_and_b32 v{vJ}, 15, v{vL}")
    A(f"v_lshrrev_b32 v{vG}, 4, v{vL}")
    A(f"v_lshlrev_b32 v{vNo}, 4, v{vL}")
    for b in range(1, 4):
        A(f"v_add_u32 v{vNo+b}, {b*16384}, v{vNo}")
    A("s_and_b32 s20, s2, 7")
    A("s_lshl_b32 s20, s20, 2")
    A("s_lshr_b32 s21, s2, 3")
    A("s_and_b32 s22, s21, 3")
    A("s_add_u32 s20, s20, s22")
    A("s_lshr_b32 s21, s2, 5")
    A("s_lshl_b32 s22, s20, 3")
    A("s_add_u32 s22, s22, s21")
    A("s_lshl_b32 s64, s3, 12")
    for a_ in range(1, 4):
        A(f"s_add_u32 s{64+a_}, s64, {a_*65536}")
    A("s_lshl_b32 s26, s22, 18")
    A(f"v_lshlrev_b32 v{vT}, 4, v{vJ}")
    A(f"v_lshl_add_u32 v{vWQo}, v{vG}, 15, v{vT}")
    A(f"v_lshl_add_u32 v{vWOo}, v{vG}, 15, v{vT}")
    A(f"v_mul_u32_u24 v{vW1o}, {4*2752}, v{vG}")
    A(f"v_add_u32 v{vW1o}, v{vW1o}, v{vT}")
    A(f"v_lshlrev_b32 v{vT+3}, 3, v{vG}")
    A("s_lshl_b32 s69, s21, 6")
    A("s_lshl_b32 s25, s3, 4")
    A("s_add_u32 s69, s69, s25")
    A("s_lshl_b32 s23, s69, 13")
    A("s_lshl_b32 s25, s20, 8")
    A("s_add_u32 s23, s23, s25")
    A("s_sub_u32 s27, 0x400000, s23")
    A("s_lshl_b32 s24, s69, 1")
    A("s_waitcnt lgkmcnt(0)")
    A(f"s_load_dword s72, s[14:15], {WS_EP}")
    srd(g, sX, 4, 5, None, 1024)
    g.vmem(f"buffer_load_dwordx4 {vr(vXA)}, v{vNo}, s[{sX}:{sX+3}], 0 offen", "xa")
    g.vmem(f"buffer_load_dwordx2 v[{vXM}:{vXM+1}], v{vT+3}, s[{sX}:{sX+3}], s24 offen", "xm")
    srd(g, sK, 6, 7, "s26", 262144)
    pump(4)
    srd(g, sWQ, 10, 11, "s23", "s27")
    for t in range(4):
        A(f"s_mov_b32 s68, {t*8192}")
        g.vmem(f"buffer_load_dwordx4 {vr(vWQ+4*t)}, v{vWQo}, s[{sWQ}:{sWQ+3}], s68 offen", ("wq", t))
    A("s_mul_i32 s23, s69, 2752")
    A("s_add_u32 s23, s23, s25")
    A(f"s_sub_u32 s27, {W1_BYTES}, s23")
    A("s_cmp_lt_u32 s20, 11")
    A("s_cselect_b32 s27, s27, 0")
    A("s_cselect_b32 s23, s23, 0")
    srd(g, sW1, 16, 17, "s23", "s27")
    for t in range(4):
        A(f"s_mov_b32 s68, {t*2752}")
        g.vmem(f"buffer_load_dwordx4 {vr(vW1+4*t)}, v{vW1o}, s[{sW1}:{sW1+3}], s68 offen", ("w1", t))
    srd(g, sV, 8, 9, "s26", 262144)
    pump(PRE)
    A("s_add_u32 s23, s20, 21")
    A("s_and_b32 s23, s23, 31")
    A("s_lshl_b32 s23, s23, 3")
    A("s_add_u32 s23, s23, s21")
    A(f"s_cmp_lt_u32 s23, {NUNITS}")
    A("s_cselect_b32 s25, 1, 0")
    A("s_cselect_b32 s23, s23, 0")
    if P.get("nog"): A("s_mov_b32 s25, 0")
    A("s_lshl_b32 s26, s23, 3")
    A("s_add_u32 s26, s26, s3")
    A("s_lshl_b32 s26, s26, 10")
    A("s_mul_i32 s27, s25, 5120")
    srd(g, sW2, 18, 19, "s26", "s27")
    A("s_lshl_b32 s26, s20, 17")
    A("s_lshl_b32 s27, s3, 8")
    A("s_add_u32 s26, s26, s27")
    A("s_sub_u32 s27, 0x400000, s26")
    if P.get("nowo"): A("s_mov_b32 s27, 0")
    srd(g, sWO, 12, 13, "s26", "s27")
    stamp()
    g.auto = AUTO
    A(f"v_and_b32 v{vT}, 1, v{vJ}")
    A(f"v_lshlrev_b32 v{vT}, 4, v{vT}")
    A(f"v_mov_b32 v{vT+1}, 0xffff")
    A(f"v_lshlrev_b32 v{vT+1}, v{vT}, v{vT+1}")
    A(f"v_bfe_u32 v{vT}, v{vJ}, 1, 2")
    for r in range(4):
        A(f"v_cmp_eq_u32 vcc, {r}, v{vT}")
        g.nop(2)
        A(f"v_cndmask_b32 v{vM+r}, 0, v{vT+1}, vcc")

    g.wait("xa")
    X = vT
    for k in range(4):
        A(f"v_lshlrev_b32 v{X+2*k}, 16, v{vXA+k}")
        A(f"v_and_b32 v{X+2*k+1}, 0xffff0000, v{vXA+k}")
    S, Tm = vT + 8, vT + 9
    A(f"v_add_f32 v{S}, v{X}, v{X+1}")
    for k in range(2, 8):
        A(f"v_add_f32 v{S}, v{S}, v{X+k}")
    allreduce64(g, "add", S, Tm)
    A(f"v_mul_f32 v{S}, 0x3b000000, v{S}")
    Q = vT + 10
    for k in range(8):
        A(f"v_sub_f32 v{X+k}, v{X+k}, v{S}")
    A(f"v_mul_f32 v{Q}, v{X}, v{X}")
    for k in range(1, 8):
        A(f"v_fmac_f32 v{Q}, v{X+k}, v{X+k}")
    allreduce64(g, "add", Q, Tm)
    A(f"v_mul_f32 v{Q}, 0x3b000000, v{Q}")
    bf16r(g, S)
    bf16r(g, Q)
    A(f"v_add_f32 v{Q}, {hex(EPS)}, v{Q}")
    bf16r(g, Q)
    A(f"v_sqrt_f32 v{Q}, v{Q}")
    g.nop(1)
    bf16r(g, Q)
    RS = vT + 11
    A(f"v_rcp_f32 v{RS}, v{Q}")
    g.nop(1)
    MEAN, SD = S, Q

    def normalize(src, t0, t1):
        A(f"v_sub_f32 v{src}, v{src}, v{MEAN}")
        bf16r(g, src)
        A(f"v_mul_f32 v{t0}, v{src}, v{RS}")
        A(f"v_fma_f32 v{t1}, -v{t0}, v{SD}, v{src}")
        A(f"v_fma_f32 v{t0}, v{t1}, v{RS}, v{t0}")

    vXP = vT + 14
    g.wait("xm")
    for k in range(2):
        A(f"v_lshlrev_b32 v{X}, 16, v{vXM+k}")
        A(f"v_and_b32 v{X+1}, 0xffff0000, v{vXM+k}")
        normalize(X, X + 2, X + 3)
        normalize(X + 1, X + 4, X + 5)
        A(f"v_cvt_pk_bf16_f32 v{vXP+2*k}, v{X+2}, v{X+2}")
        A(f"v_cvt_pk_bf16_f32 v{vXP+2*k+1}, v{X+4}, v{X+4}")

    def ands(src, aset):
        for r in range(4):
            A(f"v_and_b32 v{vA+4*aset+r}, v{vM+r}, v{src}")

    ands(vXP, 0)
    for t in range(4):
        if t < 3:
            ands(vXP + t + 1, (t + 1) % 2)
        else:
            g.nop(2)
        g.wait(("wq", t))
        c = "0" if t == 0 else vr(vD)
        A(f"v_mfma_f32_16x16x32_bf16 {vr(vD)}, {vr(vA+4*(t%2))}, {vr(vWQ+4*t)}, {c}")
        g.wait(("w1", t))
        c = "0" if t == 0 else vr(vD2)
        A(f"v_mfma_f32_16x16x32_bf16 {vr(vD2)}, {vr(vA+4*(t%2))}, {vr(vW1+4*t)}, {c}")
    aQ = vT + 6
    A(f"v_and_b32 v{aQ}, 1, v{vG}")
    A(f"v_lshlrev_b32 v{aQ}, 4, v{aQ}")
    A(f"v_lshl_add_u32 v{aQ}, v{vJ}, 5, v{aQ}")
    A("s_lshl_b32 s26, s3, 9")
    A(f"v_add_u32 v{aQ}, s26, v{aQ}")
    A("s_lshl_b32 s26, s22, 10")
    A(f"s_add_u32 s27, s26, {WS_Q}")
    A(f"s_add_u32 s26, s26, {WS_H}")
    A("s_cmp_eq_u32 s3, 0")
    A("s_cselect_b32 s26, s27, s26")
    A("s_cselect_b32 s27, 1024, 0")
    A("s_cselect_b32 s24, 0, 2048")
    A("s_cmp_eq_u32 s3, 1")
    A("s_cselect_b32 s68, 1024, 0")
    A("s_cmp_lt_u32 s20, 11")
    A("s_cselect_b32 s68, s68, 0")
    A("s_add_u32 s27, s27, s68")
    srd(g, sGs, 14, 15, "s26", "s27")
    A(f"ds_write_b128 v{aQ}, {vr(vD)} offset:{L_QP}")
    A(f"ds_write_b128 v{aQ}, {vr(vD2)} offset:{L_HP}")
    g.auto = 0
    aR = vT + 6
    A(f"v_lshlrev_b32 v{aR}, 3, v{vL}")
    A(f"v_add_u32 v{aR}, s24, v{aR}")
    A("s_waitcnt lgkmcnt(0)")
    A("s_barrier")
    stamp()
    QS = vT + 14
    for w in range(4):
        A(f"ds_read_b64 v[{QS+2*w}:{QS+2*w+1}], v{aR} offset:{L_QP + w*512}")
    A("s_mul_i32 s73, s72, 0x9E3779B1")
    A("s_add_u32 s73, s73, 0x7F4A7C15")
    A("s_mul_i32 s74, s72, 0x85EBCA77")
    A("s_add_u32 s74, s74, 0xC2B2AE3D")
    A("s_waitcnt lgkmcnt(0)")
    A(f"v_add_f32 v{QS}, v{QS}, v{QS+2}")
    A(f"v_add_f32 v{QS+1}, v{QS+1}, v{QS+3}")
    A(f"v_add_f32 v{QS+4}, v{QS+4}, v{QS+6}")
    A(f"v_add_f32 v{QS+5}, v{QS+5}, v{QS+7}")
    A(f"v_add_f32 v{QS}, v{QS}, v{QS+4}")
    A(f"v_add_f32 v{QS+2}, v{QS+1}, v{QS+5}")
    A(f"v_mov_b32 v{QS+1}, s73")
    A(f"v_mov_b32 v{QS+3}, s74")
    g.vmem(f"buffer_store_dwordx4 {vr(QS)}, v{vNo}, s[{sGs}:{sGs+3}], 0 offen {HF}", "qst")
    stamp()
    g.vmem(f"buffer_load_dwordx4 {vr(vW2)}, v{vNo}, s[{sW2}:{sW2+3}], 0 offen", "w2")
    A("s_movk_i32 s27, 4096")
    g.vmem(f"buffer_load_dwordx4 {vr(vW2+4)}, v{vNo}, s[{sW2}:{sW2+3}], s27 offen", "w2")
    pump(P.get("pre3", 12))
    A("s_lshl_b32 s26, s20, 13")
    A("s_lshl_b32 s27, s3, 11")
    A("s_add_u32 s26, s26, s27")
    A(f"s_add_u32 s26, s26, {WS_Q}")
    srd(g, sGs, 14, 15, "s26", 2048)
    g.vmem(f"buffer_load_dwordx4 {vr(vQG)}, v{vNo}, s[{sGs}:{sGs+3}], 0 offen {HF}", "qg")
    g.vmem(f"buffer_load_dwordx4 {vr(vQG+4)}, v{vNo}, s[{sGs}:{sGs+3}], 0 offen offset:1024 {HF}", "qg")
    pump(P.get("pre4", 16))
    A("s_mov_b32 s24, 0")
    g.wait("qg")
    g.label(name + "_qchk")
    A(f"v_xor_b32 v{vT}, s73, v{vQG+1}")
    A(f"v_xor_b32 v{vT+1}, s74, v{vQG+3}")
    A(f"v_xor_b32 v{vT+2}, s73, v{vQG+5}")
    A(f"v_xor_b32 v{vT+3}, s74, v{vQG+7}")
    A(f"v_or3_b32 v{vT}, v{vT}, v{vT+1}, v{vT+2}")
    A(f"v_or_b32 v{vT}, v{vT}, v{vT+3}")
    A(f"v_cmp_ne_u32 vcc, 0, v{vT}")
    A("s_add_u32 s24, s24, 1")
    if P.get("noqwait"): A(f"s_branch {name}_qok")
    A(f"s_cbranch_vccz {name}_qok")
    A("s_cmp_ge_u32 s24, 0x40000")
    A(f"s_cbranch_scc1 {name}_qok")
    A(f"buffer_load_dwordx4 {vr(vQG)}, v{vNo}, s[{sGs}:{sGs+3}], 0 offen {HF}")
    A(f"buffer_load_dwordx4 {vr(vQG+4)}, v{vNo}, s[{sGs}:{sGs+3}], 0 offen offset:1024 {HF}")
    A("s_waitcnt vmcnt(0)")
    A(f"s_branch {name}_qchk")
    g.label(name + "_qok")
    A(f"v_add_f32 v{vT}, v{vQG}, v{vQG+4}")
    A(f"v_add_f32 v{vT+1}, v{vQG+2}, v{vQG+6}")
    A(f"v_lshlrev_b32 v{aR}, 3, v{vL}")
    A("s_lshl_b32 s26, s3, 9")
    A(f"v_add_u32 v{vT+2}, s26, v{aR}")
    A(f"ds_write_b64 v{vT+2}, v[{vT}:{vT+1}] offset:{L_Q2}")
    A(f"v_bfe_u32 v{vHo}, v{vL}, 2, 3")
    A(f"v_lshlrev_b32 v{vHo}, 10, v{vHo}")
    A(f"v_and_b32 v{vT+3}, 3, v{vL}")
    A(f"v_lshl_add_u32 v{vHo}, v{vT+3}, 4, v{vHo}")
    A("s_lshr_b32 s26, s23, 4")
    A("s_lshl_b32 s26, s26, 13")
    A("s_and_b32 s27, s23, 15")
    A("s_lshl_b32 s27, s27, 6")
    A("s_add_u32 s26, s26, s27")
    A(f"s_add_u32 s26, s26, {WS_H}")
    A("s_mul_i32 s27, s25, 8192")
    srd(g, sW1, 14, 15, "s26", "s27")
    g.vmem(f"buffer_load_dwordx4 {vr(vHG)}, v{vHo}, s[{sW1}:{sW1+3}], 0 offen {HF}", "hg")
    pump(1000, n_pre_qk)
    A("s_waitcnt lgkmcnt(0)")
    A("s_barrier")
    stamp()
    for w in range(4):
        A(f"ds_read_b64 v[{QS+2*w}:{QS+2*w+1}], v{aR} offset:{L_Q2 + w*512}")
    A(f"v_lshlrev_b32 v{vT+2}, 2, v{vL}")
    A("s_lshl_b32 s26, s3, 8")
    A(f"v_add_u32 v{vT+2}, s26, v{vT+2}")
    A(f"v_lshlrev_b32 v{vT+3}, 4, v{vJ}")
    A(f"v_add_u32 v{vT+3}, s26, v{vT+3}")
    A("s_waitcnt lgkmcnt(0)")
    A(f"v_add_f32 v{QS}, v{QS}, v{QS+2}")
    A(f"v_add_f32 v{QS+1}, v{QS+1}, v{QS+3}")
    A(f"v_add_f32 v{QS+4}, v{QS+4}, v{QS+6}")
    A(f"v_add_f32 v{QS+5}, v{QS+5}, v{QS+7}")
    A(f"v_add_f32 v{QS}, v{QS}, v{QS+4}")
    A(f"v_add_f32 v{QS+1}, v{QS+1}, v{QS+5}")
    A(f"v_cvt_pk_bf16_f32 v{QS}, v{QS}, v{QS+1}")
    A(f"ds_write_b32 v{vT+2}, v{QS} offset:{L_QB}")
    A("s_waitcnt lgkmcnt(0)")
    A(f"ds_read_b128 {vr(vQ)}, v{vT+3} offset:{L_QB}")

    def silu(v, t):
        A(f"v_mul_f32 v{t}, {hex(LOG2E ^ 0x80000000)}, v{v}")
        A(f"v_exp_f32 v{t}, v{t}")
        g.nop(1)
        A(f"v_add_f32 v{t}, 1.0, v{t}")
        A(f"v_rcp_f32 v{t+1}, v{t}")
        g.nop(1)
        A(f"v_mul_f32 v{t+2}, v{v}, v{t+1}")
        A(f"v_fma_f32 v{t+3}, -v{t+2}, v{t}, v{v}")
        A(f"v_fma_f32 v{t+2}, v{t+3}, v{t+1}, v{t+2}")
        A(f"v_cmp_lt_f32 vcc, 0x7f000000, v{t}")
        A(f"v_mul_f32 v{t+3}, v{v}, v{t+1}")
        g.nop(1)
        A(f"v_cndmask_b32 v{v}, v{t+2}, v{t+3}, vcc")
        bf16r(g, v)

    a = [vT + 1, vT + 2, vT + 3, vT + 4]
    b0, b1 = vT + 5, vT + 6
    PQ = P.get("pq", 8)

    def qk(i):
        while ("k", i, 3) not in issued_tags():
            assert pump(1) == 1
        g.wait(("k", i, 3))
        for c in range(4):
            for t in range(4):
                if c == 0:
                    A(f"v_dot2_f32_bf16 v{a[t]}, v{slot(4*i+t)}, v{vQ}, 0")
                else:
                    A(f"v_dot2c_f32_bf16 v{a[t]}, v{slot(4*i+t)+c}, v{vQ+c}")
        events.add(("kt", i))
        pump(PQ if i < NT - 4 else P.get("pql", 4))
        A(f"v_add_f32_dpp v{b0}, v{a[0]}, v{a[0]} row_ror:8 row_mask:0xf bank_mask:0x3")
        A(f"v_add_f32_dpp v{b1}, v{a[1]}, v{a[1]} row_ror:8 row_mask:0xf bank_mask:0x3")
        A(f"v_add_f32_dpp v{b0}, v{a[2]}, v{a[2]} row_ror:8 row_mask:0xf bank_mask:0xc")
        A(f"v_add_f32_dpp v{b1}, v{a[3]}, v{a[3]} row_ror:8 row_mask:0xf bank_mask:0xc")
        g.nop(2)
        c_ = vSC + i
        A(f"v_add_f32_dpp v{c_}, v{b0}, v{b0} row_half_mirror row_mask:0xf bank_mask:0x5")
        A(f"v_add_f32_dpp v{c_}, v{b1}, v{b1} row_half_mirror row_mask:0xf bank_mask:0xa")
        g.nop(2)
        A(f"v_add_f32_dpp v{c_}, v{c_}, v{c_} quad_perm:[1,0,3,2] row_mask:0xf bank_mask:0xf")
        g.nop(2)
        A(f"v_add_f32_dpp v{c_}, v{c_}, v{c_} quad_perm:[2,3,0,1] row_mask:0xf bank_mask:0xf")
        bf16r(g, c_)
        A(f"v_mul_f32 v{c_}, {hex(SCALE)}, v{c_}")
        bf16r(g, c_)

    limit["v"] = None
    A("s_waitcnt lgkmcnt(0)")
    stamp()
    GT = P.get("gt", 3)
    for i in range(GT):
        qk(i)
    g.wait("hg")
    A("s_mov_b32 s24, 0")
    g.label(name + "_hchk")
    A(f"v_xor_b32 v{vT}, s73, v{vHG+1}")
    A(f"v_xor_b32 v{vT+1}, s74, v{vHG+3}")
    A(f"v_or_b32 v{vT}, v{vT}, v{vT+1}")
    A(f"v_cmp_ne_u32 vcc, 0, v{vT}")
    A("s_add_u32 s24, s24, 1")
    A(f"s_cbranch_vccz {name}_hok")
    A("s_cmp_eq_u32 s25, 0")
    A(f"s_cbranch_scc1 {name}_hok")
    A("s_cmp_ge_u32 s24, 0x40000")
    A(f"s_cbranch_scc1 {name}_hok")
    A(f"buffer_load_dwordx4 {vr(vHG)}, v{vHo}, s[{sW1}:{sW1+3}], 0 offen {HF}")
    A("s_waitcnt vmcnt(0)")
    A(f"s_branch {name}_hchk")
    g.label(name + "_hok")
    h0, h1 = vHG, vHG + 2
    for ctl in ("row_ror:4", "row_ror:8"):
        g.nop(1)
        A(f"v_add_f32_dpp v{h0}, v{h0}, v{h0} {ctl} row_mask:0xf bank_mask:0xf")
        A(f"v_add_f32_dpp v{h1}, v{h1}, v{h1} {ctl} row_mask:0xf bank_mask:0xf")
    A(f"v_mov_b32 v{vT}, v{h0}")
    A(f"v_mov_b32 v{vT+1}, v{h1}")
    g.nop(1)
    A(f"v_permlane16_swap_b32 v{h0}, v{vT}")
    A(f"v_permlane16_swap_b32 v{h1}, v{vT+1}")
    g.nop(1)
    A(f"v_add_f32 v{h0}, v{h0}, v{vT}")
    A(f"v_add_f32 v{h1}, v{h1}, v{vT+1}")
    A("s_and_b32 s26, s3, 1")
    A("s_cmp_eq_u32 s26, 1")
    A("s_cselect_b64 s[26:27], -1, 0")
    A("s_lshr_b32 s24, s3, 1")
    A("s_add_u32 s68, s24, 2")
    A(f"v_cndmask_b32 v{h0}, v{h0}, v{h1}, s[26:27]")
    g.nop(1)
    A(f"v_readlane_b32 s26, v{h0}, s24")
    A(f"v_readlane_b32 s27, v{h0}, s68")
    Ha, Hb = vT, vT + 7
    g.nop(2)
    A(f"v_mov_b32 v{Ha}, s26")
    A(f"v_mov_b32 v{Hb}, s27")
    bf16r(g, Ha)
    bf16r(g, Hb)
    silu(Ha, vT + 1)
    silu(Hb, vT + 1)
    g.wait("w2")
    for k in range(4):
        A(f"v_lshlrev_b32 v{Yg+2*k}, 16, v{vW2+k}")
        A(f"v_and_b32 v{Yg+2*k+1}, 0xffff0000, v{vW2+k}")
        A(f"v_lshlrev_b32 v{vT+8}, 16, v{vW2+4+k}")
        A(f"v_and_b32 v{vT+9}, 0xffff0000, v{vW2+4+k}")
        A(f"v_mul_f32 v{Yg+2*k}, v{Yg+2*k}, v{Ha}")
        A(f"v_mul_f32 v{Yg+2*k+1}, v{Yg+2*k+1}, v{Ha}")
        A(f"v_fmac_f32 v{Yg+2*k}, v{vT+8}, v{Hb}")
        A(f"v_fmac_f32 v{Yg+2*k+1}, v{vT+9}, v{Hb}")
    aY = vT + 1
    A(f"v_lshlrev_b32 v{aY}, 5, v{vL}")
    A("s_lshl_b32 s26, s3, 11")
    A(f"v_add_u32 v{aY}, s26, v{aY}")
    A(f"ds_write_b128 v{aY}, {vr(Yg)} offset:{L_YP}")
    A(f"ds_write_b128 v{aY}, {vr(Yg+4)} offset:{L_YP+16}")
    A("s_waitcnt lgkmcnt(0)")
    events.add("w_free")
    qk(GT)
    A("s_barrier")
    GS = vT + 6
    A(f"v_lshlrev_b32 v{vT}, 3, v{vTID}")
    for w in range(4):
        A(f"ds_read_b64 v[{GS+2*w}:{GS+2*w+1}], v{vT} offset:{L_YP + w*2048}")
    A(f"s_lshl_b32 s26, s23, 12")
    A(f"s_add_u32 s26, s26, {WS_G}")
    A("s_lshl_b32 s27, s25, 12")
    srd(g, sGs, 14, 15, "s26", "s27")
    A(f"v_lshlrev_b32 v{vT+1}, 4, v{vTID}")
    A("s_waitcnt lgkmcnt(0)")
    A(f"v_add_f32 v{GS}, v{GS}, v{GS+2}")
    A(f"v_add_f32 v{GS+1}, v{GS+1}, v{GS+3}")
    A(f"v_add_f32 v{GS+4}, v{GS+4}, v{GS+6}")
    A(f"v_add_f32 v{GS+5}, v{GS+5}, v{GS+7}")
    A(f"v_add_f32 v{GS}, v{GS}, v{GS+4}")
    A(f"v_add_f32 v{GS+2}, v{GS+1}, v{GS+5}")
    A(f"v_mov_b32 v{GS+1}, s73")
    A(f"v_mov_b32 v{GS+3}, s74")
    g.vmem(f"buffer_store_dwordx4 {vr(GS)}, v{vT+1}, s[{sGs}:{sGs+3}], 0 offen {HF}", "gst")
    for i in range(GT + 1, NT):
        qk(i)
    stamp()
    A(f"v_max3_f32 v{vMx}, v{vSC}, v{vSC+1}, v{vSC+2}")
    for k in range(3, NT - 1, 2):
        A(f"v_max3_f32 v{vMx}, v{vMx}, v{vSC+k}, v{vSC+k+1}")
    A(f"v_max_f32 v{vMx}, v{vMx}, v{vSC+NT-1}")
    for ctl in ("row_ror:4", "row_ror:8"):
        g.nop(2)
        A(f"v_max_f32_dpp v{vMx}, v{vMx}, v{vMx} {ctl} row_mask:0xf bank_mask:0xf")
    rows_allreduce(g, "max", vMx, vT)
    A("s_lshl_b32 s26, s3, 2")
    A(f"v_mov_b32 v{vT}, s26")
    A(f"ds_write_b32 v{vT}, v{vMx} offset:{L_MX}")
    pump(P.get("pm", 12))
    A("s_waitcnt lgkmcnt(0)")
    A("s_barrier")
    A(f"v_mov_b32 v{vT}, 0")
    A(f"ds_read_b128 {vr(vT+4)}, v{vT} offset:{L_MX}")
    A("s_lshl_b32 s26, s22, 2")
    A("s_add_u32 s26, s26, s3")
    A("s_lshl_b32 s26, s26, 4")
    A(f"s_add_u32 s26, s26, {WS_ML}")
    srd(g, sGs, 14, 15, "s26", 16)
    A(f"s_mov_b32 s26, {hex(LOG2E)}")
    A("s_waitcnt lgkmcnt(0)")
    A(f"v_max3_f32 v{vMx}, v{vT+4}, v{vT+5}, v{vT+6}")
    A(f"v_max_f32 v{vMx}, v{vMx}, v{vT+7}")
    A(f"v_mul_f32 v{vT}, s26, v{vMx}")
    for k in range(NT):
        A(f"v_fma_f32 v{vSC+k}, v{vSC+k}, s26, -v{vT}")
    for k in range(NT):
        A(f"v_exp_f32 v{vSC+k}, v{vSC+k}")
    A(f"v_mov_b32 v{vT+1}, s73")
    A(f"v_add_f32 v{vLs}, v{vSC}, v{vSC+1}")
    A(f"v_add_f32 v{vT+5}, v{vSC+2}, v{vSC+3}")
    for k in range(4, NT, 2):
        A(f"v_add_f32 v{vLs}, v{vLs}, v{vSC+k}")
        A(f"v_add_f32 v{vT+5}, v{vT+5}, v{vSC+k+1}")
    A(f"v_add_f32 v{vLs}, v{vLs}, v{vT+5}")
    for k in range(NT):
        A(f"v_cvt_pk_bf16_f32 v{vSC+k}, v{vSC+k}, v{vSC+k}")
        if k == 3:
            A(f"v_add_f32_dpp v{vLs}, v{vLs}, v{vLs} row_ror:4 row_mask:0xf bank_mask:0xf")
        if k == 7:
            A(f"v_add_f32_dpp v{vLs}, v{vLs}, v{vLs} row_ror:8 row_mask:0xf bank_mask:0xf")
    rows_allreduce(g, "add", vLs, vT + 5)
    A(f"v_mov_b32 v{vT}, v{vMx}")
    A(f"v_mov_b32 v{vT+2}, v{vLs}")
    A(f"v_mov_b32 v{vT+3}, s74")
    A(f"v_lshlrev_b32 v{vT+4}, 4, v{vL}")
    g.vmem(f"buffer_store_dwordx4 {vr(vT)}, v{vT+4}, s[{sGs}:{sGs+3}], 0 offen {HF}", "mlst")
    RML = vR
    vOm = vR + 41
    A("s_lshl_b32 s26, s20, 9")
    A(f"s_add_u32 s26, s26, {WS_ML}")
    srd(g, sK, 14, 15, "s26", 512)
    A(f"v_and_b32 v{vOm}, 31, v{vL}")
    A(f"v_lshlrev_b32 v{vOm}, 4, v{vOm}")
    left = len(plan) - st["next"]
    pump(max(0, left - P.get("mlafter", 8)))
    g.vmem(f"buffer_load_dwordx4 {vr(RML)}, v{vOm}, s[{sK}:{sK+3}], 0 offen {HF}", "mlg")
    pump(1000)
    stamp()
    def pand(tt):
        for r in range(4):
            A(f"v_and_b32_dpp v{vA+4*(tt%2)+r}, v{vSC+tt//4}, v{vM+r} row_newbcast:{4*(tt%4)} row_mask:0xf bank_mask:0xf")
    NV = 4 * NT
    RML = vR
    PPL = 256 // GPP
    NGL = (NUNITS + PPL - 1) // PPL
    RG = [vR + 4 + 4 * k for k in range(NGL)]
    assert 4 + 4 * NGL <= 40
    vOy, vOm, vDf, vXo = vR + 40, vR + 41, vR + 42, vR + 43
    vGm = vR + 44
    lg = {1: 0, 2: 1, 4: 2, 8: 3}[GPP]
    GLT = P.get("glt", 8)
    MLT = P.get("mlt", 52)

    cT = vR + 48
    def cfactor():
        g.wait("mlg")
        A("s_mov_b32 s24, 0")
        g.label(name + "_mlchk")
        A(f"v_xor_b32 v{cT}, s73, v{RML+1}")
        A(f"v_xor_b32 v{cT+1}, s74, v{RML+3}")
        A(f"v_or_b32 v{cT}, v{cT}, v{cT+1}")
        A(f"v_cmp_ne_u32 vcc, 0, v{cT}")
        A("s_add_u32 s24, s24, 1")
        if P.get("nomlwait"): A(f"s_branch {name}_mlok")
        A(f"s_cbranch_vccz {name}_mlok")
        A("s_cmp_ge_u32 s24, 0x40000")
        A(f"s_cbranch_scc1 {name}_mlok")
        A(f"buffer_load_dwordx4 {vr(RML)}, v{vOm}, s[{sK}:{sK+3}], 0 offen {HF}")
        A("s_waitcnt vmcnt(0)")
        A(f"s_branch {name}_mlchk")
        g.label(name + "_mlok")
        Mh, E_, L_, C_ = cT, cT + 1, cT + 2, vCc
        A(f"v_mov_b32 v{Mh}, v{RML}")
        for ctl in ("quad_perm:[1,0,3,2]", "quad_perm:[2,3,0,1]", "row_half_mirror", "row_mirror"):
            g.nop(2)
            A(f"v_max_f32_dpp v{Mh}, v{Mh}, v{Mh} {ctl} row_mask:0xf bank_mask:0xf")
        A(f"v_mov_b32 v{cT+3}, v{Mh}")
        g.nop(2)
        A(f"v_permlane16_swap_b32 v{Mh}, v{cT+3}")
        g.nop(1)
        A(f"v_max_f32 v{Mh}, v{Mh}, v{cT+3}")
        A(f"v_sub_f32 v{E_}, v{RML}, v{Mh}")
        A(f"v_sub_f32 v{C_}, v{vMx}, v{Mh}")
        A(f"v_mul_f32 v{E_}, {hex(LOG2E)}, v{E_}")
        A(f"v_mul_f32 v{C_}, {hex(LOG2E)}, v{C_}")
        A(f"v_exp_f32 v{E_}, v{E_}")
        A(f"v_exp_f32 v{C_}, v{C_}")
        g.nop(1)
        A(f"v_mul_f32 v{L_}, v{E_}, v{RML+2}")
        for ctl in ("quad_perm:[1,0,3,2]", "quad_perm:[2,3,0,1]", "row_half_mirror", "row_mirror"):
            g.nop(2)
            A(f"v_add_f32_dpp v{L_}, v{L_}, v{L_} {ctl} row_mask:0xf bank_mask:0xf")
        A(f"v_mov_b32 v{cT+3}, v{L_}")
        g.nop(2)
        A(f"v_permlane16_swap_b32 v{L_}, v{cT+3}")
        g.nop(1)
        A(f"v_add_f32 v{L_}, v{L_}, v{cT+3}")
        A(f"v_rcp_f32 v{cT+3}, v{L_}")
        g.nop(1)
        A(f"v_mul_f32 v{cT}, v{C_}, v{cT+3}")
        A(f"v_fma_f32 v{cT+1}, -v{cT}, v{L_}, v{C_}")
        A(f"v_fma_f32 v{C_}, v{cT+1}, v{cT+3}, v{cT}")

    pand(0)
    for t in range(NV):
        if t + 1 < NV:
            pand(t + 1)
        else:
            g.nop(2)
        g.wait(("v", t))
        c = "0" if t == 0 else vr(vD)
        A(f"v_mfma_f32_16x16x32_bf16 {vr(vD)}, {vr(vA+4*(t%2))}, a[{4*t}:{4*t+3}], {c}")
        if t == GLT:
            A(f"v_lshrrev_b32 v{vT}, {lg}, v{vTID}")
            A(f"v_and_b32 v{vT+1}, {GPP-1}, v{vTID}")
            A(f"v_lshlrev_b32 v{vT+1}, 4, v{vT+1}")
            A(f"v_lshl_add_u32 v{vOy}, v{vT}, 12, v{vT+1}")
            klast = NGL - 1
            A(f"v_cmp_gt_u32 vcc, {NUNITS - klast*PPL}, v{vT}")
            A(f"v_mov_b32 v{vGm}, 0")
            g.nop(1)
            A(f"v_cndmask_b32 v{vGm}, v{vGm}, -1, vcc")
            A(f"s_sub_u32 s24, s2, {RED0}")
            A(f"s_cmp_lt_u32 s24, {NRED}")
            A(f"s_cselect_b32 s21, 1, 0")
            A(f"s_cselect_b32 s24, s24, 0")
            A(f"s_lshl_b32 s26, s24, {4+lg}")
            A(f"s_add_u32 s27, s26, {WS_G}")
            A(f"s_sub_u32 s24, {NUNITS*4096}, s26")
            A(f"s_mul_i32 s24, s24, s21")
            srd(g, sW1, 14, 15, "s27", "s24")
            for k in range(NGL):
                A(f"s_mov_b32 s26, {k*PPL*4096}")
                g.vmem(f"buffer_load_dwordx4 {vr(RG[k])}, v{vOy}, s[{sW1}:{sW1+3}], s26 offen {HF}", "gg")
            A(f"v_and_b32 v{vT+8}, 1, v{vG}")
            A(f"v_lshlrev_b32 v{vT+8}, 4, v{vT+8}")
            A(f"v_lshl_add_u32 v{vT+8}, v{vJ}, 5, v{vT+8}")
            A("s_lshl_b32 s26, s3, 9")
            A(f"v_add_u32 v{vT+8}, s26, v{vT+8}")
            A(f"v_lshlrev_b32 v{vT+9}, 3, v{vL}")
            A(f"v_add_u32 v{vT+1}, s26, v{vT+9}")
            A(f"v_lshlrev_b32 v{vT+2}, 7, v{vG}")
            A(f"v_add_u32 v{vT+2}, s26, v{vT+2}")
            A(f"v_mov_b32 v{vT+5}, s73")
            A(f"v_mov_b32 v{vT+7}, s74")
            A(f"v_and_b32 v{vT+10}, 1, v{vG}")
            A(f"v_lshlrev_b32 v{vT+10}, 5, v{vT+10}")
            A(f"v_lshl_add_u32 v{vT+10}, v{vJ}, 6, v{vT+10}")
            A(f"v_lshrrev_b32 v{vT+11}, 1, v{vG}")
            A(f"v_lshl_add_u32 v{vT+10}, v{vT+11}, 4, v{vT+10}")
            A("s_lshl_b32 s26, s22, 12")
            A("s_lshl_b32 s27, s3, 10")
            A("s_add_u32 s26, s26, s27")
            A(f"s_add_u32 s26, s26, {WS_Y}")
            srd(g, sY, 14, 15, "s26", 1024)
            A(f"v_cmp_lt_u32 s[74+22:74+23], v{vL}, 32".replace("74+22", "96").replace("74+23", "97") if not PROF else f"v_cmp_lt_u32 s[26:27], v{vL}, 32")
        if t == MLT:
            cfactor()
    assert st["next"] == len(plan), (st["next"], len(plan))
    sLo = "s[96:97]" if not PROF else "s[26:27]"
    stamp()
    aQ, GR, vSA = vT + 8, vT + 4, vT + 10
    g.nop(8)
    A(f"ds_write_b128 v{aQ}, {vr(vD)} offset:{L_OP}")
    A("s_waitcnt lgkmcnt(0)")
    A("s_barrier")
    O4 = vR + 48
    for w in range(4):
        A(f"ds_read_b64 v[{O4+2*w}:{O4+2*w+1}], v{vT+9} offset:{L_OP + w*512}")
    A("s_waitcnt lgkmcnt(0)")
    A(f"v_add_f32 v{O4}, v{O4}, v{O4+2}")
    A(f"v_add_f32 v{O4+1}, v{O4+1}, v{O4+3}")
    A(f"v_add_f32 v{O4+4}, v{O4+4}, v{O4+6}")
    A(f"v_add_f32 v{O4+5}, v{O4+5}, v{O4+7}")
    A(f"v_add_f32 v{O4}, v{O4}, v{O4+4}")
    A(f"v_add_f32 v{O4+1}, v{O4+1}, v{O4+5}")
    A(f"v_cvt_pk_bf16_f32 v{O4}, v{O4}, v{O4}")
    A(f"v_cvt_pk_bf16_f32 v{O4+1}, v{O4+1}, v{O4+1}")
    A(f"ds_write_b64 v{vT+1}, v[{O4}:{O4+1}] offset:{L_OB}")
    A("s_waitcnt lgkmcnt(0)")
    ODr = [vSC + k for k in range(16)] + [vR + 48 + k for k in range(16)]
    for k in range(8):
        A(f"ds_read_b128 {vr(ODr[4*k])}, v{vT+2} offset:{L_OB+16*k}")

    def wand(t):
        for r in range(4):
            A(f"v_and_b32 v{vA+4*(t%2)+r}, v{vM+r}, v{ODr[t]}")
    A("s_waitcnt lgkmcnt(7)")
    wand(0)
    for t in range(32):
        if t + 1 < 32:
            if (t + 1) % 4 == 0:
                A(f"s_waitcnt lgkmcnt({7 - (t+1)//4})")
            wand(t + 1)
        else:
            g.nop(2)
        g.wait(("wo", t))
        c = "0" if t == 0 else vr(vD)
        A(f"v_mfma_f32_16x16x32_bf16 {vr(vD)}, {vr(vA+4*(t%2))}, {vr(vW+4*t)}, {c}")
    stamp()
    if PROF:
        A(f"v_cmp_lt_u32 s[26:27], v{vL}, 32")
        g.nop(2)
    g.nop(8)
    A(f"v_cndmask_b32 v{GR}, v{vD+2}, v{vD}, {sLo}")
    A(f"v_cndmask_b32 v{GR+2}, v{vD+3}, v{vD+1}, {sLo}")
    A(f"v_mul_f32 v{GR}, v{GR}, v{vCc}")
    A(f"v_mul_f32 v{GR+2}, v{GR+2}, v{vCc}")
    g.vmem(f"buffer_store_dwordx4 {vr(GR)}, v{vSA}, s[{sY}:{sY+3}], 0 offen {HF}", "yst")
    stamp()
    if P.get("nofinal"):
        A(f"s_branch {name}_fin")
    A(f"s_sub_u32 s21, s2, {RED0}")
    A(f"s_cmp_ge_u32 s21, {NRED}")
    A(f"s_cbranch_scc1 {name}_fin")
    RY = [vW + 4 * k for k in range(GPP)]
    A(f"s_lshl_b32 s26, s21, {4+lg}")
    A(f"s_add_u32 s27, s26, {WS_Y}")
    A(f"s_sub_u32 s24, {256*4096}, s26")
    srd(g, sY, 14, 15, "s27", "s24")

    def ypoll():
        for k in range(GPP):
            A(f"s_mov_b32 s26, {k*PPL*4096}")
            A(f"buffer_load_dwordx4 {vr(RY[k])}, v{vOy}, s[{sY}:{sY+3}], s26 offen {HF}")
    A(f"s_lshl_b32 s27, s21, {2+lg}")
    srd(g, sV, 4, 5, "s27", 4 * GPP)
    srd(g, sWQ, 70, 71, "s27", 4 * GPP)
    A(f"v_and_b32 v{vT+2}, {2*GPP-1}, v{vL}")
    A(f"v_lshlrev_b32 v{vT+2}, 1, v{vT+2}")
    A(f"buffer_load_ushort v{vXo}, v{vT+2}, s[{sV}:{sV+3}], 0 offen")
    A("s_mov_b32 s24, 0")
    g.label(name + "_gchk")
    for k in range(NGL):
        A(f"v_xor_b32 v{vT}, s73, v{RG[k]+1}")
        A(f"v_xor_b32 v{vT+1}, s74, v{RG[k]+3}")
        if k == 0:
            A(f"v_or_b32 v{vDf}, v{vT}, v{vT+1}")
        elif k < NGL - 1:
            A(f"v_or3_b32 v{vDf}, v{vDf}, v{vT}, v{vT+1}")
        else:
            A(f"v_or_b32 v{vT}, v{vT}, v{vT+1}")
            A(f"v_and_or_b32 v{vDf}, v{vT}, v{vGm}, v{vDf}")
    A(f"v_cmp_ne_u32 vcc, 0, v{vDf}")
    A("s_add_u32 s24, s24, 1")
    A(f"s_cbranch_vccz {name}_gok")
    A("s_cmp_ge_u32 s24, 0x40000")
    A(f"s_cbranch_scc1 {name}_gok")
    for k in range(NGL):
        A(f"s_mov_b32 s26, {k*PPL*4096}")
        A(f"buffer_load_dwordx4 {vr(RG[k])}, v{vOy}, s[{sW1}:{sW1+3}], s26 offen {HF}")
    A("s_waitcnt vmcnt(0)")
    A(f"s_branch {name}_gchk")
    g.label(name + "_gok")
    a0, a1, a2, a3 = vT + 8, vT + 9, vT + 10, vT + 11
    A(f"v_mov_b32 v{a2}, v{RG[0]}")
    A(f"v_mov_b32 v{a3}, v{RG[0]+2}")
    for k in range(1, NGL):
        A(f"v_add_f32 v{a2}, v{a2}, v{RG[k]}")
        A(f"v_add_f32 v{a3}, v{a3}, v{RG[k]+2}")
    A("s_mov_b32 s24, 0")
    g.label(name + "_poll")
    ypoll()
    A("s_waitcnt vmcnt(0)")
    for k in range(GPP):
        A(f"v_xor_b32 v{vT}, s73, v{RY[k]+1}")
        A(f"v_xor_b32 v{vT+1}, s74, v{RY[k]+3}")
        if k == 0:
            A(f"v_or_b32 v{vDf}, v{vT}, v{vT+1}")
        else:
            A(f"v_or3_b32 v{vDf}, v{vDf}, v{vT}, v{vT+1}")
    A(f"v_cmp_ne_u32 vcc, 0, v{vDf}")
    A("s_add_u32 s24, s24, 1")
    A("s_and_b64 exec, exec, vcc")
    A(f"s_cbranch_execz {name}_got")
    A(f"s_cmp_ge_u32 s24, 0x40000")
    A(f"s_cbranch_scc1 {name}_got")
    if SLEEP:
        A(f"s_sleep {SLEEP}")
    A(f"s_branch {name}_poll")
    g.label(name + "_got")
    A("s_mov_b64 exec, -1")
    A(f"v_add_f32 v{a0}, v{RY[0]}, v{RY[1]}")
    A(f"v_add_f32 v{a1}, v{RY[0]+2}, v{RY[1]+2}")
    for k in range(2, GPP):
        A(f"v_add_f32 v{a0}, v{a0}, v{RY[k]}")
        A(f"v_add_f32 v{a1}, v{a1}, v{RY[k]+2}")
    g.nop(2)
    A(f"v_permlane32_swap_b32 v{a0}, v{a2}")
    A(f"v_permlane32_swap_b32 v{a1}, v{a3}")
    g.nop(1)
    A(f"v_add_f32 v{a0}, v{a0}, v{a2}")
    A(f"v_add_f32 v{a1}, v{a1}, v{a3}")
    g.nop(2)
    A(f"v_permlane16_swap_b32 v{a0}, v{a1}")
    g.nop(1)
    A(f"v_add_f32 v{a0}, v{a0}, v{a1}")
    rot = [r for r in (8, 4, 2, 1) if r >= GPP]
    for r in rot:
        g.nop(2)
        A(f"v_add_f32_dpp v{a0}, v{a0}, v{a0} row_ror:{r} row_mask:0xf bank_mask:0xf")
    A(f"v_and_b32 v{vT+12}, {GPP-1}, v{vL}")
    A(f"v_lshl_add_u32 v{vT+12}, v{vG}, {lg}, v{vT+12}")
    A(f"v_lshlrev_b32 v{vT+12}, 4, v{vT+12}")
    A("s_lshl_b32 s26, s3, 2")
    A(f"v_add_u32 v{vT+12}, s26, v{vT+12}")
    A(f"ds_write_b32 v{vT+12}, v{a0} offset:{L_RED}")
    A("s_waitcnt lgkmcnt(0)")
    A("s_barrier")
    A("s_cmp_lg_u32 s3, 0")
    A(f"s_cbranch_scc1 {name}_fin")
    A(f"v_and_b32 v{vT}, 1, v{vL}")
    A(f"v_bfe_u32 v{vT+1}, v{vL}, 1, {max(lg,1)}")
    A(f"v_lshl_add_u32 v{vT}, v{vT}, {lg}, v{vT+1}")
    A(f"v_lshlrev_b32 v{vT}, 4, v{vT}")
    A(f"ds_read_b128 {vr(vT+4)}, v{vT} offset:{L_RED}")
    A(f"ds_read_b128 {vr(vT+12)}, v{vT} offset:{L_RED+2*GPP*16}")
    A("s_waitcnt lgkmcnt(0)")
    for k in range(1, 4):
        A(f"v_add_f32 v{vT+4}, v{vT+4}, v{vT+4+k}")
        A(f"v_add_f32 v{vT+12}, v{vT+12}, v{vT+12+k}")
    sv, gv = vT + 4, vT + 12
    bf16r(g, sv)
    bf16r(g, gv)
    silu(gv, vT + 20)
    A(f"v_mul_f32 v{sv}, v{sv}, v{gv}")
    bf16r(g, sv)
    A(f"v_lshlrev_b32 v{vXo}, 16, v{vXo}")
    A(f"v_add_f32 v{sv}, v{sv}, v{vXo}")
    A(f"v_cvt_pk_bf16_f32 v{sv}, v{sv}, v{sv}")
    A(f"v_and_b32 v{vT+2}, {2*GPP-1}, v{vL}")
    A(f"v_lshlrev_b32 v{vT+2}, 1, v{vT+2}")
    A(f"s_mov_b32 exec_lo, {(1 << (2*GPP)) - 1}")
    A("s_mov_b32 exec_hi, 0")
    A(f"buffer_store_short v{sv}, v{vT+2}, s[{sWQ}:{sWQ+3}], 0 offen {P.get('outflags', 'sc0 sc1')}")
    A(f"s_cmp_lg_u32 s21, 0")
    A(f"s_cbranch_scc1 {name}_fin")
    A(f"s_mov_b32 s27, {WS_EP}")
    srd(g, sGs, 14, 15, "s27", 4)
    A("s_mov_b32 exec_lo, 1")
    A(f"v_mov_b32 v{vT}, s73")
    A(f"v_mov_b32 v{vT+1}, 0")
    A(f"buffer_store_dword v{vT}, v{vT+1}, s[{sGs}:{sGs+3}], 0 offen sc0 sc1")
    g.label(name + "_fin")
    if PROF:
        A("s_cmp_lg_u32 s3, 0")
        A(f"s_cbranch_scc1 {name}_end")
        A("s_waitcnt vmcnt(0)")
        stamp()
        A("s_waitcnt lgkmcnt(0)")
        A("s_lshl_b32 s26, s2, 8")
        A(f"s_add_u32 s26, s26, {WS_PROF}")
        srd(g, sGs, 14, 15, "s26", 256)
        A("s_mov_b32 exec_lo, 1")
        A("s_mov_b32 exec_hi, 0")
        A(f"v_mov_b32 v{vT+2}, 0")
        for k in stamps:
            A(f"v_mov_b32 v{vT}, s{76+2*k}")
            A(f"v_mov_b32 v{vT+1}, s{77+2*k}")
            A(f"buffer_store_dwordx2 v[{vT}:{vT+1}], v{vT+2}, s[{sGs}:{sGs+3}], 0 offen offset:{8*k}")
            A("s_nop 2")
    g.label(name + "_end")
    A("s_endpgm")
    assert len(stamps) <= 12
    return nv, NACC, lds


def build(**P):
    P.setdefault("name", KNAME)
    g = G2()
    nv1, nacc, lds1 = kernel(g, P)
    body1 = g.text()
    out = HEADER
    out += f"; @launch grid=(256,1,1) block=(256,1,1) lds={lds1}\n"
    out += '.amdgcn_target "amdgcn-amd-amdhsa--gfx950"\n.text\n'
    out += f".globl {P['name']}\n.p2align 8\n.type {P['name']},@function\n" + body1
    out += '.section .rodata,"a"\n'
    out += descriptor2(P["name"], nv1, nacc)
    return out


if __name__ == "__main__":
    P = {}
    for a in sys.argv[1:]:
        k, v = a.split("=", 1)
        try:
            v = eval(v)
        except Exception:
            pass
        P[k] = v
    sys.stdout.write(build(**P))
```

```python
import sys

KNAME = "recurrent_scan__gqa_block_cached__dense_activation_silu__decode_kernel"
HEADER = """; Kernarg layout for this problem (88 bytes, ptrs only, base s[0:1]):
;   offset  24: d_in[3] A_wq  shape=(512, 4096) dtype=bfloat16
"""

WS_Y = 0
WS_ML = 512 * 1024
WS_G = 512 * 1024 + 4096
NUNITS = 172
LOG2E = 0x3FB8AA3B
SCALE = 0x3DB504F3
EPS = 0x3727C5AC


class Gen:
    def __init__(self):
        self.L = []
        self.vm = []

    def A(self, s):
        self.L.append("    " + s)

    def label(self, s):
        self.L.append(s + ":")

    def C(self, s):
        self.L.append("    ; " + s)

    def vmem(self, s, tag, real=None):
        if real is None:
            real = "store" not in s.split()[0]
        self.A(s)
        self.vm.append((tag, real))

    def nreal(self):
        return sum(1 for t, r in self.vm if r)

    def wait(self, tag, extra=""):
        ids = [i for i, (t, r) in enumerate(self.vm) if t == tag]
        if not ids:
            return
        idx = max(ids)
        n = sum(1 for t, r in self.vm[idx + 1:] if r)
        assert n <= 63
        self.vm = self.vm[idx + 1:]
        self.A(f"s_waitcnt vmcnt({n}){extra}")

    def pace(self, depth):
        if self.nreal() >= depth:
            keep = []
            c = 0
            for e in reversed(self.vm):
                if e[1]:
                    if c == depth - 1:
                        break
                    c += 1
                keep.append(e)
            self.vm = list(reversed(keep))
            self.L.append(f"    s_waitcnt vmcnt({depth-1})")

    def nop(self, n):
        while n > 0:
            k = min(n, 16)
            self.A(f"s_nop {k-1}")
            n -= k

    def text(self):
        return "\n".join(self.L) + "\n"


def vr(a, n=4):
    return f"v[{a}:{a+n-1}]"


def allreduce64(g, op, v, t):
    ins = f"v_{op}_f32"
    for ctl in ("quad_perm:[1,0,3,2]", "quad_perm:[2,3,0,1]", "row_half_mirror", "row_mirror"):
        g.nop(2)
        g.A(f"{ins}_dpp v{v}, v{v}, v{v} {ctl} row_mask:0xf bank_mask:0xf")
    rows_allreduce(g, op, v, t)


def rows_allreduce(g, op, v, t):
    ins = f"v_{op}_f32"
    g.A(f"v_mov_b32 v{t}, v{v}")
    g.nop(2)
    g.A(f"v_permlane16_swap_b32 v{v}, v{t}")
    g.nop(1)
    g.A(f"{ins} v{v}, v{v}, v{t}")
    g.A(f"v_mov_b32 v{t}, v{v}")
    g.nop(2)
    g.A(f"v_permlane32_swap_b32 v{v}, v{t}")
    g.nop(1)
    g.A(f"{ins} v{v}, v{v}, v{t}")


def bf16r(g, v, t=None):
    g.A(f"v_cvt_pk_bf16_f32 v{v}, v{v}, v{v}")
    g.A(f"v_lshlrev_b32 v{v}, 16, v{v}")


def treduce(g, a, n):
    h = n // 2
    g.nop(2)
    for k in range(h):
        g.A(f"v_permlane32_swap_b32 v{a[k]}, v{a[k+h]}")
    g.nop(1)
    for k in range(h):
        g.A(f"v_add_f32 v{a[k]}, v{a[k]}, v{a[k+h]}")
    h //= 2
    g.nop(2)
    for k in range(h):
        g.A(f"v_permlane16_swap_b32 v{a[k]}, v{a[k+h]}")
    g.nop(1)
    for k in range(h):
        g.A(f"v_add_f32 v{a[k]}, v{a[k]}, v{a[k+h]}")
    h //= 2
    g.nop(2)
    dst = [a[n // 2 + k] for k in range(h)]
    for k in range(h):
        g.A(f"v_add_f32_dpp v{dst[k]}, v{a[k]}, v{a[k]} row_ror:8 row_mask:0xf bank_mask:0x3")
        g.A(f"v_add_f32_dpp v{dst[k]}, v{a[k+h]}, v{a[k+h]} row_ror:8 row_mask:0xf bank_mask:0xc")
    if h == 2:
        g.nop(2)
        g.A(f"v_add_f32_dpp v{a[0]}, v{dst[0]}, v{dst[0]} row_half_mirror row_mask:0xf bank_mask:0x5")
        g.A(f"v_add_f32_dpp v{a[0]}, v{dst[1]}, v{dst[1]} row_half_mirror row_mask:0xf bank_mask:0xa")
    else:
        g.nop(2)
        g.A(f"v_add_f32_dpp v{a[0]}, v{dst[0]}, v{dst[0]} row_half_mirror row_mask:0xf bank_mask:0xf")
    g.nop(2)
    g.A(f"v_add_f32_dpp v{a[0]}, v{a[0]}, v{a[0]} quad_perm:[1,0,3,2] row_mask:0xf bank_mask:0xf")
    g.nop(2)
    g.A(f"v_add_f32_dpp v{a[0]}, v{a[0]}, v{a[0]} quad_perm:[2,3,0,1] row_mask:0xf bank_mask:0xf")


def srd(g, s, blo, bhi, off_sgpr, nrec):
    if off_sgpr is None:
        g.A(f"s_mov_b32 s{s}, s{blo}")
        g.A(f"s_mov_b32 s{s+1}, s{bhi}")
    else:
        g.A(f"s_add_u32 s{s}, s{blo}, {off_sgpr}")
        g.A(f"s_addc_u32 s{s+1}, s{bhi}, 0")
    g.A(f"s_mov_b32 s{s+2}, {nrec}")
    g.A(f"s_mov_b32 s{s+3}, 0x00020000")


def kernel_main(g, P):
    RING = P.get("ring", 36)
    KVF = P.get("kvflags", "")
    name = P["name"]
    vTID = 0
    vL, vJ, vG = 1, 2, 3
    vM = 4
    vKo, vVo, vWQo, vWOo = 8, 9, 10, 11
    vT = 12
    vQB = 28
    vSC = 44
    vA = 76
    vD = 84
    vXA = 88
    vXM = 92
    vW1 = 100
    vW2 = 104
    vXT = 108
    vLs = 109
    vMx = 110
    vR = 112
    nv = vR + 4 * RING
    assert nv <= 256
    def slot(j):
        return vR + 4 * (j % RING)

    L_QP = 0
    L_QB = 4096
    L_HP = 6144
    L_MX = 6400
    L_LS = 6464
    L_YP = 8192
    L_OP = 24576
    L_OB = 28672
    lds = 30720

    A = g.A
    PROF = P.get("prof", 0)
    stamps = []
    def stamp():
        if PROF:
            k = len(stamps)
            A(f"s_memrealtime s[{72+2*k}:{73+2*k}]")
            stamps.append(k)
    g.label(name)
    stamp()
    A("s_load_dwordx8 s[4:11], s[0:1], 0")
    A("s_load_dwordx2 s[12:13], s[0:1], 32")
    A("s_load_dwordx4 s[16:19], s[0:1], 48")
    A("s_load_dwordx2 s[14:15], s[0:1], 80")
    A("s_cmp_ge_u32 s2, 256")
    A(f"s_cbranch_scc1 {name}_end")
    A(f"v_lshrrev_b32 v{vT}, 6, v{vTID}")
    A(f"v_and_b32 v{vL}, 63, v{vTID}")
    A(f"v_readfirstlane_b32 s3, v{vT}")
    A(f"v_and_b32 v{vJ}, 15, v{vL}")
    A(f"v_lshrrev_b32 v{vG}, 4, v{vL}")
    A("s_and_b32 s20, s2, 7")
    A("s_lshl_b32 s20, s20, 2")
    A("s_lshr_b32 s21, s2, 3")
    A("s_and_b32 s22, s21, 3")
    A("s_add_u32 s20, s20, s22")
    A("s_lshr_b32 s21, s2, 5")
    A("s_lshl_b32 s22, s20, 3")
    A("s_add_u32 s22, s22, s21")
    A("s_and_b32 s23, s2, 7")
    A("s_mul_i32 s23, s23, 22")
    A("s_lshr_b32 s24, s2, 3")
    A("s_add_u32 s23, s23, s24")
    A("s_cmp_lt_u32 s24, 22")
    A("s_cselect_b32 s23, s23, 0xffff")
    A(f"s_cmp_lt_u32 s23, {NUNITS}")
    A("s_cselect_b32 s25, 1, 0")
    A("s_cselect_b32 s23, s23, 0")
    A(f"v_lshlrev_b32 v{vKo}, 8, v{vJ}")
    A(f"v_lshl_add_u32 v{vKo}, v{vG}, 4, v{vKo}")
    A(f"v_lshlrev_b32 v{vVo}, 4, v{vJ}")
    A(f"v_lshl_add_u32 v{vWQo}, v{vG}, 17, v{vVo}")
    A(f"v_lshl_add_u32 v{vVo}, v{vG}, 10, v{vVo}")
    A(f"v_lshrrev_b32 v{vT}, 3, v{vJ}")
    A(f"v_lshl_add_u32 v{vT}, v{vG}, 1, v{vT}")
    A(f"v_and_b32 v{vT+1}, 7, v{vJ}")
    A(f"v_lshlrev_b32 v{vT+1}, 4, v{vT+1}")
    A(f"v_lshl_add_u32 v{vWOo}, v{vT}, 14, v{vT+1}")
    A(f"v_lshlrev_b32 v{vT+2}, 4, v{vL}")
    A(f"v_lshlrev_b32 v{vT+3}, 5, v{vG}")
    A(f"v_lshlrev_b32 v{vT+4}, 1, v{vTID}")
    A("s_movk_i32 s26, 2752")
    A(f"v_mul_lo_u32 v{vT+5}, v{vTID}, s26")
    A("s_waitcnt lgkmcnt(0)")
    sX, sK, sV, sWQ, sWO, sW1, sW2, sY, sGs = 28, 32, 36, 40, 44, 48, 52, 56, 60
    srd(g, sX, 4, 5, None, 1024)
    A("s_lshl_b32 s26, s22, 18")
    srd(g, sK, 6, 7, "s26", 262144)
    srd(g, sV, 8, 9, "s26", 262144)
    A("s_lshl_b32 s26, s20, 8")
    A("s_lshl_b32 s27, s3, 19")
    A("s_add_u32 s26, s26, s27")
    A("s_sub_u32 s27, 0x400000, s26")
    if P.get("nowq"): A("s_mov_b32 s27, 0")
    srd(g, sWQ, 10, 11, "s26", "s27")
    A("s_lshl_b32 s26, s20, 17")
    A("s_lshl_b32 s27, s3, 7")
    A("s_add_u32 s26, s26, s27")
    A("s_sub_u32 s27, 0x400000, s26")
    if P.get("nowo"): A("s_mov_b32 s27, 0")
    srd(g, sWO, 12, 13, "s26", "s27")
    A("s_lshl_b32 s26, s23, 4")
    A(f"s_sub_u32 s27, {512*2752}, s26")
    A("s_mul_i32 s27, s27, s25")
    srd(g, sW1, 16, 17, "s26", "s27")
    A("s_lshl_b32 s26, s23, 3")
    A("s_add_u32 s26, s26, s3")
    A("s_lshl_b32 s26, s26, 10")
    A("s_lshl_b32 s27, s25, 10")
    srd(g, sW2, 18, 19, "s26", "s27")
    g.vmem(f"buffer_load_dwordx4 {vr(vXA)}, v{vT+2}, s[{sX}:{sX+3}], 0 offen", "xa")
    A("s_lshl_b32 s26, s3, 7")
    g.vmem(f"buffer_load_dwordx4 {vr(vXM)}, v{vT+3}, s[{sX}:{sX+3}], s26 offen", "xm")
    g.vmem(f"buffer_load_dwordx4 {vr(vXM+4)}, v{vT+3}, s[{sX}:{sX+3}], s26 offen offset:16", "xm")
    g.vmem(f"buffer_load_ushort v{vXT}, v{vT+4}, s[{sX}:{sX+3}], 0 offen", "xt")
    stream = []
    for t in range(16):
        stream.append(("wq", t))
    for i in range(8):
        for m in range(4):
            stream.append(("k", i, m))
    for i in range(8):
        for r in range(4):
            stream.append(("v", i, r))
    for t in range(16):
        stream.append(("wo", t))
    NS = len(stream)
    state = {"next": 0}
    A("s_lshl_b32 s64, s3, 12")

    def issue(n):
        for _ in range(n):
            j = state["next"]
            if j >= NS:
                return
            it = stream[j]
            sl = slot(j)
            if it[0] == "wq":
                t = it[1]
                A(f"s_mov_b32 s65, {t*8192}")
                g.vmem(f"buffer_load_dwordx4 {vr(sl)}, v{vWQo}, s[{sWQ}:{sWQ+3}], s65 offen", ("s", j))
            elif it[0] == "k":
                _, i, m = it
                if m == 0:
                    A(f"s_add_u32 s66, s64, {i*32768}")
                g.vmem(f"buffer_load_dwordx4 {vr(sl)}, v{vKo}, s[{sK}:{sK+3}], s66 offen offset:{m*64} {KVF}", ("s", j))
            elif it[0] == "v":
                _, i, r = it
                if r == 0:
                    A(f"s_add_u32 s67, s64, {i*32768}")
                g.vmem(f"buffer_load_dwordx4 {vr(sl)}, v{vVo}, s[{sV}:{sV+3}], s67 offen offset:{r*256} {KVF}", ("s", j))
            else:
                t = it[1]
                if t % 4 == 0:
                    A(f"s_mov_b32 s68, {(t//4)*4096}")
                g.vmem(f"buffer_load_dwordx4 {vr(sl)}, v{vWOo}, s[{sWO}:{sWO+3}], s68 offen offset:{(t%4)*1024}", ("s", j))
            state["next"] = j + 1

    issue(16)
    g.vmem(f"buffer_load_dwordx4 {vr(vW1)}, v{vT+5}, s[{sW1}:{sW1+3}], 0 offen", "w1")
    g.vmem(f"buffer_load_dwordx4 {vr(vW2)}, v{vT+2}, s[{sW2}:{sW2+3}], 0 offen", "w2")
    issue(RING - 16)

    stamp()
    A(f"v_and_b32 v{vT}, 1, v{vJ}")
    A(f"v_lshlrev_b32 v{vT}, 4, v{vT}")
    A(f"v_mov_b32 v{vT+1}, 0xffff")
    A(f"v_lshlrev_b32 v{vT+1}, v{vT}, v{vT+1}")
    A(f"v_bfe_u32 v{vT}, v{vJ}, 1, 2")
    for r in range(4):
        A(f"v_cmp_eq_u32 vcc, {r}, v{vT}")
        g.nop(2)
        A(f"v_cndmask_b32 v{vM+r}, 0, v{vT+1}, vcc")

    g.wait("xa")
    X = vT
    for k in range(4):
        A(f"v_lshlrev_b32 v{X+2*k}, 16, v{vXA+k}")
        A(f"v_and_b32 v{X+2*k+1}, 0xffff0000, v{vXA+k}")
    S, Tm = vT + 8, vT + 9
    A(f"v_add_f32 v{S}, v{X}, v{X+1}")
    for k in range(2, 8):
        A(f"v_add_f32 v{S}, v{S}, v{X+k}")
    allreduce64(g, "add", S, Tm)
    A(f"v_mul_f32 v{S}, 0x3b000000, v{S}")
    Q = vT + 10
    for k in range(8):
        A(f"v_sub_f32 v{X+k}, v{X+k}, v{S}")
    A(f"v_mul_f32 v{Q}, v{X}, v{X}")
    for k in range(1, 8):
        A(f"v_fmac_f32 v{Q}, v{X+k}, v{X+k}")
    allreduce64(g, "add", Q, Tm)
    A(f"v_mul_f32 v{Q}, 0x3b000000, v{Q}")
    bf16r(g, S)
    bf16r(g, Q)
    A(f"v_add_f32 v{Q}, {hex(EPS)}, v{Q}")
    bf16r(g, Q)
    A(f"v_sqrt_f32 v{Q}, v{Q}")
    g.nop(1)
    bf16r(g, Q)
    RS = vT + 11
    A(f"v_rcp_f32 v{RS}, v{Q}")
    g.nop(1)
    MEAN, SD = S, Q

    def normalize(src, dst_dup, t0, t1):
        A(f"v_sub_f32 v{src}, v{src}, v{MEAN}")
        bf16r(g, src)
        A(f"v_mul_f32 v{t0}, v{src}, v{RS}")
        A(f"v_fma_f32 v{t1}, -v{t0}, v{SD}, v{src}")
        A(f"v_fma_f32 v{t0}, v{t1}, v{RS}, v{t0}")
        A(f"v_cvt_pk_bf16_f32 v{dst_dup}, v{t0}, v{t0}")

    g.wait("xm")
    for k in range(8):
        A(f"v_lshlrev_b32 v{X}, 16, v{vXM+k}")
        A(f"v_and_b32 v{X+1}, 0xffff0000, v{vXM+k}")
        normalize(X, vSC + 2 * k, X + 2, X + 3)
        normalize(X + 1, vSC + 2 * k + 1, X + 4, X + 5)
    g.wait("xt")
    A(f"v_lshlrev_b32 v{vXT}, 16, v{vXT}")
    normalize(vXT, vXT, X + 2, X + 3)
    A(f"v_lshlrev_b32 v{vXT}, 16, v{vXT}")

    def ands(src, aset):
        for r in range(4):
            A(f"v_and_b32 v{vA+4*aset+r}, v{vM+r}, v{src}")

    def gemv(nm, j0, srcs, D, after=None):
        ands(srcs[0], 0)
        for t in range(nm):
            if t + 1 < nm:
                ands(srcs[t + 1], (t + 1) % 2)
            else:
                g.nop(2)
            g.wait(("s", j0 + t))
            c = "0" if t == 0 else vr(D)
            A(f"v_mfma_f32_16x16x32_bf16 {vr(D)}, {vr(vA+4*(t%2))}, {vr(slot(j0+t))}, {c}")

    stamp()
    gemv(16, 0, [vSC + t for t in range(16)], vD)
    stamp()
    issue(16)
    g.wait("w1")
    H = vT
    for k in range(4):
        A(f"v_lshlrev_b32 v{H+2*k}, 16, v{vW1+k}")
        A(f"v_and_b32 v{H+2*k+1}, 0xffff0000, v{vW1+k}")
    for k in range(8):
        A(f"v_mul_f32 v{H+k}, v{H+k}, v{vXT}")
    treduce(g, [H + k for k in range(8)], 8)
    aQ = vT + 8
    A(f"v_and_b32 v{aQ}, 1, v{vG}")
    A(f"v_lshlrev_b32 v{aQ}, 4, v{aQ}")
    A(f"v_lshl_add_u32 v{aQ}, v{vJ}, 5, v{aQ}")
    A("s_lshl_b32 s26, s3, 9")
    A(f"v_add_u32 v{aQ}, s26, v{aQ}")
    A(f"ds_write_b128 v{aQ}, {vr(vD)} offset:{L_QP}")
    aH = vT + 9
    A(f"v_lshrrev_b32 v{aH}, 3, v{vL}")
    A(f"v_lshlrev_b32 v{aH}, 5, v{aH}")
    A("s_lshl_b32 s26, s3, 2")
    A(f"v_add_u32 v{aH}, s26, v{aH}")
    A(f"ds_write_b32 v{aH}, v{H} offset:{L_HP}")
    A("s_waitcnt lgkmcnt(0)")
    A("s_barrier")
    aR = vT + 8
    A(f"v_lshlrev_b32 v{aR}, 3, v{vL}")
    for w in range(8):
        A(f"ds_read_b64 v[{vQB+2*w}:{vQB+2*w+1}], v{aR} offset:{L_QP + w*512}")
    A("s_lshl_b32 s26, s3, 5")
    A(f"v_mov_b32 v{aH}, s26")
    A(f"ds_read_b128 {vr(vT)}, v{aH} offset:{L_HP}")
    A(f"ds_read_b128 {vr(vT+4)}, v{aH} offset:{L_HP+16}")
    A("s_waitcnt lgkmcnt(0)")
    for w in range(1, 8):
        A(f"v_add_f32 v{vQB}, v{vQB}, v{vQB+2*w}")
        A(f"v_add_f32 v{vQB+1}, v{vQB+1}, v{vQB+2*w+1}")
    A(f"v_cvt_pk_bf16_f32 v{vQB}, v{vQB}, v{vQB+1}")
    A(f"v_lshlrev_b32 v{aR}, 2, v{vL}")
    A("s_lshl_b32 s26, s3, 8")
    A(f"v_add_u32 v{aR}, s26, v{aR}")
    A(f"ds_write_b32 v{aR}, v{vQB} offset:{L_QB}")
    Hs = vT
    for k in range(1, 8):
        A(f"v_add_f32 v{Hs}, v{Hs}, v{vT+k}")
    bf16r(g, Hs)

    def silu(v, t):
        A(f"v_mul_f32 v{t}, {hex(LOG2E ^ 0x80000000)}, v{v}")
        A(f"v_exp_f32 v{t}, v{t}")
        g.nop(1)
        A(f"v_add_f32 v{t}, 1.0, v{t}")
        A(f"v_rcp_f32 v{t+1}, v{t}")
        g.nop(1)
        A(f"v_mul_f32 v{t+2}, v{v}, v{t+1}")
        A(f"v_fma_f32 v{t+3}, -v{t+2}, v{t}, v{v}")
        A(f"v_fma_f32 v{t+2}, v{t+3}, v{t+1}, v{t+2}")
        A(f"v_cmp_lt_f32 vcc, 0x7f000000, v{t}")
        A(f"v_mul_f32 v{t+3}, v{v}, v{t+1}")
        g.nop(1)
        A(f"v_cndmask_b32 v{v}, v{t+2}, v{t+3}, vcc")
        bf16r(g, v)

    silu(Hs, vT + 1)
    A("s_waitcnt lgkmcnt(0)")
    aB = vT + 8
    A(f"v_lshlrev_b32 v{aB}, 4, v{vG}")
    A(f"v_add_u32 v{aB}, s26, v{aB}")
    for m in range(4):
        A(f"ds_read_b128 {vr(vQB+4*m)}, v{aB} offset:{L_QB + m*64}")
    g.wait("w2")
    Yg = vT + 8
    for k in range(4):
        A(f"v_lshlrev_b32 v{Yg+2*k}, 16, v{vW2+k}")
        A(f"v_and_b32 v{Yg+2*k+1}, 0xffff0000, v{vW2+k}")
    for k in range(8):
        A(f"v_mul_f32 v{Yg+k}, v{Yg+k}, v{Hs}")
    aY = vT + 1
    A(f"v_lshlrev_b32 v{aY}, 5, v{vL}")
    A("s_lshl_b32 s26, s3, 11")
    A(f"v_add_u32 v{aY}, s26, v{aY}")
    A(f"ds_write_b128 v{aY}, {vr(Yg)} offset:{L_YP}")
    A(f"ds_write_b128 v{aY}, {vr(Yg+4)} offset:{L_YP+16}")
    A("s_waitcnt lgkmcnt(0)")
    A("s_barrier")
    A(f"v_lshlrev_b32 v{aY}, 2, v{vTID}")
    for w in range(8):
        A(f"ds_read_b32 v{Yg+w}, v{aY} offset:{L_YP + w*2048}")

    stamp()
    def post(i):
        b = vSC + 4 * i
        t = vA
        A(f"v_cvt_pk_bf16_f32 v{t}, v{b}, v{b+1}")
        A(f"v_cvt_pk_bf16_f32 v{t+1}, v{b+2}, v{b+3}")
        A(f"v_lshlrev_b32 v{b}, 16, v{t}")
        A(f"v_and_b32 v{b+1}, 0xffff0000, v{t}")
        A(f"v_lshlrev_b32 v{b+2}, 16, v{t+1}")
        A(f"v_and_b32 v{b+3}, 0xffff0000, v{t+1}")
        for r in range(4):
            A(f"v_mul_f32 v{b+r}, {hex(SCALE)}, v{b+r}")
        A(f"v_cvt_pk_bf16_f32 v{t}, v{b}, v{b+1}")
        A(f"v_cvt_pk_bf16_f32 v{t+1}, v{b+2}, v{b+3}")
        A(f"v_lshlrev_b32 v{b}, 16, v{t}")
        A(f"v_and_b32 v{b+1}, 0xffff0000, v{t}")
        A(f"v_lshlrev_b32 v{b+2}, 16, v{t+1}")
        A(f"v_and_b32 v{b+3}, 0xffff0000, v{t+1}")
        if i == 0:
            A(f"v_max3_f32 v{vMx}, v{b}, v{b+1}, v{b+2}")
            A(f"v_max_f32 v{vMx}, v{vMx}, v{b+3}")
        else:
            A(f"v_max3_f32 v{vMx}, v{vMx}, v{b}, v{b+1}")
            A(f"v_max3_f32 v{vMx}, v{vMx}, v{b+2}, v{b+3}")

    first = True
    for i in range(8):
        j0 = 16 + 4 * i
        for m in range(4):
            g.wait(("s", j0 + m))
            c = "0" if m == 0 else vr(vSC + 4 * i)
            A(f"v_mfma_f32_16x16x32_bf16 {vr(vSC+4*i)}, {vr(slot(j0+m))}, {vr(vQB+4*m)}, {c}")
            if first:
                pass
        if i == 0:
            A("s_waitcnt lgkmcnt(0)")
            for w in range(1, 8):
                A(f"v_add_f32 v{Yg}, v{Yg}, v{Yg+w}")
            A(f"s_mul_i32 s26, s23, 2048")
            A(f"s_add_u32 s26, s26, {WS_G}")
            A("s_lshl_b32 s27, s25, 11")
            srd(g, sGs, 14, 15, "s26", "s27")
            g.vmem(f"buffer_store_dword v{Yg}, v{aY}, s[{sGs}:{sGs+3}], 0 offen", "gst")
        issue(4)
        if i > 0:
            post(i - 1)
    g.nop(8)
    post(7)
    stamp()
    rows_allreduce(g, "max", vMx, vT)
    A("s_lshl_b32 s26, s3, 2")
    A(f"v_mov_b32 v{vT}, s26")
    A(f"ds_write_b32 v{vT}, v{vMx} offset:{L_MX}")
    A("s_waitcnt lgkmcnt(0)")
    A("s_barrier")
    A(f"v_mov_b32 v{vT}, 0")
    A(f"ds_read_b128 {vr(vT+4)}, v{vT} offset:{L_MX}")
    A(f"ds_read_b128 {vr(vT+8)}, v{vT} offset:{L_MX+16}")
    A("s_waitcnt lgkmcnt(0)")
    A(f"v_max3_f32 v{vMx}, v{vT+4}, v{vT+5}, v{vT+6}")
    A(f"v_max3_f32 v{vMx}, v{vMx}, v{vT+7}, v{vT+8}")
    A(f"v_max3_f32 v{vMx}, v{vMx}, v{vT+9}, v{vT+10}")
    A(f"v_max_f32 v{vMx}, v{vMx}, v{vT+11}")
    A(f"s_mov_b32 s26, {hex(LOG2E)}")
    A(f"v_mul_f32 v{vT}, s26, v{vMx}")
    for k in range(32):
        A(f"v_fma_f32 v{vSC+k}, v{vSC+k}, s26, -v{vT}")
    for k in range(32):
        A(f"v_exp_f32 v{vSC+k}, v{vSC+k}")
    g.nop(1)
    A(f"v_add_f32 v{vLs}, v{vSC}, v{vSC+1}")
    for k in range(2, 32):
        A(f"v_add_f32 v{vLs}, v{vLs}, v{vSC+k}")
    for k in range(32):
        A(f"v_cvt_pk_bf16_f32 v{vSC+k}, v{vSC+k}, v{vSC+k}")
    rows_allreduce(g, "add", vLs, vT)
    stamp()
    j0 = 48
    ands(vSC, 0)
    for t in range(32):
        if t + 1 < 32:
            ands(vSC + t + 1, (t + 1) % 2)
        else:
            g.nop(2)
        g.wait(("s", j0 + t))
        c = "0" if t == 0 else vr(vD)
        A(f"v_mfma_f32_16x16x32_bf16 {vr(vD)}, {vr(vA+4*(t%2))}, {vr(slot(j0+t))}, {c}")
        if t % 4 == 3:
            issue(4)
    assert state["next"] == NS
    stamp()
    aQ = vT + 8
    A(f"v_and_b32 v{aQ}, 1, v{vG}")
    A(f"v_lshlrev_b32 v{aQ}, 4, v{aQ}")
    A(f"v_lshl_add_u32 v{aQ}, v{vJ}, 5, v{aQ}")
    A("s_lshl_b32 s26, s3, 9")
    A(f"v_add_u32 v{aQ}, s26, v{aQ}")
    A("s_lshl_b32 s27, s3, 2")
    A(f"v_mov_b32 v{vT}, s27")
    A(f"ds_write_b32 v{vT}, v{vLs} offset:{L_LS}")
    g.nop(8)
    A(f"ds_write_b128 v{aQ}, {vr(vD)} offset:{L_OP}")
    A("s_waitcnt lgkmcnt(0)")
    A("s_barrier")
    A(f"v_lshlrev_b32 v{aR}, 3, v{vL}")
    for w in range(8):
        A(f"ds_read_b64 v[{vQB+2*w}:{vQB+2*w+1}], v{aR} offset:{L_OP + w*512}")
    A(f"v_mov_b32 v{vT}, 0")
    A(f"ds_read_b128 {vr(vT+4)}, v{vT} offset:{L_LS}")
    A(f"ds_read_b128 {vr(vT+12)}, v{vT} offset:{L_LS+16}")
    A("s_waitcnt lgkmcnt(0)")
    for w in range(1, 8):
        A(f"v_add_f32 v{vQB}, v{vQB}, v{vQB+2*w}")
        A(f"v_add_f32 v{vQB+1}, v{vQB+1}, v{vQB+2*w+1}")
    A(f"v_cvt_pk_bf16_f32 v{vQB}, v{vQB}, v{vQB+1}")
    A(f"v_lshlrev_b32 v{aR}, 2, v{vL}")
    A("s_lshl_b32 s26, s3, 8")
    A(f"v_add_u32 v{aR}, s26, v{aR}")
    A(f"ds_write_b32 v{aR}, v{vQB} offset:{L_OB}")
    A(f"v_add_f32 v{vLs}, v{vT+4}, v{vT+5}")
    for k in (6, 7, 12, 13, 14, 15):
        A(f"v_add_f32 v{vLs}, v{vLs}, v{vT+k}")
    A("s_waitcnt lgkmcnt(0)")
    A(f"v_lshrrev_b32 v{aB}, 3, v{vJ}")
    A(f"v_lshl_add_u32 v{aB}, v{vG}, 1, v{aB}")
    A(f"v_lshlrev_b32 v{aB}, 5, v{aB}")
    A(f"v_add_u32 v{aB}, s26, v{aB}")
    A(f"ds_read_b128 {vr(vQB)}, v{aB} offset:{L_OB}")
    A(f"ds_read_b128 {vr(vQB+4)}, v{aB} offset:{L_OB+16}")
    A("s_mov_b32 s70, 0x01000100")
    A("s_mov_b32 s71, 0x03020302")
    A("s_waitcnt lgkmcnt(0)")
    for t in range(16):
        A(f"v_perm_b32 v{vSC+t}, v{vQB+t//2}, v{vQB+t//2}, s{70+(t%2)}")
    gemv(16, 80, [vSC + t for t in range(16)], vD)
    stamp()
    g.nop(8)
    Z = vT
    for r in range(4):
        A(f"v_mov_b32_dpp v{vT+4+r}, v{vD+r} row_ror:8 row_mask:0xf bank_mask:0xf")
    g.nop(2)
    for r in range(4):
        A(f"v_permlane32_swap_b32 v{vT+4+r}, v{Z+r}")
    g.nop(1)
    for r in range(4):
        A(f"v_add_f32 v{vD+r}, v{vD+r}, v{Z+r}")
    A(f"v_and_b32 v{vT+8}, 7, v{vL}")
    A(f"v_lshlrev_b32 v{vT+8}, 5, v{vT+8}")
    A(f"v_lshl_add_u32 v{vT+8}, v{vG}, 4, v{vT+8}")
    A("s_lshl_b32 s26, s22, 11")
    A("s_lshl_b32 s27, s3, 8")
    A("s_add_u32 s26, s26, s27")
    srd(g, sY, 14, 15, "s26", 256)
    A("s_mov_b32 exec_lo, 0x00ff00ff")
    A("s_mov_b32 exec_hi, 0")
    g.vmem(f"buffer_store_dwordx4 {vr(vD)}, v{vT+8}, s[{sY}:{sY+3}], 0 offen", "yst")
    A("s_cmp_lg_u32 s3, 0")
    A(f"s_cbranch_scc1 {name}_end")
    A("s_lshl_b32 s26, s22, 3")
    A(f"s_add_u32 s26, s26, {WS_ML}")
    srd(g, sGs, 14, 15, "s26", 8)
    A("s_mov_b32 exec_lo, 1")
    A(f"v_mov_b32 v{vT}, v{vMx}")
    A(f"v_mov_b32 v{vT+1}, v{vLs}")
    A(f"v_mov_b32 v{vT+2}, 0")
    A(f"buffer_store_dwordx2 v[{vT}:{vT+1}], v{vT+2}, s[{sGs}:{sGs+3}], 0 offen")
    if PROF:
        A("s_waitcnt vmcnt(0)")
        stamp()
        A("s_waitcnt lgkmcnt(0)")
        A("s_lshl_b32 s26, s2, 8")
        A(f"s_add_u32 s26, s26, {1<<20}")
        srd(g, sGs, 14, 15, "s26", 256)
        for k in stamps:
            A(f"v_mov_b32 v{vT}, s{72+2*k}")
            A(f"v_mov_b32 v{vT+1}, s{73+2*k}")
            A(f"buffer_store_dwordx2 v[{vT}:{vT+1}], v{vT+2}, s[{sGs}:{sGs+3}], 0 offen offset:{8*k}")
            A("s_nop 2")
    g.label(name + "_end")
    A("s_endpgm")
    return nv, lds


def kernel_reduce(g, P):
    name = P["name2"]
    A = g.A
    g.vm = []
    g.label(name)
    A("s_load_dwordx2 s[4:5], s[0:1], 0")
    A("s_load_dwordx2 s[6:7], s[0:1], 64")
    A("s_load_dwordx2 s[8:9], s[0:1], 80")
    A("s_cmp_ge_u32 s2, 64")
    A(f"s_cbranch_scc1 {name}_end")
    A("v_lshrrev_b32 v1, 6, v0")
    A("v_and_b32 v2, 63, v0")
    A("v_readfirstlane_b32 s3, v1")
    A("v_lshlrev_b32 v3, 11, v0")
    A("v_lshlrev_b32 v4, 3, v0")
    A("s_lshl_b32 s10, s2, 5")
    A("s_waitcnt lgkmcnt(0)")
    A(f"s_sub_u32 s11, {256*2048}, s10")
    srd(g, 12, 8, 9, "s10", "s11")
    A(f"s_add_u32 s11, s10, {WS_G}")
    A(f"s_sub_u32 s24, {NUNITS*2048}, s10")
    srd(g, 16, 8, 9, "s11", "s24")
    A(f"s_mov_b32 s11, {WS_ML}")
    srd(g, 20, 8, 9, "s11", 2048)
    A("s_lshl_b32 s11, s2, 4")
    srd(g, 24, 4, 5, "s11", 16)
    srd(g, 28, 6, 7, "s11", 16)
    g.vmem("buffer_load_dwordx2 v[6:7], v4, s[20:23], 0 offen", "ml")
    g.vmem("buffer_load_dwordx4 v[8:11], v3, s[12:15], 0 offen", "y")
    g.vmem("buffer_load_dwordx4 v[12:15], v3, s[12:15], 0 offen offset:16", "y")
    g.vmem("buffer_load_dwordx4 v[16:19], v3, s[16:19], 0 offen", "gg")
    g.vmem("buffer_load_dwordx4 v[20:23], v3, s[16:19], 0 offen offset:16", "gg")
    A("v_and_b32 v5, 7, v2")
    A("v_lshlrev_b32 v5, 1, v5")
    g.vmem("buffer_load_ushort v24, v5, s[24:27], 0 offen", "x")
    g.wait("ml")
    A("v_mov_b32 v25, v6")
    for ctl in ("quad_perm:[1,0,3,2]", "quad_perm:[2,3,0,1]", "row_half_mirror"):
        g.nop(2)
        A(f"v_max_f32_dpp v25, v25, v25 {ctl} row_mask:0xf bank_mask:0xf")
    A("v_sub_f32 v26, v6, v25")
    A(f"v_mul_f32 v26, {hex(LOG2E)}, v26")
    A("v_exp_f32 v26, v26")
    g.nop(1)
    A("v_mul_f32 v27, v26, v7")
    for ctl in ("quad_perm:[1,0,3,2]", "quad_perm:[2,3,0,1]", "row_half_mirror"):
        g.nop(2)
        A(f"v_add_f32_dpp v27, v27, v27 {ctl} row_mask:0xf bank_mask:0xf")
    A("v_rcp_f32 v28, v27")
    g.nop(1)
    A("v_mul_f32 v29, v26, v28")
    A("v_fma_f32 v30, -v29, v27, v26")
    A("v_fma_f32 v29, v30, v28, v29")
    g.wait("y")
    for k in range(8):
        A(f"v_mul_f32 v{8+k}, v{8+k}, v29")
    g.wait("gg")
    treduce(g, [8 + k for k in range(16)], 16)
    A("v_lshrrev_b32 v25, 2, v2")
    A("v_lshlrev_b32 v25, 4, v25")
    A("s_lshl_b32 s10, s3, 2")
    A("v_add_u32 v25, s10, v25")
    A("ds_write_b32 v25, v8")
    A("s_waitcnt lgkmcnt(0)")
    A("s_barrier")
    A("s_cmp_lg_u32 s3, 0")
    A(f"s_cbranch_scc1 {name}_end")
    A("v_and_b32 v5, 7, v2")
    A("v_lshlrev_b32 v25, 4, v5")
    A("ds_read_b128 v[8:11], v25")
    A("ds_read_b128 v[12:15], v25 offset:128")
    A("s_waitcnt lgkmcnt(0)")
    A("v_add_f32 v8, v8, v9"); A("v_add_f32 v10, v10, v11"); A("v_add_f32 v8, v8, v10")
    A("v_add_f32 v12, v12, v13"); A("v_add_f32 v14, v14, v15"); A("v_add_f32 v12, v12, v14")
    bf16r(g, 8)
    bf16r(g, 12)
    v, t = 12, 16
    A(f"v_mul_f32 v{t}, {hex(LOG2E ^ 0x80000000)}, v{v}")
    A(f"v_exp_f32 v{t}, v{t}")
    g.nop(1)
    A(f"v_add_f32 v{t}, 1.0, v{t}")
    A(f"v_rcp_f32 v{t+1}, v{t}")
    g.nop(1)
    A(f"v_mul_f32 v{t+2}, v{v}, v{t+1}")
    A(f"v_fma_f32 v{t+3}, -v{t+2}, v{t}, v{v}")
    A(f"v_fma_f32 v{t+2}, v{t+3}, v{t+1}, v{t+2}")
    A(f"v_cmp_lt_f32 vcc, 0x7f000000, v{t}")
    A(f"v_mul_f32 v{t+3}, v{v}, v{t+1}")
    g.nop(1)
    A(f"v_cndmask_b32 v{v}, v{t+2}, v{t+3}, vcc")
    bf16r(g, v)
    A("v_mul_f32 v8, v8, v12")
    bf16r(g, 8)
    g.wait("x")
    A("v_lshlrev_b32 v24, 16, v24")
    A("v_add_f32 v8, v8, v24")
    A("v_cvt_pk_bf16_f32 v8, v8, v8")
    A("v_lshlrev_b32 v5, 1, v5")
    A("s_mov_b32 exec_lo, 0xff")
    A("s_mov_b32 exec_hi, 0")
    A("buffer_store_short v8, v5, s[28:31], 0 offen")
    g.label(name + "_end")
    A("s_endpgm")
    return 32, 256


def descriptor(name, nv, ns=102):
    nv = max(nv, 8)
    return f""".p2align 6
.amdhsa_kernel {name}
  .amdhsa_next_free_vgpr {nv}
  .amdhsa_next_free_sgpr {ns}
  .amdhsa_accum_offset {(nv + 3) // 4 * 4}
  .amdhsa_group_segment_fixed_size 0
  .amdhsa_kernarg_size 88
  .amdhsa_user_sgpr_count 2
  .amdhsa_user_sgpr_kernarg_segment_ptr 1
  .amdhsa_system_sgpr_workgroup_id_x 1
.end_amdhsa_kernel
"""


def build(**P):
    P.setdefault("name", KNAME)
    P.setdefault("name2", "final_reduce_kernel")
    g = Gen()
    nv1, lds1 = kernel_main(g, P)
    body1 = g.text()
    g2 = Gen()
    nv2, lds2 = kernel_reduce(g2, P)
    body2 = g2.text()
    out = HEADER
    out += f"; @launch kernel={P['name']} grid=(256,1,1) block=(512,1,1) lds={lds1}\n"
    out += f"; @launch kernel={P['name2']} grid=(64,1,1) block=(256,1,1) lds={lds2}\n"
    out += '.amdgcn_target "amdgcn-amd-amdhsa--gfx950"\n.text\n'
    out += f".globl {P['name']}\n.p2align 8\n.type {P['name']},@function\n" + body1
    out += f".globl {P['name2']}\n.p2align 8\n.type {P['name2']},@function\n" + body2
    out += '.section .rodata,"a"\n'
    out += descriptor(P["name"], nv1) + descriptor(P["name2"], nv2)
    return out


if __name__ == "__main__":
    P = {}
    for a in sys.argv[1:]:
        k, v = a.split("=", 1)
        try:
            v = eval(v)
        except Exception:
            pass
        P[k] = v
    sys.stdout.write(build(**P))
```

```python
import sys
from gen import Gen, vr, allreduce64, rows_allreduce, bf16r, srd, KNAME, HEADER, LOG2E, SCALE, EPS, NUNITS
from gen4 import G2, descriptor2

WS_EP = 0
WS_ML = 4096
WS_Y = 32768
WS_G = 32768 + (1 << 20)
WS_Q = 2 << 20
WS_H = (2 << 20) + (256 << 10)
WS_PROF = 4 << 20
W1_BYTES = 512 * 2752


def kernel(g, P):
    RING = 16
    KVF = P.get("kvflags", "nt")
    name = P["name"]
    PROF = P.get("prof", 0)
    SLEEP = P.get("sleep", 1)
    GPP = P.get("gpp", 8)
    NRED = 256 // GPP
    RED0 = P.get("red0", 256 - NRED)
    NV1 = P.get("nv1", 24)
    AUTO = P.get("auto", 40)
    PRE = P.get("pre", 2)
    HF = P.get("hflags", "sc0 sc1")
    NT = 16
    DEPTH = P.get("depth", 12)
    vTID = 0
    vL, vJ, vG = 1, 2, 3
    vM = 4
    vNo = 8
    vMx, vLs = 12, 13
    vQ = 14
    vD2 = 16
    vA = 20
    vD = 28
    vT = 32
    vCc = 62
    vWOo = 63
    vR = 64
    vW = 128
    nv = 256
    NACC = 256
    vSC = vT + 14

    def slot(j):
        return vR + 4 * (j % RING)

    vXA = vW
    vXM = vW + 4
    vWQ = vW + 8
    vW1 = vW + 24
    vW2 = vW + 40
    vQG = vW + 48
    vHG = vW + 56
    vWQo = vW + 60
    vW1o = vW + 61
    vHo = vW + 62
    Yg = vW + 64

    L_QP = 0
    L_HP = 2048
    L_QB = 4096
    L_MX = 5120
    L_RED = 5248
    L_Q2 = 6144
    L_YP = 8192
    L_OP = 16384
    L_OB = 18432
    lds = 20480

    A = g.A
    stamps = []

    def stamp():
        if PROF:
            k = len(stamps)
            A(f"s_memrealtime s[{76+2*k}:{77+2*k}]")
            stamps.append(k)

    sX, sK, sV, sWQ, sWO, sW1, sW2, sY, sGs = 28, 32, 36, 40, 44, 48, 52, 56, 60

    events = set()
    plan = []

    def kv_text(kind, i, t):
        sr = sK if kind == "k" else sV
        so = 64 + i // 4
        vo = vNo + i % 4
        dst = vr(slot(4 * i + t)) if kind == "k" else f"a[{16*i+4*t}:{16*i+4*t+3}]"
        return [f"buffer_load_dwordx4 {dst}, v{vo}, s[{sr}:{sr+3}], s{so} offen offset:{t*1024} {KVF}"]

    def K(i, cond=None):
        return [(cond, kv_text("k", i, t), ("k", i, t)) for t in range(4)]

    def V(j):
        return (None, kv_text("v", j // 4, j % 4), ("v", j))

    def WO(t):
        return ("w_free", [f"s_mov_b32 s69, {(t//4)*4096}", f"buffer_load_dwordx4 {vr(vW+4*t)}, v{vWOo}, s[{sWO}:{sWO+3}], s69 offen offset:{(t%4)*1024}"], ("wo", t))

    NVA = P.get("nva", 8)
    plan += K(0) + K(1)
    plan += [V(j) for j in range(NVA)]
    plan += K(2) + K(3)
    plan += [V(j) for j in range(NVA, NV1)]
    n_pre_qk = len(plan)
    rest = [WO(t) for t in range(32)]
    WO0 = P.get("wo0", 8)
    per = -(-32 // (NT - WO0))
    for i in range(4, NT):
        plan += K(i, ("kt", i - 4))
        if i >= WO0:
            for _ in range(per):
                if rest:
                    plan.append(rest.pop(0))
    plan += rest
    plan += [V(j) for j in range(NV1, 64)]
    st = {"next": 0}

    def pump(n, upto=None):
        done = 0
        while done < n and st["next"] < len(plan):
            if upto is not None and st["next"] >= upto:
                break
            cond, text, tag = plan[st["next"]]
            if cond is not None and cond not in events:
                break
            if DEPTH:
                g.pace(DEPTH)
            for s in text[:-1]:
                g.A(s)
            g.vmem(text[-1], tag)
            st["next"] += 1
            done += 1
        return done

    def issued_tags():
        return set(p[2] for p in plan[:st["next"]])

    limit = {"v": n_pre_qk}
    g.pump = lambda n: pump(n, limit["v"])

    g.label(name)
    stamp()
    A("s_load_dwordx8 s[4:11], s[0:1], 0")
    A("s_load_dwordx2 s[14:15], s[0:1], 80")
    A("s_load_dwordx4 s[16:19], s[0:1], 48")
    A("s_load_dwordx2 s[12:13], s[0:1], 32")
    A("s_load_dwordx2 s[70:71], s[0:1], 64")
    A("s_cmp_ge_u32 s2, 256")
    A(f"s_cbranch_scc1 {name}_end")
    A(f"v_lshrrev_b32 v{vT}, 6, v{vTID}")
    A(f"v_and_b32 v{vL}, 63, v{vTID}")
    A(f"v_readfirstlane_b32 s3, v{vT}")
    A(f"v_and_b32 v{vJ}, 15, v{vL}")
    A(f"v_lshrrev_b32 v{vG}, 4, v{vL}")
    A(f"v_lshlrev_b32 v{vNo}, 4, v{vL}")
    for b in range(1, 4):
        A(f"v_add_u32 v{vNo+b}, {b*16384}, v{vNo}")
    A("s_and_b32 s20, s2, 7")
    A("s_lshl_b32 s20, s20, 2")
    A("s_lshr_b32 s21, s2, 3")
    A("s_and_b32 s22, s21, 3")
    A("s_add_u32 s20, s20, s22")
    A("s_lshr_b32 s21, s2, 5")
    A("s_lshl_b32 s22, s20, 3")
    A("s_add_u32 s22, s22, s21")
    A("s_lshl_b32 s64, s3, 12")
    for a_ in range(1, 4):
        A(f"s_add_u32 s{64+a_}, s64, {a_*65536}")
    A("s_lshl_b32 s26, s22, 18")
    A(f"v_lshlrev_b32 v{vT}, 4, v{vJ}")
    A(f"v_lshl_add_u32 v{vWQo}, v{vG}, 15, v{vT}")
    A(f"v_lshl_add_u32 v{vWOo}, v{vG}, 15, v{vT}")
    A(f"v_mul_u32_u24 v{vW1o}, {4*2752}, v{vG}")
    A(f"v_add_u32 v{vW1o}, v{vW1o}, v{vT}")
    A(f"v_lshlrev_b32 v{vT+3}, 3, v{vG}")
    A("s_lshl_b32 s69, s21, 6")
    A("s_lshl_b32 s25, s3, 4")
    A("s_add_u32 s69, s69, s25")
    A("s_lshl_b32 s23, s69, 13")
    A("s_lshl_b32 s25, s20, 8")
    A("s_add_u32 s23, s23, s25")
    A("s_sub_u32 s27, 0x400000, s23")
    A("s_lshl_b32 s24, s69, 1")
    A("s_waitcnt lgkmcnt(0)")
    A(f"s_load_dword s72, s[14:15], {WS_EP}")
    srd(g, sX, 4, 5, None, 1024)
    g.vmem(f"buffer_load_dwordx4 {vr(vXA)}, v{vNo}, s[{sX}:{sX+3}], 0 offen", "xa")
    g.vmem(f"buffer_load_dwordx2 v[{vXM}:{vXM+1}], v{vT+3}, s[{sX}:{sX+3}], s24 offen", "xm")
    srd(g, sK, 6, 7, "s26", 262144)
    pump(4)
    srd(g, sWQ, 10, 11, "s23", "s27")
    for t in range(4):
        A(f"s_mov_b32 s68, {t*8192}")
        g.vmem(f"buffer_load_dwordx4 {vr(vWQ+4*t)}, v{vWQo}, s[{sWQ}:{sWQ+3}], s68 offen", ("wq", t))
    A("s_mul_i32 s23, s69, 2752")
    A("s_add_u32 s23, s23, s25")
    A(f"s_sub_u32 s27, {W1_BYTES}, s23")
    A("s_cmp_lt_u32 s20, 11")
    A("s_cselect_b32 s27, s27, 0")
    A("s_cselect_b32 s23, s23, 0")
    srd(g, sW1, 16, 17, "s23", "s27")
    for t in range(4):
        A(f"s_mov_b32 s68, {t*2752}")
        g.vmem(f"buffer_load_dwordx4 {vr(vW1+4*t)}, v{vW1o}, s[{sW1}:{sW1+3}], s68 offen", ("w1", t), real=False)
    srd(g, sV, 8, 9, "s26", 262144)
    pump(PRE)
    A("s_add_u32 s23, s20, 21")
    A("s_and_b32 s23, s23, 31")
    A("s_lshl_b32 s23, s23, 3")
    A("s_add_u32 s23, s23, s21")
    A(f"s_cmp_lt_u32 s23, {NUNITS}")
    A("s_cselect_b32 s25, 1, 0")
    A("s_cselect_b32 s23, s23, 0")
    if P.get("nog"): A("s_mov_b32 s25, 0")
    A("s_lshl_b32 s26, s23, 3")
    A("s_add_u32 s26, s26, s3")
    A("s_lshl_b32 s26, s26, 10")
    A("s_mul_i32 s27, s25, 5120")
    srd(g, sW2, 18, 19, "s26", "s27")
    A("s_lshl_b32 s26, s20, 17")
    A("s_lshl_b32 s27, s3, 8")
    A("s_add_u32 s26, s26, s27")
    A("s_sub_u32 s27, 0x400000, s26")
    if P.get("nowo"): A("s_mov_b32 s27, 0")
    srd(g, sWO, 12, 13, "s26", "s27")
    stamp()
    g.auto = AUTO
    A(f"v_and_b32 v{vT}, 1, v{vJ}")
    A(f"v_lshlrev_b32 v{vT}, 4, v{vT}")
    A(f"v_mov_b32 v{vT+1}, 0xffff")
    A(f"v_lshlrev_b32 v{vT+1}, v{vT}, v{vT+1}")
    A(f"v_bfe_u32 v{vT}, v{vJ}, 1, 2")
    for r in range(4):
        A(f"v_cmp_eq_u32 vcc, {r}, v{vT}")
        g.nop(2)
        A(f"v_cndmask_b32 v{vM+r}, 0, v{vT+1}, vcc")

    g.wait("xa")
    X = vT
    for k in range(4):
        A(f"v_lshlrev_b32 v{X+2*k}, 16, v{vXA+k}")
        A(f"v_and_b32 v{X+2*k+1}, 0xffff0000, v{vXA+k}")
    S, Tm = vT + 8, vT + 9
    A(f"v_add_f32 v{S}, v{X}, v{X+1}")
    for k in range(2, 8):
        A(f"v_add_f32 v{S}, v{S}, v{X+k}")
    allreduce64(g, "add", S, Tm)
    A(f"v_mul_f32 v{S}, 0x3b000000, v{S}")
    Q = vT + 10
    for k in range(8):
        A(f"v_sub_f32 v{X+k}, v{X+k}, v{S}")
    A(f"v_mul_f32 v{Q}, v{X}, v{X}")
    for k in range(1, 8):
        A(f"v_fmac_f32 v{Q}, v{X+k}, v{X+k}")
    allreduce64(g, "add", Q, Tm)
    A(f"v_mul_f32 v{Q}, 0x3b000000, v{Q}")
    bf16r(g, S)
    bf16r(g, Q)
    A(f"v_add_f32 v{Q}, {hex(EPS)}, v{Q}")
    bf16r(g, Q)
    A(f"v_sqrt_f32 v{Q}, v{Q}")
    g.nop(1)
    bf16r(g, Q)
    RS = vT + 11
    A(f"v_rcp_f32 v{RS}, v{Q}")
    g.nop(1)
    MEAN, SD = S, Q

    def normalize(src, t0, t1):
        A(f"v_sub_f32 v{src}, v{src}, v{MEAN}")
        bf16r(g, src)
        A(f"v_mul_f32 v{t0}, v{src}, v{RS}")
        A(f"v_fma_f32 v{t1}, -v{t0}, v{SD}, v{src}")
        A(f"v_fma_f32 v{t0}, v{t1}, v{RS}, v{t0}")

    vXP = vT + 14
    g.wait("xm")
    for k in range(2):
        A(f"v_lshlrev_b32 v{X}, 16, v{vXM+k}")
        A(f"v_and_b32 v{X+1}, 0xffff0000, v{vXM+k}")
        normalize(X, X + 2, X + 3)
        normalize(X + 1, X + 4, X + 5)
        A(f"v_cvt_pk_bf16_f32 v{vXP+2*k}, v{X+2}, v{X+2}")
        A(f"v_cvt_pk_bf16_f32 v{vXP+2*k+1}, v{X+4}, v{X+4}")

    def ands(src, aset):
        for r in range(4):
            A(f"v_and_b32 v{vA+4*aset+r}, v{vM+r}, v{src}")

    ands(vXP, 0)
    for t in range(4):
        if t < 3:
            ands(vXP + t + 1, (t + 1) % 2)
        else:
            g.nop(2)
        g.wait(("wq", t))
        c = "0" if t == 0 else vr(vD)
        A(f"v_mfma_f32_16x16x32_bf16 {vr(vD)}, {vr(vA+4*(t%2))}, {vr(vWQ+4*t)}, {c}")
        g.wait(("w1", t))
        c = "0" if t == 0 else vr(vD2)
        A(f"v_mfma_f32_16x16x32_bf16 {vr(vD2)}, {vr(vA+4*(t%2))}, {vr(vW1+4*t)}, {c}")
    aQ = vT + 6
    A(f"v_and_b32 v{aQ}, 1, v{vG}")
    A(f"v_lshlrev_b32 v{aQ}, 4, v{aQ}")
    A(f"v_lshl_add_u32 v{aQ}, v{vJ}, 5, v{aQ}")
    A("s_lshl_b32 s26, s3, 9")
    A(f"v_add_u32 v{aQ}, s26, v{aQ}")
    A("s_lshl_b32 s26, s22, 10")
    A(f"s_add_u32 s27, s26, {WS_Q}")
    A(f"s_add_u32 s26, s26, {WS_H}")
    A("s_cmp_eq_u32 s3, 0")
    A("s_cselect_b32 s26, s27, s26")
    A("s_cselect_b32 s27, 1024, 0")
    A("s_cselect_b32 s24, 0, 2048")
    A("s_cmp_eq_u32 s3, 1")
    A("s_cselect_b32 s68, 1024, 0")
    A("s_cmp_lt_u32 s20, 11")
    A("s_cselect_b32 s68, s68, 0")
    A("s_add_u32 s27, s27, s68")
    srd(g, sGs, 14, 15, "s26", "s27")
    A(f"ds_write_b128 v{aQ}, {vr(vD)} offset:{L_QP}")
    A(f"ds_write_b128 v{aQ}, {vr(vD2)} offset:{L_HP}")
    g.auto = 0
    aR = vT + 6
    A(f"v_lshlrev_b32 v{aR}, 3, v{vL}")
    A(f"v_add_u32 v{aR}, s24, v{aR}")
    A("s_waitcnt lgkmcnt(0)")
    A("s_barrier")
    stamp()
    QS = vT + 14
    for w in range(4):
        A(f"ds_read_b64 v[{QS+2*w}:{QS+2*w+1}], v{aR} offset:{L_QP + w*512}")
    A("s_mul_i32 s73, s72, 0x9E3779B1")
    A("s_add_u32 s73, s73, 0x7F4A7C15")
    A("s_mul_i32 s74, s72, 0x85EBCA77")
    A("s_add_u32 s74, s74, 0xC2B2AE3D")
    A("s_waitcnt lgkmcnt(0)")
    A(f"v_add_f32 v{QS}, v{QS}, v{QS+2}")
    A(f"v_add_f32 v{QS+1}, v{QS+1}, v{QS+3}")
    A(f"v_add_f32 v{QS+4}, v{QS+4}, v{QS+6}")
    A(f"v_add_f32 v{QS+5}, v{QS+5}, v{QS+7}")
    A(f"v_add_f32 v{QS}, v{QS}, v{QS+4}")
    A(f"v_add_f32 v{QS+2}, v{QS+1}, v{QS+5}")
    A(f"v_mov_b32 v{QS+1}, s73")
    A(f"v_mov_b32 v{QS+3}, s74")
    g.vmem(f"buffer_store_dwordx4 {vr(QS)}, v{vNo}, s[{sGs}:{sGs+3}], 0 offen {HF}", "qst")
    stamp()
    g.vmem(f"buffer_load_dwordx4 {vr(vW2)}, v{vNo}, s[{sW2}:{sW2+3}], 0 offen", "w2", real=False)
    A("s_movk_i32 s27, 4096")
    g.vmem(f"buffer_load_dwordx4 {vr(vW2+4)}, v{vNo}, s[{sW2}:{sW2+3}], s27 offen", "w2", real=False)
    pump(P.get("pre3", 12))
    A("s_lshl_b32 s26, s20, 13")
    A("s_lshl_b32 s27, s3, 11")
    A("s_add_u32 s26, s26, s27")
    A(f"s_add_u32 s26, s26, {WS_Q}")
    srd(g, sGs, 14, 15, "s26", 2048)
    g.vmem(f"buffer_load_dwordx4 {vr(vQG)}, v{vNo}, s[{sGs}:{sGs+3}], 0 offen {HF}", "qg")
    g.vmem(f"buffer_load_dwordx4 {vr(vQG+4)}, v{vNo}, s[{sGs}:{sGs+3}], 0 offen offset:1024 {HF}", "qg")
    pump(P.get("pre4", 16))
    A("s_mov_b32 s24, 0")
    g.wait("qg")
    g.label(name + "_qchk")
    A(f"v_xor_b32 v{vT}, s73, v{vQG+1}")
    A(f"v_xor_b32 v{vT+1}, s74, v{vQG+3}")
    A(f"v_xor_b32 v{vT+2}, s73, v{vQG+5}")
    A(f"v_xor_b32 v{vT+3}, s74, v{vQG+7}")
    A(f"v_or3_b32 v{vT}, v{vT}, v{vT+1}, v{vT+2}")
    A(f"v_or_b32 v{vT}, v{vT}, v{vT+3}")
    A(f"v_cmp_ne_u32 vcc, 0, v{vT}")
    A("s_add_u32 s24, s24, 1")
    if P.get("noqwait"): A(f"s_branch {name}_qok")
    A(f"s_cbranch_vccz {name}_qok")
    A("s_cmp_ge_u32 s24, 0x40000")
    A(f"s_cbranch_scc1 {name}_qok")
    A(f"buffer_load_dwordx4 {vr(vQG)}, v{vNo}, s[{sGs}:{sGs+3}], 0 offen {HF}")
    A(f"buffer_load_dwordx4 {vr(vQG+4)}, v{vNo}, s[{sGs}:{sGs+3}], 0 offen offset:1024 {HF}")
    A("s_waitcnt vmcnt(0)")
    A(f"s_branch {name}_qchk")
    g.label(name + "_qok")
    A(f"v_add_f32 v{vT}, v{vQG}, v{vQG+4}")
    A(f"v_add_f32 v{vT+1}, v{vQG+2}, v{vQG+6}")
    A(f"v_lshlrev_b32 v{aR}, 3, v{vL}")
    A("s_lshl_b32 s26, s3, 9")
    A(f"v_add_u32 v{vT+2}, s26, v{aR}")
    A(f"ds_write_b64 v{vT+2}, v[{vT}:{vT+1}] offset:{L_Q2}")
    A(f"v_bfe_u32 v{vHo}, v{vL}, 2, 3")
    A(f"v_lshlrev_b32 v{vHo}, 10, v{vHo}")
    A(f"v_and_b32 v{vT+3}, 3, v{vL}")
    A(f"v_lshl_add_u32 v{vHo}, v{vT+3}, 4, v{vHo}")
    A("s_lshr_b32 s26, s23, 4")
    A("s_lshl_b32 s26, s26, 13")
    A("s_and_b32 s27, s23, 15")
    A("s_lshl_b32 s27, s27, 6")
    A("s_add_u32 s26, s26, s27")
    A(f"s_add_u32 s26, s26, {WS_H}")
    A("s_mul_i32 s27, s25, 8192")
    srd(g, sW1, 14, 15, "s26", "s27")
    g.vmem(f"buffer_load_dwordx4 {vr(vHG)}, v{vHo}, s[{sW1}:{sW1+3}], 0 offen {HF}", "hg", real=False)
    pump(1000, n_pre_qk)
    A("s_waitcnt lgkmcnt(0)")
    A("s_barrier")
    stamp()
    for w in range(4):
        A(f"ds_read_b64 v[{QS+2*w}:{QS+2*w+1}], v{aR} offset:{L_Q2 + w*512}")
    A(f"v_lshlrev_b32 v{vT+2}, 2, v{vL}")
    A("s_lshl_b32 s26, s3, 8")
    A(f"v_add_u32 v{vT+2}, s26, v{vT+2}")
    A(f"v_lshlrev_b32 v{vT+3}, 4, v{vJ}")
    A(f"v_add_u32 v{vT+3}, s26, v{vT+3}")
    A("s_waitcnt lgkmcnt(0)")
    A(f"v_add_f32 v{QS}, v{QS}, v{QS+2}")
    A(f"v_add_f32 v{QS+1}, v{QS+1}, v{QS+3}")
    A(f"v_add_f32 v{QS+4}, v{QS+4}, v{QS+6}")
    A(f"v_add_f32 v{QS+5}, v{QS+5}, v{QS+7}")
    A(f"v_add_f32 v{QS}, v{QS}, v{QS+4}")
    A(f"v_add_f32 v{QS+1}, v{QS+1}, v{QS+5}")
    A(f"v_cvt_pk_bf16_f32 v{QS}, v{QS}, v{QS+1}")
    A(f"ds_write_b32 v{vT+2}, v{QS} offset:{L_QB}")
    A("s_waitcnt lgkmcnt(0)")
    A(f"ds_read_b128 {vr(vQ)}, v{vT+3} offset:{L_QB}")

    def silu(v, t):
        A(f"v_mul_f32 v{t}, {hex(LOG2E ^ 0x80000000)}, v{v}")
        A(f"v_exp_f32 v{t}, v{t}")
        g.nop(1)
        A(f"v_add_f32 v{t}, 1.0, v{t}")
        A(f"v_rcp_f32 v{t+1}, v{t}")
        g.nop(1)
        A(f"v_mul_f32 v{t+2}, v{v}, v{t+1}")
        A(f"v_fma_f32 v{t+3}, -v{t+2}, v{t}, v{v}")
        A(f"v_fma_f32 v{t+2}, v{t+3}, v{t+1}, v{t+2}")
        A(f"v_cmp_lt_f32 vcc, 0x7f000000, v{t}")
        A(f"v_mul_f32 v{t+3}, v{v}, v{t+1}")
        g.nop(1)
        A(f"v_cndmask_b32 v{v}, v{t+2}, v{t+3}, vcc")
        bf16r(g, v)

    a = [vT + 1, vT + 2, vT + 3, vT + 4]
    b0, b1 = vT + 5, vT + 6
    PQ = P.get("pq", 8)

    def qk(i):
        while ("k", i, 3) not in issued_tags():
            assert pump(1) == 1
        g.wait(("k", i, 3))
        for c in range(4):
            for t in range(4):
                if c == 0:
                    A(f"v_dot2_f32_bf16 v{a[t]}, v{slot(4*i+t)}, v{vQ}, 0")
                else:
                    A(f"v_dot2c_f32_bf16 v{a[t]}, v{slot(4*i+t)+c}, v{vQ+c}")
        events.add(("kt", i))
        pump(PQ if i < NT - 4 else P.get("pql", 4))
        A(f"v_add_f32_dpp v{b0}, v{a[0]}, v{a[0]} row_ror:8 row_mask:0xf bank_mask:0x3")
        A(f"v_add_f32_dpp v{b1}, v{a[1]}, v{a[1]} row_ror:8 row_mask:0xf bank_mask:0x3")
        A(f"v_add_f32_dpp v{b0}, v{a[2]}, v{a[2]} row_ror:8 row_mask:0xf bank_mask:0xc")
        A(f"v_add_f32_dpp v{b1}, v{a[3]}, v{a[3]} row_ror:8 row_mask:0xf bank_mask:0xc")
        g.nop(2)
        c_ = vSC + i
        A(f"v_add_f32_dpp v{c_}, v{b0}, v{b0} row_half_mirror row_mask:0xf bank_mask:0x5")
        A(f"v_add_f32_dpp v{c_}, v{b1}, v{b1} row_half_mirror row_mask:0xf bank_mask:0xa")
        g.nop(2)
        A(f"v_add_f32_dpp v{c_}, v{c_}, v{c_} quad_perm:[1,0,3,2] row_mask:0xf bank_mask:0xf")
        g.nop(2)
        A(f"v_add_f32_dpp v{c_}, v{c_}, v{c_} quad_perm:[2,3,0,1] row_mask:0xf bank_mask:0xf")
        bf16r(g, c_)
        A(f"v_mul_f32 v{c_}, {hex(SCALE)}, v{c_}")
        bf16r(g, c_)

    limit["v"] = None
    A("s_waitcnt lgkmcnt(0)")
    stamp()
    GT = P.get("gt", 3)
    for i in range(GT):
        qk(i)
    g.wait("hg")
    A("s_mov_b32 s24, 0")
    g.label(name + "_hchk")
    A(f"v_xor_b32 v{vT}, s73, v{vHG+1}")
    A(f"v_xor_b32 v{vT+1}, s74, v{vHG+3}")
    A(f"v_or_b32 v{vT}, v{vT}, v{vT+1}")
    A(f"v_cmp_ne_u32 vcc, 0, v{vT}")
    A("s_add_u32 s24, s24, 1")
    A(f"s_cbranch_vccz {name}_hok")
    A("s_cmp_eq_u32 s25, 0")
    A(f"s_cbranch_scc1 {name}_hok")
    A("s_cmp_ge_u32 s24, 0x40000")
    A(f"s_cbranch_scc1 {name}_hok")
    A(f"buffer_load_dwordx4 {vr(vHG)}, v{vHo}, s[{sW1}:{sW1+3}], 0 offen {HF}")
    A("s_waitcnt vmcnt(0)")
    A(f"s_branch {name}_hchk")
    g.label(name + "_hok")
    h0, h1 = vHG, vHG + 2
    for ctl in ("row_ror:4", "row_ror:8"):
        g.nop(1)
        A(f"v_add_f32_dpp v{h0}, v{h0}, v{h0} {ctl} row_mask:0xf bank_mask:0xf")
        A(f"v_add_f32_dpp v{h1}, v{h1}, v{h1} {ctl} row_mask:0xf bank_mask:0xf")
    A(f"v_mov_b32 v{vT}, v{h0}")
    A(f"v_mov_b32 v{vT+1}, v{h1}")
    g.nop(1)
    A(f"v_permlane16_swap_b32 v{h0}, v{vT}")
    A(f"v_permlane16_swap_b32 v{h1}, v{vT+1}")
    g.nop(1)
    A(f"v_add_f32 v{h0}, v{h0}, v{vT}")
    A(f"v_add_f32 v{h1}, v{h1}, v{vT+1}")
    A("s_and_b32 s26, s3, 1")
    A("s_cmp_eq_u32 s26, 1")
    A("s_cselect_b64 s[26:27], -1, 0")
    A("s_lshr_b32 s24, s3, 1")
    A("s_add_u32 s68, s24, 2")
    A(f"v_cndmask_b32 v{h0}, v{h0}, v{h1}, s[26:27]")
    g.nop(1)
    A(f"v_readlane_b32 s26, v{h0}, s24")
    A(f"v_readlane_b32 s27, v{h0}, s68")
    Ha, Hb = vT, vT + 7
    g.nop(2)
    A(f"v_mov_b32 v{Ha}, s26")
    A(f"v_mov_b32 v{Hb}, s27")
    bf16r(g, Ha)
    bf16r(g, Hb)
    silu(Ha, vT + 1)
    silu(Hb, vT + 1)
    g.wait("w2")
    for k in range(4):
        A(f"v_lshlrev_b32 v{Yg+2*k}, 16, v{vW2+k}")
        A(f"v_and_b32 v{Yg+2*k+1}, 0xffff0000, v{vW2+k}")
        A(f"v_lshlrev_b32 v{vT+8}, 16, v{vW2+4+k}")
        A(f"v_and_b32 v{vT+9}, 0xffff0000, v{vW2+4+k}")
        A(f"v_mul_f32 v{Yg+2*k}, v{Yg+2*k}, v{Ha}")
        A(f"v_mul_f32 v{Yg+2*k+1}, v{Yg+2*k+1}, v{Ha}")
        A(f"v_fmac_f32 v{Yg+2*k}, v{vT+8}, v{Hb}")
        A(f"v_fmac_f32 v{Yg+2*k+1}, v{vT+9}, v{Hb}")
    aY = vT + 1
    A(f"v_lshlrev_b32 v{aY}, 5, v{vL}")
    A("s_lshl_b32 s26, s3, 11")
    A(f"v_add_u32 v{aY}, s26, v{aY}")
    A(f"ds_write_b128 v{aY}, {vr(Yg)} offset:{L_YP}")
    A(f"ds_write_b128 v{aY}, {vr(Yg+4)} offset:{L_YP+16}")
    A("s_waitcnt lgkmcnt(0)")
    events.add("w_free")
    qk(GT)
    A("s_barrier")
    GS = vT + 6
    A(f"v_lshlrev_b32 v{vT}, 3, v{vTID}")
    for w in range(4):
        A(f"ds_read_b64 v[{GS+2*w}:{GS+2*w+1}], v{vT} offset:{L_YP + w*2048}")
    A(f"s_lshl_b32 s26, s23, 12")
    A(f"s_add_u32 s26, s26, {WS_G}")
    A("s_lshl_b32 s27, s25, 12")
    srd(g, sGs, 14, 15, "s26", "s27")
    A(f"v_lshlrev_b32 v{vT+1}, 4, v{vTID}")
    A("s_waitcnt lgkmcnt(0)")
    A(f"v_add_f32 v{GS}, v{GS}, v{GS+2}")
    A(f"v_add_f32 v{GS+1}, v{GS+1}, v{GS+3}")
    A(f"v_add_f32 v{GS+4}, v{GS+4}, v{GS+6}")
    A(f"v_add_f32 v{GS+5}, v{GS+5}, v{GS+7}")
    A(f"v_add_f32 v{GS}, v{GS}, v{GS+4}")
    A(f"v_add_f32 v{GS+2}, v{GS+1}, v{GS+5}")
    A(f"v_mov_b32 v{GS+1}, s73")
    A(f"v_mov_b32 v{GS+3}, s74")
    g.vmem(f"buffer_store_dwordx4 {vr(GS)}, v{vT+1}, s[{sGs}:{sGs+3}], 0 offen {HF}", "gst")
    for i in range(GT + 1, NT):
        qk(i)
    stamp()
    A(f"v_max3_f32 v{vMx}, v{vSC}, v{vSC+1}, v{vSC+2}")
    for k in range(3, NT - 1, 2):
        A(f"v_max3_f32 v{vMx}, v{vMx}, v{vSC+k}, v{vSC+k+1}")
    A(f"v_max_f32 v{vMx}, v{vMx}, v{vSC+NT-1}")
    for ctl in ("row_ror:4", "row_ror:8"):
        g.nop(2)
        A(f"v_max_f32_dpp v{vMx}, v{vMx}, v{vMx} {ctl} row_mask:0xf bank_mask:0xf")
    rows_allreduce(g, "max", vMx, vT)
    A("s_lshl_b32 s26, s3, 2")
    A(f"v_mov_b32 v{vT}, s26")
    A(f"ds_write_b32 v{vT}, v{vMx} offset:{L_MX}")
    pump(P.get("pm", 12))
    A("s_waitcnt lgkmcnt(0)")
    A("s_barrier")
    A(f"v_mov_b32 v{vT}, 0")
    A(f"ds_read_b128 {vr(vT+4)}, v{vT} offset:{L_MX}")
    A("s_lshl_b32 s26, s22, 2")
    A("s_add_u32 s26, s26, s3")
    A("s_lshl_b32 s26, s26, 4")
    A(f"s_add_u32 s26, s26, {WS_ML}")
    srd(g, sGs, 14, 15, "s26", 16)
    A(f"s_mov_b32 s26, {hex(LOG2E)}")
    A("s_waitcnt lgkmcnt(0)")
    A(f"v_max3_f32 v{vMx}, v{vT+4}, v{vT+5}, v{vT+6}")
    A(f"v_max_f32 v{vMx}, v{vMx}, v{vT+7}")
    A(f"v_mul_f32 v{vT}, s26, v{vMx}")
    for k in range(NT):
        A(f"v_fma_f32 v{vSC+k}, v{vSC+k}, s26, -v{vT}")
    for k in range(NT):
        A(f"v_exp_f32 v{vSC+k}, v{vSC+k}")
    A(f"v_mov_b32 v{vT+1}, s73")
    A(f"v_add_f32 v{vLs}, v{vSC}, v{vSC+1}")
    A(f"v_add_f32 v{vT+5}, v{vSC+2}, v{vSC+3}")
    for k in range(4, NT, 2):
        A(f"v_add_f32 v{vLs}, v{vLs}, v{vSC+k}")
        A(f"v_add_f32 v{vT+5}, v{vT+5}, v{vSC+k+1}")
    A(f"v_add_f32 v{vLs}, v{vLs}, v{vT+5}")
    for k in range(NT):
        A(f"v_cvt_pk_bf16_f32 v{vSC+k}, v{vSC+k}, v{vSC+k}")
        if k == 3:
            A(f"v_add_f32_dpp v{vLs}, v{vLs}, v{vLs} row_ror:4 row_mask:0xf bank_mask:0xf")
        if k == 7:
            A(f"v_add_f32_dpp v{vLs}, v{vLs}, v{vLs} row_ror:8 row_mask:0xf bank_mask:0xf")
    rows_allreduce(g, "add", vLs, vT + 5)
    A(f"v_mov_b32 v{vT}, v{vMx}")
    A(f"v_mov_b32 v{vT+2}, v{vLs}")
    A(f"v_mov_b32 v{vT+3}, s74")
    A(f"v_lshlrev_b32 v{vT+4}, 4, v{vL}")
    g.vmem(f"buffer_store_dwordx4 {vr(vT)}, v{vT+4}, s[{sGs}:{sGs+3}], 0 offen {HF}", "mlst")
    RML = vR
    vOm = vR + 41
    A("s_lshl_b32 s26, s20, 9")
    A(f"s_add_u32 s26, s26, {WS_ML}")
    srd(g, sK, 14, 15, "s26", 512)
    A(f"v_and_b32 v{vOm}, 31, v{vL}")
    A(f"v_lshlrev_b32 v{vOm}, 4, v{vOm}")
    left = len(plan) - st["next"]
    pump(max(0, left - P.get("mlafter", 8)))
    g.vmem(f"buffer_load_dwordx4 {vr(RML)}, v{vOm}, s[{sK}:{sK+3}], 0 offen {HF}", "mlg")
    pump(1000)
    stamp()
    def pand(tt):
        for r in range(4):
            A(f"v_and_b32_dpp v{vA+4*(tt%2)+r}, v{vSC+tt//4}, v{vM+r} row_newbcast:{4*(tt%4)} row_mask:0xf bank_mask:0xf")
    NV = 4 * NT
    RML = vR
    PPL = 256 // GPP
    NGL = (NUNITS + PPL - 1) // PPL
    RG = [vR + 4 + 4 * k for k in range(NGL)]
    assert 4 + 4 * NGL <= 40
    vOy, vOm, vDf, vXo = vR + 40, vR + 41, vR + 42, vR + 43
    vGm = vR + 44
    lg = {1: 0, 2: 1, 4: 2, 8: 3}[GPP]
    GLT = P.get("glt", 8)
    MLT = P.get("mlt", 52)

    cT = vR + 48
    def cfactor():
        g.wait("mlg")
        A("s_mov_b32 s24, 0")
        g.label(name + "_mlchk")
        A(f"v_xor_b32 v{cT}, s73, v{RML+1}")
        A(f"v_xor_b32 v{cT+1}, s74, v{RML+3}")
        A(f"v_or_b32 v{cT}, v{cT}, v{cT+1}")
        A(f"v_cmp_ne_u32 vcc, 0, v{cT}")
        A("s_add_u32 s24, s24, 1")
        if P.get("nomlwait"): A(f"s_branch {name}_mlok")
        A(f"s_cbranch_vccz {name}_mlok")
        A("s_cmp_ge_u32 s24, 0x40000")
        A(f"s_cbranch_scc1 {name}_mlok")
        A(f"buffer_load_dwordx4 {vr(RML)}, v{vOm}, s[{sK}:{sK+3}], 0 offen {HF}")
        A("s_waitcnt vmcnt(0)")
        A(f"s_branch {name}_mlchk")
        g.label(name + "_mlok")
        Mh, E_, L_, C_ = cT, cT + 1, cT + 2, vCc
        A(f"v_mov_b32 v{Mh}, v{RML}")
        for ctl in ("quad_perm:[1,0,3,2]", "quad_perm:[2,3,0,1]", "row_half_mirror", "row_mirror"):
            g.nop(2)
            A(f"v_max_f32_dpp v{Mh}, v{Mh}, v{Mh} {ctl} row_mask:0xf bank_mask:0xf")
        A(f"v_mov_b32 v{cT+3}, v{Mh}")
        g.nop(2)
        A(f"v_permlane16_swap_b32 v{Mh}, v{cT+3}")
        g.nop(1)
        A(f"v_max_f32 v{Mh}, v{Mh}, v{cT+3}")
        A(f"v_sub_f32 v{E_}, v{RML}, v{Mh}")
        A(f"v_sub_f32 v{C_}, v{vMx}, v{Mh}")
        A(f"v_mul_f32 v{E_}, {hex(LOG2E)}, v{E_}")
        A(f"v_mul_f32 v{C_}, {hex(LOG2E)}, v{C_}")
        A(f"v_exp_f32 v{E_}, v{E_}")
        A(f"v_exp_f32 v{C_}, v{C_}")
        g.nop(1)
        A(f"v_mul_f32 v{L_}, v{E_}, v{RML+2}")
        for ctl in ("quad_perm:[1,0,3,2]", "quad_perm:[2,3,0,1]", "row_half_mirror", "row_mirror"):
            g.nop(2)
            A(f"v_add_f32_dpp v{L_}, v{L_}, v{L_} {ctl} row_mask:0xf bank_mask:0xf")
        A(f"v_mov_b32 v{cT+3}, v{L_}")
        g.nop(2)
        A(f"v_permlane16_swap_b32 v{L_}, v{cT+3}")
        g.nop(1)
        A(f"v_add_f32 v{L_}, v{L_}, v{cT+3}")
        A(f"v_rcp_f32 v{cT+3}, v{L_}")
        g.nop(1)
        A(f"v_mul_f32 v{cT}, v{C_}, v{cT+3}")
        A(f"v_fma_f32 v{cT+1}, -v{cT}, v{L_}, v{C_}")
        A(f"v_fma_f32 v{C_}, v{cT+1}, v{cT+3}, v{cT}")

    pand(0)
    for t in range(NV):
        if t + 1 < NV:
            pand(t + 1)
        else:
            g.nop(2)
        g.wait(("v", t))
        c = "0" if t == 0 else vr(vD)
        A(f"v_mfma_f32_16x16x32_bf16 {vr(vD)}, {vr(vA+4*(t%2))}, a[{4*t}:{4*t+3}], {c}")
        if t == GLT:
            A(f"v_lshrrev_b32 v{vT}, {lg}, v{vTID}")
            A(f"v_and_b32 v{vT+1}, {GPP-1}, v{vTID}")
            A(f"v_lshlrev_b32 v{vT+1}, 4, v{vT+1}")
            A(f"v_lshl_add_u32 v{vOy}, v{vT}, 12, v{vT+1}")
            klast = NGL - 1
            A(f"v_cmp_gt_u32 vcc, {NUNITS - klast*PPL}, v{vT}")
            A(f"v_mov_b32 v{vGm}, 0")
            g.nop(1)
            A(f"v_cndmask_b32 v{vGm}, v{vGm}, -1, vcc")
            A(f"s_sub_u32 s24, s2, {RED0}")
            A(f"s_cmp_lt_u32 s24, {NRED}")
            A(f"s_cselect_b32 s21, 1, 0")
            A(f"s_cselect_b32 s24, s24, 0")
            A(f"s_lshl_b32 s26, s24, {4+lg}")
            A(f"s_add_u32 s27, s26, {WS_G}")
            A(f"s_sub_u32 s24, {NUNITS*4096}, s26")
            A(f"s_mul_i32 s24, s24, s21")
            srd(g, sW1, 14, 15, "s27", "s24")
            for k in range(NGL):
                A(f"s_mov_b32 s26, {k*PPL*4096}")
                g.vmem(f"buffer_load_dwordx4 {vr(RG[k])}, v{vOy}, s[{sW1}:{sW1+3}], s26 offen {HF}", "gg", real=False)
            A(f"v_and_b32 v{vT+8}, 1, v{vG}")
            A(f"v_lshlrev_b32 v{vT+8}, 4, v{vT+8}")
            A(f"v_lshl_add_u32 v{vT+8}, v{vJ}, 5, v{vT+8}")
            A("s_lshl_b32 s26, s3, 9")
            A(f"v_add_u32 v{vT+8}, s26, v{vT+8}")
            A(f"v_lshlrev_b32 v{vT+9}, 3, v{vL}")
            A(f"v_add_u32 v{vT+1}, s26, v{vT+9}")
            A(f"v_lshlrev_b32 v{vT+2}, 7, v{vG}")
            A(f"v_add_u32 v{vT+2}, s26, v{vT+2}")
            A(f"v_mov_b32 v{vT+5}, s73")
            A(f"v_mov_b32 v{vT+7}, s74")
            A(f"v_and_b32 v{vT+10}, 1, v{vG}")
            A(f"v_lshlrev_b32 v{vT+10}, 5, v{vT+10}")
            A(f"v_lshl_add_u32 v{vT+10}, v{vJ}, 6, v{vT+10}")
            A(f"v_lshrrev_b32 v{vT+11}, 1, v{vG}")
            A(f"v_lshl_add_u32 v{vT+10}, v{vT+11}, 4, v{vT+10}")
            A("s_lshl_b32 s26, s22, 12")
            A("s_lshl_b32 s27, s3, 10")
            A("s_add_u32 s26, s26, s27")
            A(f"s_add_u32 s26, s26, {WS_Y}")
            srd(g, sY, 14, 15, "s26", 1024)
            A(f"v_cmp_lt_u32 s[74+22:74+23], v{vL}, 32".replace("74+22", "96").replace("74+23", "97") if not PROF else f"v_cmp_lt_u32 s[26:27], v{vL}, 32")
        if t == MLT:
            cfactor()
    assert st["next"] == len(plan), (st["next"], len(plan))
    sLo = "s[96:97]" if not PROF else "s[26:27]"
    stamp()
    aQ, GR, vSA = vT + 8, vT + 4, vT + 10
    g.nop(8)
    A(f"ds_write_b128 v{aQ}, {vr(vD)} offset:{L_OP}")
    A("s_waitcnt lgkmcnt(0)")
    A("s_barrier")
    O4 = vR + 48
    for w in range(4):
        A(f"ds_read_b64 v[{O4+2*w}:{O4+2*w+1}], v{vT+9} offset:{L_OP + w*512}")
    A("s_waitcnt lgkmcnt(0)")
    A(f"v_add_f32 v{O4}, v{O4}, v{O4+2}")
    A(f"v_add_f32 v{O4+1}, v{O4+1}, v{O4+3}")
    A(f"v_add_f32 v{O4+4}, v{O4+4}, v{O4+6}")
    A(f"v_add_f32 v{O4+5}, v{O4+5}, v{O4+7}")
    A(f"v_add_f32 v{O4}, v{O4}, v{O4+4}")
    A(f"v_add_f32 v{O4+1}, v{O4+1}, v{O4+5}")
    A(f"v_cvt_pk_bf16_f32 v{O4}, v{O4}, v{O4}")
    A(f"v_cvt_pk_bf16_f32 v{O4+1}, v{O4+1}, v{O4+1}")
    A(f"ds_write_b64 v{vT+1}, v[{O4}:{O4+1}] offset:{L_OB}")
    A("s_waitcnt lgkmcnt(0)")
    ODr = [vSC + k for k in range(16)] + [vR + 48 + k for k in range(16)]
    for k in range(8):
        A(f"ds_read_b128 {vr(ODr[4*k])}, v{vT+2} offset:{L_OB+16*k}")

    def wand(t):
        for r in range(4):
            A(f"v_and_b32 v{vA+4*(t%2)+r}, v{vM+r}, v{ODr[t]}")
    A("s_waitcnt lgkmcnt(7)")
    wand(0)
    for t in range(32):
        if t + 1 < 32:
            if (t + 1) % 4 == 0:
                A(f"s_waitcnt lgkmcnt({7 - (t+1)//4})")
            wand(t + 1)
        else:
            g.nop(2)
        g.wait(("wo", t))
        c = "0" if t == 0 else vr(vD)
        A(f"v_mfma_f32_16x16x32_bf16 {vr(vD)}, {vr(vA+4*(t%2))}, {vr(vW+4*t)}, {c}")
    stamp()
    if PROF:
        A(f"v_cmp_lt_u32 s[26:27], v{vL}, 32")
        g.nop(2)
    g.wait("gg")
    g.nop(8)
    A(f"v_cndmask_b32 v{GR}, v{vD+2}, v{vD}, {sLo}")
    A(f"v_cndmask_b32 v{GR+2}, v{vD+3}, v{vD+1}, {sLo}")
    A(f"v_mul_f32 v{GR}, v{GR}, v{vCc}")
    A(f"v_mul_f32 v{GR+2}, v{GR+2}, v{vCc}")
    g.vmem(f"buffer_store_dwordx4 {vr(GR)}, v{vSA}, s[{sY}:{sY+3}], 0 offen {HF}", "yst")
    stamp()
    if P.get("nofinal"):
        A(f"s_branch {name}_fin")
    A(f"s_sub_u32 s21, s2, {RED0}")
    A(f"s_cmp_ge_u32 s21, {NRED}")
    A(f"s_cbranch_scc1 {name}_fin")
    RY = [vW + 4 * k for k in range(GPP)]
    A(f"s_lshl_b32 s26, s21, {4+lg}")
    A(f"s_add_u32 s27, s26, {WS_Y}")
    A(f"s_sub_u32 s24, {256*4096}, s26")
    srd(g, sY, 14, 15, "s27", "s24")

    def ypoll():
        for k in range(GPP):
            A(f"s_mov_b32 s26, {k*PPL*4096}")
            A(f"buffer_load_dwordx4 {vr(RY[k])}, v{vOy}, s[{sY}:{sY+3}], s26 offen {HF}")
    A(f"s_lshl_b32 s27, s21, {2+lg}")
    srd(g, sV, 4, 5, "s27", 4 * GPP)
    srd(g, sWQ, 70, 71, "s27", 4 * GPP)
    A(f"v_and_b32 v{vT+2}, {2*GPP-1}, v{vL}")
    A(f"v_lshlrev_b32 v{vT+2}, 1, v{vT+2}")
    A(f"buffer_load_ushort v{vXo}, v{vT+2}, s[{sV}:{sV+3}], 0 offen")
    A("s_mov_b32 s24, 0")
    g.label(name + "_gchk")
    for k in range(NGL):
        A(f"v_xor_b32 v{vT}, s73, v{RG[k]+1}")
        A(f"v_xor_b32 v{vT+1}, s74, v{RG[k]+3}")
        if k == 0:
            A(f"v_or_b32 v{vDf}, v{vT}, v{vT+1}")
        elif k < NGL - 1:
            A(f"v_or3_b32 v{vDf}, v{vDf}, v{vT}, v{vT+1}")
        else:
            A(f"v_or_b32 v{vT}, v{vT}, v{vT+1}")
            A(f"v_and_or_b32 v{vDf}, v{vT}, v{vGm}, v{vDf}")
    A(f"v_cmp_ne_u32 vcc, 0, v{vDf}")
    A("s_add_u32 s24, s24, 1")
    A(f"s_cbranch_vccz {name}_gok")
    A("s_cmp_ge_u32 s24, 0x40000")
    A(f"s_cbranch_scc1 {name}_gok")
    for k in range(NGL):
        A(f"s_mov_b32 s26, {k*PPL*4096}")
        A(f"buffer_load_dwordx4 {vr(RG[k])}, v{vOy}, s[{sW1}:{sW1+3}], s26 offen {HF}")
    A("s_waitcnt vmcnt(0)")
    A(f"s_branch {name}_gchk")
    g.label(name + "_gok")
    a0, a1, a2, a3 = vT + 8, vT + 9, vT + 10, vT + 11
    A(f"v_mov_b32 v{a2}, v{RG[0]}")
    A(f"v_mov_b32 v{a3}, v{RG[0]+2}")
    for k in range(1, NGL):
        A(f"v_add_f32 v{a2}, v{a2}, v{RG[k]}")
        A(f"v_add_f32 v{a3}, v{a3}, v{RG[k]+2}")
    A("s_mov_b32 s24, 0")
    g.label(name + "_poll")
    ypoll()
    A("s_waitcnt vmcnt(0)")
    for k in range(GPP):
        A(f"v_xor_b32 v{vT}, s73, v{RY[k]+1}")
        A(f"v_xor_b32 v{vT+1}, s74, v{RY[k]+3}")
        if k == 0:
            A(f"v_or_b32 v{vDf}, v{vT}, v{vT+1}")
        else:
            A(f"v_or3_b32 v{vDf}, v{vDf}, v{vT}, v{vT+1}")
    A(f"v_cmp_ne_u32 vcc, 0, v{vDf}")
    A("s_add_u32 s24, s24, 1")
    A("s_and_b64 exec, exec, vcc")
    A(f"s_cbranch_execz {name}_got")
    A(f"s_cmp_ge_u32 s24, 0x40000")
    A(f"s_cbranch_scc1 {name}_got")
    if SLEEP:
        A(f"s_sleep {SLEEP}")
    A(f"s_branch {name}_poll")
    g.label(name + "_got")
    A("s_mov_b64 exec, -1")
    A(f"v_add_f32 v{a0}, v{RY[0]}, v{RY[1]}")
    A(f"v_add_f32 v{a1}, v{RY[0]+2}, v{RY[1]+2}")
    for k in range(2, GPP):
        A(f"v_add_f32 v{a0}, v{a0}, v{RY[k]}")
        A(f"v_add_f32 v{a1}, v{a1}, v{RY[k]+2}")
    g.nop(2)
    A(f"v_permlane32_swap_b32 v{a0}, v{a2}")
    A(f"v_permlane32_swap_b32 v{a1}, v{a3}")
    g.nop(1)
    A(f"v_add_f32 v{a0}, v{a0}, v{a2}")
    A(f"v_add_f32 v{a1}, v{a1}, v{a3}")
    g.nop(2)
    A(f"v_permlane16_swap_b32 v{a0}, v{a1}")
    g.nop(1)
    A(f"v_add_f32 v{a0}, v{a0}, v{a1}")
    rot = [r for r in (8, 4, 2, 1) if r >= GPP]
    for r in rot:
        g.nop(2)
        A(f"v_add_f32_dpp v{a0}, v{a0}, v{a0} row_ror:{r} row_mask:0xf bank_mask:0xf")
    A(f"v_and_b32 v{vT+12}, {GPP-1}, v{vL}")
    A(f"v_lshl_add_u32 v{vT+12}, v{vG}, {lg}, v{vT+12}")
    A(f"v_lshlrev_b32 v{vT+12}, 4, v{vT+12}")
    A("s_lshl_b32 s26, s3, 2")
    A(f"v_add_u32 v{vT+12}, s26, v{vT+12}")
    A(f"ds_write_b32 v{vT+12}, v{a0} offset:{L_RED}")
    A("s_waitcnt lgkmcnt(0)")
    A("s_barrier")
    A("s_cmp_lg_u32 s3, 0")
    A(f"s_cbranch_scc1 {name}_fin")
    A(f"v_and_b32 v{vT}, 1, v{vL}")
    A(f"v_bfe_u32 v{vT+1}, v{vL}, 1, {max(lg,1)}")
    A(f"v_lshl_add_u32 v{vT}, v{vT}, {lg}, v{vT+1}")
    A(f"v_lshlrev_b32 v{vT}, 4, v{vT}")
    A(f"ds_read_b128 {vr(vT+4)}, v{vT} offset:{L_RED}")
    A(f"ds_read_b128 {vr(vT+12)}, v{vT} offset:{L_RED+2*GPP*16}")
    A("s_waitcnt lgkmcnt(0)")
    for k in range(1, 4):
        A(f"v_add_f32 v{vT+4}, v{vT+4}, v{vT+4+k}")
        A(f"v_add_f32 v{vT+12}, v{vT+12}, v{vT+12+k}")
    sv, gv = vT + 4, vT + 12
    bf16r(g, sv)
    bf16r(g, gv)
    silu(gv, vT + 20)
    A(f"v_mul_f32 v{sv}, v{sv}, v{gv}")
    bf16r(g, sv)
    A(f"v_lshlrev_b32 v{vXo}, 16, v{vXo}")
    A(f"v_add_f32 v{sv}, v{sv}, v{vXo}")
    A(f"v_cvt_pk_bf16_f32 v{sv}, v{sv}, v{sv}")
    A(f"v_and_b32 v{vT+2}, {2*GPP-1}, v{vL}")
    A(f"v_lshlrev_b32 v{vT+2}, 1, v{vT+2}")
    A(f"s_mov_b32 exec_lo, {(1 << (2*GPP)) - 1}")
    A("s_mov_b32 exec_hi, 0")
    A(f"buffer_store_short v{sv}, v{vT+2}, s[{sWQ}:{sWQ+3}], 0 offen {P.get('outflags', 'sc0 sc1')}")
    A(f"s_cmp_lg_u32 s21, 0")
    A(f"s_cbranch_scc1 {name}_fin")
    A(f"s_mov_b32 s27, {WS_EP}")
    srd(g, sGs, 14, 15, "s27", 4)
    A("s_mov_b32 exec_lo, 1")
    A(f"v_mov_b32 v{vT}, s73")
    A(f"v_mov_b32 v{vT+1}, 0")
    A(f"buffer_store_dword v{vT}, v{vT+1}, s[{sGs}:{sGs+3}], 0 offen sc0 sc1")
    g.label(name + "_fin")
    if PROF:
        A("s_cmp_lg_u32 s3, 0")
        A(f"s_cbranch_scc1 {name}_end")
        A("s_waitcnt vmcnt(0)")
        stamp()
        A("s_waitcnt lgkmcnt(0)")
        A("s_lshl_b32 s26, s2, 8")
        A(f"s_add_u32 s26, s26, {WS_PROF}")
        srd(g, sGs, 14, 15, "s26", 256)
        A("s_mov_b32 exec_lo, 1")
        A("s_mov_b32 exec_hi, 0")
        A(f"v_mov_b32 v{vT+2}, 0")
        for k in stamps:
            A(f"v_mov_b32 v{vT}, s{76+2*k}")
            A(f"v_mov_b32 v{vT+1}, s{77+2*k}")
            A(f"buffer_store_dwordx2 v[{vT}:{vT+1}], v{vT+2}, s[{sGs}:{sGs+3}], 0 offen offset:{8*k}")
            A("s_nop 2")
    g.label(name + "_end")
    A("s_endpgm")
    assert len(stamps) <= 12
    return nv, NACC, lds


def build(**P):
    P.setdefault("name", KNAME)
    g = G2()
    nv1, nacc, lds1 = kernel(g, P)
    body1 = g.text()
    out = HEADER
    out += f"; @launch grid=(256,1,1) block=(256,1,1) lds={lds1}\n"
    out += '.amdgcn_target "amdgcn-amd-amdhsa--gfx950"\n.text\n'
    out += f".globl {P['name']}\n.p2align 8\n.type {P['name']},@function\n" + body1
    out += '.section .rodata,"a"\n'
    out += descriptor2(P["name"], nv1, nacc)
    return out


if __name__ == "__main__":
    P = {}
    for a in sys.argv[1:]:
        k, v = a.split("=", 1)
        try:
            v = eval(v)
        except Exception:
            pass
        P[k] = v
    sys.stdout.write(build(**P))
```

```python
import sys
from gen import Gen, vr, allreduce64, rows_allreduce, bf16r, srd, KNAME, HEADER, LOG2E, SCALE, EPS, NUNITS
from gen4 import G2, descriptor2

WS_EP = 0
WS_ML = 4096
WS_Y = 32768
WS_G = 32768 + (1 << 20)
WS_Q = 2 << 20
WS_H = (2 << 20) + (256 << 10)
WS_PROF = 4 << 20
W1_BYTES = 512 * 2752


def kernel(g, P):
    RING = 16
    KVF = P.get("kvflags", "nt")
    name = P["name"]
    PROF = P.get("prof", 0)
    SLEEP = P.get("sleep", 1)
    GPP = P.get("gpp", 8)
    NRED = 256 // GPP
    RED0 = P.get("red0", 256 - NRED)
    NV1 = P.get("nv1", 24)
    AUTO = P.get("auto", 40)
    PRE = P.get("pre", 4)
    HF = P.get("hflags", "sc0 sc1")
    NT = 16
    DEPTH = P.get("depth", 12)
    vTID = 0
    vL, vJ, vG = 1, 2, 3
    vM = 4
    vNo = 8
    vMx, vLs = 12, 13
    vQ = 14
    vD2 = 16
    vA = 20
    vD = 28
    vT = 32
    vCc = 62
    vWOo = 63
    vR = 64
    vW = 128
    nv = 256
    NACC = 256
    vSC = vT + 14

    def slot(j):
        return vR + 4 * (j % RING)

    vXA = vW
    vXM = vW + 4
    vWQ = vW + 8
    vW1 = vW + 24
    vW2 = vW + 40
    vQG = vW + 48
    vHG = vW + 56
    vWQo = vW + 60
    vW1o = vW + 61
    vHo = vW + 62
    Yg = vW + 64

    L_QP = 0
    L_HP = 2048
    L_QB = 4096
    L_MX = 5120
    L_RED = 5248
    L_Q2 = 6144
    L_YP = 8192
    L_OP = 16384
    L_OB = 18432
    lds = 20480

    A = g.A
    stamps = []

    def stamp():
        if PROF:
            k = len(stamps)
            A(f"s_memrealtime s[{76+2*k}:{77+2*k}]")
            stamps.append(k)

    sX, sK, sV, sWQ, sWO, sW1, sW2, sY, sGs = 28, 32, 36, 40, 44, 48, 52, 56, 60

    events = set()
    plan = []

    def kv_text(kind, i, t):
        sr = sK if kind == "k" else sV
        so = 64 + i // 4
        vo = vNo + i % 4
        dst = vr(slot(4 * i + t)) if kind == "k" else f"a[{16*i+4*t}:{16*i+4*t+3}]"
        return [f"buffer_load_dwordx4 {dst}, v{vo}, s[{sr}:{sr+3}], s{so} offen offset:{t*1024} {KVF}"]

    def K(i, cond=None):
        return [(cond, kv_text("k", i, t), ("k", i, t)) for t in range(4)]

    def V(j):
        return (None, kv_text("v", j // 4, j % 4), ("v", j))

    def WO(t):
        return ("w_free", [f"s_mov_b32 s69, {(t//4)*4096}", f"buffer_load_dwordx4 {vr(vW+4*t)}, v{vWOo}, s[{sWO}:{sWO+3}], s69 offen offset:{(t%4)*1024}"], ("wo", t))

    NVA = P.get("nva", 8)
    plan += K(0) + K(1)
    plan += [V(j) for j in range(NVA)]
    plan += K(2) + K(3)
    plan += [V(j) for j in range(NVA, NV1)]
    n_pre_qk = len(plan)
    rest = [WO(t) for t in range(32)]
    WO0 = P.get("wo0", 8)
    per = -(-32 // (NT - WO0))
    vnext = [NV1]
    WOLAST = P.get("wolast", 0)
    early = rest[:32 - WOLAST]
    late = rest[32 - WOLAST:]
    per = -(-len(early) // (NT - WO0)) if early else 0
    for i in range(4, NT):
        plan += K(i, ("kt", i - 4))
        if i >= WO0:
            for _ in range(per):
                if early:
                    plan.append(early.pop(0))
        for _ in range(P.get("vq", 0)):
            plan.append(V(vnext[0])); vnext[0] += 1
    plan += early
    plan += [V(j) for j in range(vnext[0], 64)]
    plan += late
    st = {"next": 0}

    def pump(n, upto=None):
        done = 0
        while done < n and st["next"] < len(plan):
            if upto is not None and st["next"] >= upto:
                break
            cond, text, tag = plan[st["next"]]
            if cond is not None and cond not in events:
                break
            if DEPTH:
                g.pace(DEPTH)
            for s in text[:-1]:
                g.A(s)
            g.vmem(text[-1], tag)
            st["next"] += 1
            done += 1
        return done

    def issued_tags():
        return set(p[2] for p in plan[:st["next"]])

    limit = {"v": n_pre_qk}
    g.pump = lambda n: pump(n, limit["v"])

    g.label(name)
    stamp()
    if P.get("dbg"):
        A("s_memrealtime s[76:77]")
    A("s_load_dwordx8 s[4:11], s[0:1], 0")
    A("s_load_dwordx2 s[14:15], s[0:1], 80")
    A("s_load_dwordx4 s[16:19], s[0:1], 48")
    A("s_cmp_ge_u32 s2, 256")
    A(f"s_cbranch_scc1 {name}_end")
    A(f"v_lshrrev_b32 v{vT}, 6, v{vTID}")
    A(f"v_and_b32 v{vL}, 63, v{vTID}")
    A("s_and_b32 s20, s2, 7")
    A(f"v_readfirstlane_b32 s3, v{vT}")
    A(f"v_lshlrev_b32 v{vNo}, 4, v{vL}")
    A("s_lshl_b32 s20, s20, 2")
    A("s_bfe_u32 s22, s2, 0x20003")
    A("s_add_u32 s20, s20, s22")
    A("s_lshr_b32 s21, s2, 5")
    A("s_lshl_b32 s22, s20, 3")
    A("s_add_u32 s22, s22, s21")
    A("s_lshl_b32 s26, s22, 18")
    A("s_lshl_b32 s64, s3, 12")
    A(f"v_add_u32 v{vNo+1}, 16384, v{vNo}")
    A(f"v_add_u32 v{vNo+2}, 32768, v{vNo}")
    A(f"s_mov_b32 s{sK+2}, 262144")
    A(f"s_mov_b32 s{sK+3}, 0x00020000")
    A("s_waitcnt lgkmcnt(0)")
    A(f"s_add_u32 s{sK}, s6, s26")
    A(f"s_addc_u32 s{sK+1}, s7, 0")
    pump(4)
    srd(g, sX, 4, 5, None, 1024)
    A(f"v_lshrrev_b32 v{vG}, 4, v{vL}")
    A("s_lshl_b32 s69, s21, 6")
    A("s_lshl_b32 s25, s3, 4")
    A("s_add_u32 s69, s69, s25")
    A(f"v_lshlrev_b32 v{vT+3}, 3, v{vG}")
    A("s_lshl_b32 s24, s69, 1")
    g.vmem(f"buffer_load_dwordx4 {vr(vXA)}, v{vNo}, s[{sX}:{sX+3}], 0 offen", "xa")
    g.vmem(f"buffer_load_dwordx2 v[{vXM}:{vXM+1}], v{vT+3}, s[{sX}:{sX+3}], s24 offen", "xm")
    pump(4)
    A("s_load_dwordx2 s[12:13], s[0:1], 32")
    A("s_load_dwordx2 s[70:71], s[0:1], 64")
    A(f"s_load_dword s72, s[14:15], {WS_EP}")
    A(f"v_and_b32 v{vJ}, 15, v{vL}")
    A(f"v_lshlrev_b32 v{vT}, 4, v{vJ}")
    A(f"v_lshl_add_u32 v{vWQo}, v{vG}, 15, v{vT}")
    A("s_lshl_b32 s23, s69, 13")
    A("s_lshl_b32 s25, s20, 8")
    A("s_add_u32 s23, s23, s25")
    A("s_sub_u32 s27, 0x400000, s23")
    srd(g, sWQ, 10, 11, "s23", "s27")
    for t in range(4):
        A(f"s_mov_b32 s68, {t*8192}")
        g.vmem(f"buffer_load_dwordx4 {vr(vWQ+4*t)}, v{vWQo}, s[{sWQ}:{sWQ+3}], s68 offen", ("wq", t))
    srd(g, sV, 8, 9, "s26", 262144)
    pump(PRE)
    A(f"v_add_u32 v{vNo+3}, 49152, v{vNo}")
    for a_ in range(1, 4):
        A(f"s_add_u32 s{64+a_}, s64, {a_*65536}")
    A(f"v_lshl_add_u32 v{vWOo}, v{vG}, 15, v{vT}")
    A(f"v_mul_u32_u24 v{vW1o}, {4*2752}, v{vG}")
    A(f"v_add_u32 v{vW1o}, v{vW1o}, v{vT}")
    A("s_mul_i32 s23, s69, 2752")
    A("s_add_u32 s23, s23, s25")
    A(f"s_sub_u32 s27, {W1_BYTES}, s23")
    A("s_cmp_lt_u32 s20, 11")
    A("s_cselect_b32 s27, s27, 0")
    A("s_cselect_b32 s23, s23, 0")
    srd(g, sW1, 16, 17, "s23", "s27")
    for t in range(4):
        A(f"s_mov_b32 s68, {t*2752}")
        g.vmem(f"buffer_load_dwordx4 {vr(vW1+4*t)}, v{vW1o}, s[{sW1}:{sW1+3}], s68 offen", ("w1", t), real=False)
    A("s_waitcnt lgkmcnt(0)")
    A("s_add_u32 s23, s20, 21")
    A("s_and_b32 s23, s23, 31")
    A("s_lshl_b32 s23, s23, 3")
    A("s_add_u32 s23, s23, s21")
    A(f"s_cmp_lt_u32 s23, {NUNITS}")
    A("s_cselect_b32 s25, 1, 0")
    A("s_cselect_b32 s23, s23, 0")
    if P.get("nog"): A("s_mov_b32 s25, 0")
    A("s_lshl_b32 s26, s23, 3")
    A("s_add_u32 s26, s26, s3")
    A("s_lshl_b32 s26, s26, 10")
    A("s_mul_i32 s27, s25, 5120")
    srd(g, sW2, 18, 19, "s26", "s27")
    A("s_lshl_b32 s26, s20, 17")
    A("s_lshl_b32 s27, s3, 8")
    A("s_add_u32 s26, s26, s27")
    A("s_sub_u32 s27, 0x400000, s26")
    if P.get("nowo"): A("s_mov_b32 s27, 0")
    srd(g, sWO, 12, 13, "s26", "s27")
    stamp()
    g.auto = AUTO
    A(f"v_and_b32 v{vT}, 1, v{vJ}")
    A(f"v_lshlrev_b32 v{vT}, 4, v{vT}")
    A(f"v_mov_b32 v{vT+1}, 0xffff")
    A(f"v_lshlrev_b32 v{vT+1}, v{vT}, v{vT+1}")
    A(f"v_bfe_u32 v{vT}, v{vJ}, 1, 2")
    for r in range(4):
        A(f"v_cmp_eq_u32 vcc, {r}, v{vT}")
        g.nop(2)
        A(f"v_cndmask_b32 v{vM+r}, 0, v{vT+1}, vcc")

    g.wait("xa")
    X = vT
    for k in range(4):
        A(f"v_lshlrev_b32 v{X+2*k}, 16, v{vXA+k}")
        A(f"v_and_b32 v{X+2*k+1}, 0xffff0000, v{vXA+k}")
    S, Tm = vT + 8, vT + 9
    A(f"v_add_f32 v{S}, v{X}, v{X+1}")
    for k in range(2, 8):
        A(f"v_add_f32 v{S}, v{S}, v{X+k}")
    allreduce64(g, "add", S, Tm)
    A(f"v_mul_f32 v{S}, 0x3b000000, v{S}")
    Q = vT + 10
    for k in range(8):
        A(f"v_sub_f32 v{X+k}, v{X+k}, v{S}")
    A(f"v_mul_f32 v{Q}, v{X}, v{X}")
    for k in range(1, 8):
        A(f"v_fmac_f32 v{Q}, v{X+k}, v{X+k}")
    allreduce64(g, "add", Q, Tm)
    A(f"v_mul_f32 v{Q}, 0x3b000000, v{Q}")
    bf16r(g, S)
    bf16r(g, Q)
    A(f"v_add_f32 v{Q}, {hex(EPS)}, v{Q}")
    bf16r(g, Q)
    A(f"v_sqrt_f32 v{Q}, v{Q}")
    g.nop(1)
    bf16r(g, Q)
    RS = vT + 11
    A(f"v_rcp_f32 v{RS}, v{Q}")
    g.nop(1)
    MEAN, SD = S, Q

    def normalize(src, t0, t1):
        A(f"v_sub_f32 v{src}, v{src}, v{MEAN}")
        bf16r(g, src)
        A(f"v_mul_f32 v{t0}, v{src}, v{RS}")
        A(f"v_fma_f32 v{t1}, -v{t0}, v{SD}, v{src}")
        A(f"v_fma_f32 v{t0}, v{t1}, v{RS}, v{t0}")

    vXP = vT + 14
    g.wait("xm")
    for k in range(2):
        A(f"v_lshlrev_b32 v{X}, 16, v{vXM+k}")
        A(f"v_and_b32 v{X+1}, 0xffff0000, v{vXM+k}")
        normalize(X, X + 2, X + 3)
        normalize(X + 1, X + 4, X + 5)
        A(f"v_cvt_pk_bf16_f32 v{vXP+2*k}, v{X+2}, v{X+2}")
        A(f"v_cvt_pk_bf16_f32 v{vXP+2*k+1}, v{X+4}, v{X+4}")

    def ands(src, aset):
        for r in range(4):
            A(f"v_and_b32 v{vA+4*aset+r}, v{vM+r}, v{src}")

    ands(vXP, 0)
    for t in range(4):
        if t < 3:
            ands(vXP + t + 1, (t + 1) % 2)
        else:
            g.nop(2)
        g.wait(("wq", t))
        c = "0" if t == 0 else vr(vD)
        A(f"v_mfma_f32_16x16x32_bf16 {vr(vD)}, {vr(vA+4*(t%2))}, {vr(vWQ+4*t)}, {c}")
        g.wait(("w1", t))
        c = "0" if t == 0 else vr(vD2)
        A(f"v_mfma_f32_16x16x32_bf16 {vr(vD2)}, {vr(vA+4*(t%2))}, {vr(vW1+4*t)}, {c}")
    aQ = vT + 6
    A(f"v_and_b32 v{aQ}, 1, v{vG}")
    A(f"v_lshlrev_b32 v{aQ}, 4, v{aQ}")
    A(f"v_lshl_add_u32 v{aQ}, v{vJ}, 5, v{aQ}")
    A("s_lshl_b32 s26, s3, 9")
    A(f"v_add_u32 v{aQ}, s26, v{aQ}")
    A("s_lshl_b32 s26, s22, 10")
    A(f"s_add_u32 s27, s26, {WS_Q}")
    A(f"s_add_u32 s26, s26, {WS_H}")
    A("s_cmp_eq_u32 s3, 0")
    A("s_cselect_b32 s26, s27, s26")
    A("s_cselect_b32 s27, 1024, 0")
    A("s_cselect_b32 s24, 0, 2048")
    A("s_cmp_eq_u32 s3, 1")
    A("s_cselect_b32 s68, 1024, 0")
    A("s_cmp_lt_u32 s20, 11")
    A("s_cselect_b32 s68, s68, 0")
    A("s_add_u32 s27, s27, s68")
    srd(g, sGs, 14, 15, "s26", "s27")
    A(f"ds_write_b128 v{aQ}, {vr(vD)} offset:{L_QP}")
    A(f"ds_write_b128 v{aQ}, {vr(vD2)} offset:{L_HP}")
    g.auto = 0
    aR = vT + 6
    A(f"v_lshlrev_b32 v{aR}, 3, v{vL}")
    A(f"v_add_u32 v{aR}, s24, v{aR}")
    A("s_waitcnt lgkmcnt(0)")
    A("s_barrier")
    stamp()
    QS = vT + 14
    for w in range(4):
        A(f"ds_read_b64 v[{QS+2*w}:{QS+2*w+1}], v{aR} offset:{L_QP + w*512}")
    A("s_mul_i32 s73, s72, 0x9E3779B1")
    A("s_add_u32 s73, s73, 0x7F4A7C15")
    A("s_mul_i32 s74, s72, 0x85EBCA77")
    A("s_add_u32 s74, s74, 0xC2B2AE3D")
    A("s_waitcnt lgkmcnt(0)")
    A(f"v_add_f32 v{QS}, v{QS}, v{QS+2}")
    A(f"v_add_f32 v{QS+1}, v{QS+1}, v{QS+3}")
    A(f"v_add_f32 v{QS+4}, v{QS+4}, v{QS+6}")
    A(f"v_add_f32 v{QS+5}, v{QS+5}, v{QS+7}")
    A(f"v_add_f32 v{QS}, v{QS}, v{QS+4}")
    A(f"v_add_f32 v{QS+2}, v{QS+1}, v{QS+5}")
    A(f"v_mov_b32 v{QS+1}, s73")
    A(f"v_mov_b32 v{QS+3}, s74")
    g.vmem(f"buffer_store_dwordx4 {vr(QS)}, v{vNo}, s[{sGs}:{sGs+3}], 0 offen {HF}", "qst")
    stamp()
    g.vmem(f"buffer_load_dwordx4 {vr(vW2)}, v{vNo}, s[{sW2}:{sW2+3}], 0 offen", "w2", real=False)
    A("s_movk_i32 s27, 4096")
    g.vmem(f"buffer_load_dwordx4 {vr(vW2+4)}, v{vNo}, s[{sW2}:{sW2+3}], s27 offen", "w2", real=False)
    pump(P.get("pre3", 12))
    A("s_lshl_b32 s26, s20, 13")
    A("s_lshl_b32 s27, s3, 11")
    A("s_add_u32 s26, s26, s27")
    A(f"s_add_u32 s26, s26, {WS_Q}")
    srd(g, sGs, 14, 15, "s26", 2048)
    g.vmem(f"buffer_load_dwordx4 {vr(vQG)}, v{vNo}, s[{sGs}:{sGs+3}], 0 offen {HF}", "qg")
    g.vmem(f"buffer_load_dwordx4 {vr(vQG+4)}, v{vNo}, s[{sGs}:{sGs+3}], 0 offen offset:1024 {HF}", "qg")
    pump(P.get("pre4", 16))
    A("s_mov_b32 s24, 0")
    g.wait("qg")
    g.label(name + "_qchk")
    A(f"v_xor_b32 v{vT}, s73, v{vQG+1}")
    A(f"v_xor_b32 v{vT+1}, s74, v{vQG+3}")
    A(f"v_xor_b32 v{vT+2}, s73, v{vQG+5}")
    A(f"v_xor_b32 v{vT+3}, s74, v{vQG+7}")
    A(f"v_or3_b32 v{vT}, v{vT}, v{vT+1}, v{vT+2}")
    A(f"v_or_b32 v{vT}, v{vT}, v{vT+3}")
    A(f"v_cmp_ne_u32 vcc, 0, v{vT}")
    A("s_add_u32 s24, s24, 1")
    if P.get("noqwait"): A(f"s_branch {name}_qok")
    A(f"s_cbranch_vccz {name}_qok")
    A("s_cmp_ge_u32 s24, 0x40000")
    A(f"s_cbranch_scc1 {name}_qok")
    A(f"buffer_load_dwordx4 {vr(vQG)}, v{vNo}, s[{sGs}:{sGs+3}], 0 offen {HF}")
    A(f"buffer_load_dwordx4 {vr(vQG+4)}, v{vNo}, s[{sGs}:{sGs+3}], 0 offen offset:1024 {HF}")
    A("s_waitcnt vmcnt(0)")
    A(f"s_branch {name}_qchk")
    g.label(name + "_qok")
    A(f"v_add_f32 v{vT}, v{vQG}, v{vQG+4}")
    A(f"v_add_f32 v{vT+1}, v{vQG+2}, v{vQG+6}")
    A(f"v_lshlrev_b32 v{aR}, 3, v{vL}")
    A("s_lshl_b32 s26, s3, 9")
    A(f"v_add_u32 v{vT+2}, s26, v{aR}")
    A(f"ds_write_b64 v{vT+2}, v[{vT}:{vT+1}] offset:{L_Q2}")
    A(f"v_bfe_u32 v{vHo}, v{vL}, 2, 3")
    A(f"v_lshlrev_b32 v{vHo}, 10, v{vHo}")
    A(f"v_and_b32 v{vT+3}, 3, v{vL}")
    A(f"v_lshl_add_u32 v{vHo}, v{vT+3}, 4, v{vHo}")
    A("s_lshr_b32 s26, s23, 4")
    A("s_lshl_b32 s26, s26, 13")
    A("s_and_b32 s27, s23, 15")
    A("s_lshl_b32 s27, s27, 6")
    A("s_add_u32 s26, s26, s27")
    A(f"s_add_u32 s26, s26, {WS_H}")
    A("s_mul_i32 s27, s25, 8192")
    srd(g, sW1, 14, 15, "s26", "s27")
    g.vmem(f"buffer_load_dwordx4 {vr(vHG)}, v{vHo}, s[{sW1}:{sW1+3}], 0 offen {HF}", "hg", real=False)
    pump(1000, n_pre_qk)
    A("s_waitcnt lgkmcnt(0)")
    A("s_barrier")
    stamp()
    for w in range(4):
        A(f"ds_read_b64 v[{QS+2*w}:{QS+2*w+1}], v{aR} offset:{L_Q2 + w*512}")
    A(f"v_lshlrev_b32 v{vT+2}, 2, v{vL}")
    A("s_lshl_b32 s26, s3, 8")
    A(f"v_add_u32 v{vT+2}, s26, v{vT+2}")
    A(f"v_lshlrev_b32 v{vT+3}, 4, v{vJ}")
    A(f"v_add_u32 v{vT+3}, s26, v{vT+3}")
    A("s_waitcnt lgkmcnt(0)")
    A(f"v_add_f32 v{QS}, v{QS}, v{QS+2}")
    A(f"v_add_f32 v{QS+1}, v{QS+1}, v{QS+3}")
    A(f"v_add_f32 v{QS+4}, v{QS+4}, v{QS+6}")
    A(f"v_add_f32 v{QS+5}, v{QS+5}, v{QS+7}")
    A(f"v_add_f32 v{QS}, v{QS}, v{QS+4}")
    A(f"v_add_f32 v{QS+1}, v{QS+1}, v{QS+5}")
    A(f"v_cvt_pk_bf16_f32 v{QS}, v{QS}, v{QS+1}")
    A(f"ds_write_b32 v{vT+2}, v{QS} offset:{L_QB}")
    A("s_waitcnt lgkmcnt(0)")
    A(f"ds_read_b128 {vr(vQ)}, v{vT+3} offset:{L_QB}")

    def silu(v, t):
        A(f"v_mul_f32 v{t}, {hex(LOG2E ^ 0x80000000)}, v{v}")
        A(f"v_exp_f32 v{t}, v{t}")
        g.nop(1)
        A(f"v_add_f32 v{t}, 1.0, v{t}")
        A(f"v_rcp_f32 v{t+1}, v{t}")
        g.nop(1)
        A(f"v_mul_f32 v{t+2}, v{v}, v{t+1}")
        A(f"v_fma_f32 v{t+3}, -v{t+2}, v{t}, v{v}")
        A(f"v_fma_f32 v{t+2}, v{t+3}, v{t+1}, v{t+2}")
        A(f"v_cmp_lt_f32 vcc, 0x7f000000, v{t}")
        A(f"v_mul_f32 v{t+3}, v{v}, v{t+1}")
        g.nop(1)
        A(f"v_cndmask_b32 v{v}, v{t+2}, v{t+3}, vcc")
        bf16r(g, v)

    a = [vT + 1, vT + 2, vT + 3, vT + 4]
    b0, b1 = vT + 5, vT + 6
    PQ = P.get("pq", 12)

    def qk(i):
        while ("k", i, 3) not in issued_tags():
            assert pump(1) == 1
        g.wait(("k", i, 3))
        for c in range(4):
            for t in range(4):
                if c == 0:
                    A(f"v_dot2_f32_bf16 v{a[t]}, v{slot(4*i+t)}, v{vQ}, 0")
                else:
                    A(f"v_dot2c_f32_bf16 v{a[t]}, v{slot(4*i+t)+c}, v{vQ+c}")
        events.add(("kt", i))
        pump(PQ if i < NT - 4 else P.get("pql", 4))
        A(f"v_add_f32_dpp v{b0}, v{a[0]}, v{a[0]} row_ror:8 row_mask:0xf bank_mask:0x3")
        A(f"v_add_f32_dpp v{b1}, v{a[1]}, v{a[1]} row_ror:8 row_mask:0xf bank_mask:0x3")
        A(f"v_add_f32_dpp v{b0}, v{a[2]}, v{a[2]} row_ror:8 row_mask:0xf bank_mask:0xc")
        A(f"v_add_f32_dpp v{b1}, v{a[3]}, v{a[3]} row_ror:8 row_mask:0xf bank_mask:0xc")
        g.nop(2)
        c_ = vSC + i
        A(f"v_add_f32_dpp v{c_}, v{b0}, v{b0} row_half_mirror row_mask:0xf bank_mask:0x5")
        A(f"v_add_f32_dpp v{c_}, v{b1}, v{b1} row_half_mirror row_mask:0xf bank_mask:0xa")
        g.nop(2)
        A(f"v_add_f32_dpp v{c_}, v{c_}, v{c_} quad_perm:[1,0,3,2] row_mask:0xf bank_mask:0xf")
        g.nop(2)
        A(f"v_add_f32_dpp v{c_}, v{c_}, v{c_} quad_perm:[2,3,0,1] row_mask:0xf bank_mask:0xf")
        bf16r(g, c_)
        A(f"v_mul_f32 v{c_}, {hex(SCALE)}, v{c_}")
        bf16r(g, c_)

    limit["v"] = None
    A("s_waitcnt lgkmcnt(0)")
    stamp()
    GT = P.get("gt", 3)
    for i in range(GT):
        qk(i)
    g.wait("hg")
    A("s_mov_b32 s24, 0")
    g.label(name + "_hchk")
    A(f"v_xor_b32 v{vT}, s73, v{vHG+1}")
    A(f"v_xor_b32 v{vT+1}, s74, v{vHG+3}")
    A(f"v_or_b32 v{vT}, v{vT}, v{vT+1}")
    A(f"v_cmp_ne_u32 vcc, 0, v{vT}")
    A("s_add_u32 s24, s24, 1")
    A(f"s_cbranch_vccz {name}_hok")
    A("s_cmp_eq_u32 s25, 0")
    A(f"s_cbranch_scc1 {name}_hok")
    A("s_cmp_ge_u32 s24, 0x40000")
    A(f"s_cbranch_scc1 {name}_hok")
    A(f"buffer_load_dwordx4 {vr(vHG)}, v{vHo}, s[{sW1}:{sW1+3}], 0 offen {HF}")
    A("s_waitcnt vmcnt(0)")
    A(f"s_branch {name}_hchk")
    g.label(name + "_hok")
    h0, h1 = vHG, vHG + 2
    for ctl in ("row_ror:4", "row_ror:8"):
        g.nop(1)
        A(f"v_add_f32_dpp v{h0}, v{h0}, v{h0} {ctl} row_mask:0xf bank_mask:0xf")
        A(f"v_add_f32_dpp v{h1}, v{h1}, v{h1} {ctl} row_mask:0xf bank_mask:0xf")
    A(f"v_mov_b32 v{vT}, v{h0}")
    A(f"v_mov_b32 v{vT+1}, v{h1}")
    g.nop(1)
    A(f"v_permlane16_swap_b32 v{h0}, v{vT}")
    A(f"v_permlane16_swap_b32 v{h1}, v{vT+1}")
    g.nop(1)
    A(f"v_add_f32 v{h0}, v{h0}, v{vT}")
    A(f"v_add_f32 v{h1}, v{h1}, v{vT+1}")
    A("s_and_b32 s26, s3, 1")
    A("s_cmp_eq_u32 s26, 1")
    A("s_cselect_b64 s[26:27], -1, 0")
    A("s_lshr_b32 s24, s3, 1")
    A("s_add_u32 s68, s24, 2")
    A(f"v_cndmask_b32 v{h0}, v{h0}, v{h1}, s[26:27]")
    g.nop(1)
    A(f"v_readlane_b32 s26, v{h0}, s24")
    A(f"v_readlane_b32 s27, v{h0}, s68")
    Ha, Hb = vT, vT + 7
    g.nop(2)
    A(f"v_mov_b32 v{Ha}, s26")
    A(f"v_mov_b32 v{Hb}, s27")
    bf16r(g, Ha)
    bf16r(g, Hb)
    silu(Ha, vT + 1)
    silu(Hb, vT + 1)
    g.wait("w2")
    for k in range(4):
        A(f"v_lshlrev_b32 v{Yg+2*k}, 16, v{vW2+k}")
        A(f"v_and_b32 v{Yg+2*k+1}, 0xffff0000, v{vW2+k}")
        A(f"v_lshlrev_b32 v{vT+8}, 16, v{vW2+4+k}")
        A(f"v_and_b32 v{vT+9}, 0xffff0000, v{vW2+4+k}")
        A(f"v_mul_f32 v{Yg+2*k}, v{Yg+2*k}, v{Ha}")
        A(f"v_mul_f32 v{Yg+2*k+1}, v{Yg+2*k+1}, v{Ha}")
        A(f"v_fmac_f32 v{Yg+2*k}, v{vT+8}, v{Hb}")
        A(f"v_fmac_f32 v{Yg+2*k+1}, v{vT+9}, v{Hb}")
    aY = vT + 1
    A(f"v_lshlrev_b32 v{aY}, 5, v{vL}")
    A("s_lshl_b32 s26, s3, 11")
    A(f"v_add_u32 v{aY}, s26, v{aY}")
    A(f"ds_write_b128 v{aY}, {vr(Yg)} offset:{L_YP}")
    A(f"ds_write_b128 v{aY}, {vr(Yg+4)} offset:{L_YP+16}")
    A("s_waitcnt lgkmcnt(0)")
    events.add("w_free")
    qk(GT)
    A("s_barrier")
    GS = vT + 6
    A(f"v_lshlrev_b32 v{vT}, 3, v{vTID}")
    for w in range(4):
        A(f"ds_read_b64 v[{GS+2*w}:{GS+2*w+1}], v{vT} offset:{L_YP + w*2048}")
    A(f"s_lshl_b32 s26, s23, 12")
    A(f"s_add_u32 s26, s26, {WS_G}")
    A("s_lshl_b32 s27, s25, 12")
    srd(g, sGs, 14, 15, "s26", "s27")
    A(f"v_lshlrev_b32 v{vT+1}, 4, v{vTID}")
    A("s_waitcnt lgkmcnt(0)")
    A(f"v_add_f32 v{GS}, v{GS}, v{GS+2}")
    A(f"v_add_f32 v{GS+1}, v{GS+1}, v{GS+3}")
    A(f"v_add_f32 v{GS+4}, v{GS+4}, v{GS+6}")
    A(f"v_add_f32 v{GS+5}, v{GS+5}, v{GS+7}")
    A(f"v_add_f32 v{GS}, v{GS}, v{GS+4}")
    A(f"v_add_f32 v{GS+2}, v{GS+1}, v{GS+5}")
    A(f"v_mov_b32 v{GS+1}, s73")
    A(f"v_mov_b32 v{GS+3}, s74")
    g.vmem(f"buffer_store_dwordx4 {vr(GS)}, v{vT+1}, s[{sGs}:{sGs+3}], 0 offen {HF}", "gst")
    for i in range(GT + 1, NT):
        qk(i)
    stamp()
    A(f"v_max3_f32 v{vMx}, v{vSC}, v{vSC+1}, v{vSC+2}")
    for k in range(3, NT - 1, 2):
        A(f"v_max3_f32 v{vMx}, v{vMx}, v{vSC+k}, v{vSC+k+1}")
    A(f"v_max_f32 v{vMx}, v{vMx}, v{vSC+NT-1}")
    for ctl in ("row_ror:4", "row_ror:8"):
        g.nop(2)
        A(f"v_max_f32_dpp v{vMx}, v{vMx}, v{vMx} {ctl} row_mask:0xf bank_mask:0xf")
    rows_allreduce(g, "max", vMx, vT)
    A("s_lshl_b32 s26, s3, 2")
    A(f"v_mov_b32 v{vT}, s26")
    A(f"ds_write_b32 v{vT}, v{vMx} offset:{L_MX}")
    pump(P.get("pm", 4))
    A("s_waitcnt lgkmcnt(0)")
    A("s_barrier")
    A(f"v_mov_b32 v{vT}, 0")
    A(f"ds_read_b128 {vr(vT+4)}, v{vT} offset:{L_MX}")
    A("s_lshl_b32 s26, s22, 2")
    A("s_add_u32 s26, s26, s3")
    A("s_lshl_b32 s26, s26, 4")
    A(f"s_add_u32 s26, s26, {WS_ML}")
    srd(g, sGs, 14, 15, "s26", 16)
    A(f"s_mov_b32 s26, {hex(LOG2E)}")
    A("s_waitcnt lgkmcnt(0)")
    A(f"v_max3_f32 v{vMx}, v{vT+4}, v{vT+5}, v{vT+6}")
    A(f"v_max_f32 v{vMx}, v{vMx}, v{vT+7}")
    A(f"v_mul_f32 v{vT}, s26, v{vMx}")
    for k in range(NT):
        A(f"v_fma_f32 v{vSC+k}, v{vSC+k}, s26, -v{vT}")
    for k in range(NT):
        A(f"v_exp_f32 v{vSC+k}, v{vSC+k}")
    A(f"v_mov_b32 v{vT+1}, s73")
    A(f"v_add_f32 v{vLs}, v{vSC}, v{vSC+1}")
    A(f"v_add_f32 v{vT+5}, v{vSC+2}, v{vSC+3}")
    for k in range(4, NT, 2):
        A(f"v_add_f32 v{vLs}, v{vLs}, v{vSC+k}")
        A(f"v_add_f32 v{vT+5}, v{vT+5}, v{vSC+k+1}")
    A(f"v_add_f32 v{vLs}, v{vLs}, v{vT+5}")
    for k in range(NT):
        A(f"v_cvt_pk_bf16_f32 v{vSC+k}, v{vSC+k}, v{vSC+k}")
        if k == 3:
            A(f"v_add_f32_dpp v{vLs}, v{vLs}, v{vLs} row_ror:4 row_mask:0xf bank_mask:0xf")
        if k == 7:
            A(f"v_add_f32_dpp v{vLs}, v{vLs}, v{vLs} row_ror:8 row_mask:0xf bank_mask:0xf")
    rows_allreduce(g, "add", vLs, vT + 5)
    A(f"v_mov_b32 v{vT}, v{vMx}")
    A(f"v_mov_b32 v{vT+2}, v{vLs}")
    A(f"v_mov_b32 v{vT+3}, s74")
    A(f"v_lshlrev_b32 v{vT+4}, 4, v{vL}")
    g.vmem(f"buffer_store_dwordx4 {vr(vT)}, v{vT+4}, s[{sGs}:{sGs+3}], 0 offen {HF}", "mlst")
    RML = vR
    vOm = vR + 41
    A("s_lshl_b32 s26, s20, 9")
    A(f"s_add_u32 s26, s26, {WS_ML}")
    srd(g, sK, 14, 15, "s26", 512)
    A(f"v_and_b32 v{vOm}, 31, v{vL}")
    A(f"v_lshlrev_b32 v{vOm}, 4, v{vOm}")
    n_vend = max(i for i, p_ in enumerate(plan) if p_[2][0] == "v") + 1
    left = n_vend - st["next"]
    pump(max(0, left - P.get("mlafter", 8)))
    g.vmem(f"buffer_load_dwordx4 {vr(RML)}, v{vOm}, s[{sK}:{sK+3}], 0 offen {HF}", "mlg")
    pump(1000, n_vend)
    stamp()
    def pand(tt):
        for r in range(4):
            A(f"v_and_b32_dpp v{vA+4*(tt%2)+r}, v{vSC+tt//4}, v{vM+r} row_newbcast:{4*(tt%4)} row_mask:0xf bank_mask:0xf")
    NV = 4 * NT
    RML = vR
    PPL = 256 // GPP
    NGL = (NUNITS + PPL - 1) // PPL
    RG = [vR + 4 + 4 * k for k in range(NGL)]
    assert 4 + 4 * NGL <= 40
    vOy, vOm, vDf, vXo = vR + 40, vR + 41, vR + 42, vR + 43
    vGm = vR + 44
    lg = {1: 0, 2: 1, 4: 2, 8: 3}[GPP]
    GLT = P.get("glt", 8)
    MLT = P.get("mlt", 52)

    cT = vR + 48
    def cfactor():
        g.wait("mlg")
        A("s_mov_b32 s24, 0")
        g.label(name + "_mlchk")
        A(f"v_xor_b32 v{cT}, s73, v{RML+1}")
        A(f"v_xor_b32 v{cT+1}, s74, v{RML+3}")
        A(f"v_or_b32 v{cT}, v{cT}, v{cT+1}")
        A(f"v_cmp_ne_u32 vcc, 0, v{cT}")
        A("s_add_u32 s24, s24, 1")
        if P.get("nomlwait"): A(f"s_branch {name}_mlok")
        A(f"s_cbranch_vccz {name}_mlok")
        A("s_cmp_ge_u32 s24, 0x40000")
        A(f"s_cbranch_scc1 {name}_mlok")
        A(f"buffer_load_dwordx4 {vr(RML)}, v{vOm}, s[{sK}:{sK+3}], 0 offen {HF}")
        A("s_waitcnt vmcnt(0)")
        A(f"s_branch {name}_mlchk")
        g.label(name + "_mlok")
        Mh, E_, L_, C_ = cT, cT + 1, cT + 2, vCc
        A(f"v_mov_b32 v{Mh}, v{RML}")
        for ctl in ("quad_perm:[1,0,3,2]", "quad_perm:[2,3,0,1]", "row_half_mirror", "row_mirror"):
            g.nop(2)
            A(f"v_max_f32_dpp v{Mh}, v{Mh}, v{Mh} {ctl} row_mask:0xf bank_mask:0xf")
        A(f"v_mov_b32 v{cT+3}, v{Mh}")
        g.nop(2)
        A(f"v_permlane16_swap_b32 v{Mh}, v{cT+3}")
        g.nop(1)
        A(f"v_max_f32 v{Mh}, v{Mh}, v{cT+3}")
        A(f"v_sub_f32 v{E_}, v{RML}, v{Mh}")
        A(f"v_sub_f32 v{C_}, v{vMx}, v{Mh}")
        A(f"v_mul_f32 v{E_}, {hex(LOG2E)}, v{E_}")
        A(f"v_mul_f32 v{C_}, {hex(LOG2E)}, v{C_}")
        A(f"v_exp_f32 v{E_}, v{E_}")
        A(f"v_exp_f32 v{C_}, v{C_}")
        g.nop(1)
        A(f"v_mul_f32 v{L_}, v{E_}, v{RML+2}")
        for ctl in ("quad_perm:[1,0,3,2]", "quad_perm:[2,3,0,1]", "row_half_mirror", "row_mirror"):
            g.nop(2)
            A(f"v_add_f32_dpp v{L_}, v{L_}, v{L_} {ctl} row_mask:0xf bank_mask:0xf")
        A(f"v_mov_b32 v{cT+3}, v{L_}")
        g.nop(2)
        A(f"v_permlane16_swap_b32 v{L_}, v{cT+3}")
        g.nop(1)
        A(f"v_add_f32 v{L_}, v{L_}, v{cT+3}")
        A(f"v_rcp_f32 v{cT+3}, v{L_}")
        g.nop(1)
        A(f"v_mul_f32 v{cT}, v{C_}, v{cT+3}")
        A(f"v_fma_f32 v{cT+1}, -v{cT}, v{L_}, v{C_}")
        A(f"v_fma_f32 v{C_}, v{cT+1}, v{cT+3}, v{cT}")

    pand(0)
    for t in range(NV):
        if t + 1 < NV:
            pand(t + 1)
        else:
            g.nop(2)
        g.wait(("v", t))
        c = "0" if t == 0 else vr(vD)
        A(f"v_mfma_f32_16x16x32_bf16 {vr(vD)}, {vr(vA+4*(t%2))}, a[{4*t}:{4*t+3}], {c}")
        pump(1)
        if t == GLT:
            A(f"v_lshrrev_b32 v{vT}, {lg}, v{vTID}")
            A(f"v_and_b32 v{vT+1}, {GPP-1}, v{vTID}")
            A(f"v_lshlrev_b32 v{vT+1}, 4, v{vT+1}")
            A(f"v_lshl_add_u32 v{vOy}, v{vT}, 12, v{vT+1}")
            klast = NGL - 1
            A(f"v_cmp_gt_u32 vcc, {NUNITS - klast*PPL}, v{vT}")
            A(f"v_mov_b32 v{vGm}, 0")
            g.nop(1)
            A(f"v_cndmask_b32 v{vGm}, v{vGm}, -1, vcc")
            A(f"s_sub_u32 s24, s2, {RED0}")
            A(f"s_cmp_lt_u32 s24, {NRED}")
            A(f"s_cselect_b32 s21, 1, 0")
            A(f"s_cselect_b32 s24, s24, 0")
            A(f"s_lshl_b32 s26, s24, {4+lg}")
            A(f"s_add_u32 s27, s26, {WS_G}")
            A(f"s_sub_u32 s24, {NUNITS*4096}, s26")
            A(f"s_mul_i32 s24, s24, s21")
            srd(g, sW1, 14, 15, "s27", "s24")
            for k in range(NGL):
                A(f"s_mov_b32 s26, {k*PPL*4096}")
                g.vmem(f"buffer_load_dwordx4 {vr(RG[k])}, v{vOy}, s[{sW1}:{sW1+3}], s26 offen {HF}", "gg", real=False)
            A(f"v_and_b32 v{vT+8}, 1, v{vG}")
            A(f"v_lshlrev_b32 v{vT+8}, 4, v{vT+8}")
            A(f"v_lshl_add_u32 v{vT+8}, v{vJ}, 5, v{vT+8}")
            A("s_lshl_b32 s26, s3, 9")
            A(f"v_add_u32 v{vT+8}, s26, v{vT+8}")
            A(f"v_lshlrev_b32 v{vT+9}, 3, v{vL}")
            A(f"v_add_u32 v{vT+1}, s26, v{vT+9}")
            A(f"v_lshlrev_b32 v{vT+2}, 7, v{vG}")
            A(f"v_add_u32 v{vT+2}, s26, v{vT+2}")
            A(f"v_mov_b32 v{vT+5}, s73")
            A(f"v_mov_b32 v{vT+7}, s74")
            A(f"v_and_b32 v{vT+10}, 1, v{vG}")
            A(f"v_lshlrev_b32 v{vT+10}, 5, v{vT+10}")
            A(f"v_lshl_add_u32 v{vT+10}, v{vJ}, 6, v{vT+10}")
            A(f"v_lshrrev_b32 v{vT+11}, 1, v{vG}")
            A(f"v_lshl_add_u32 v{vT+10}, v{vT+11}, 4, v{vT+10}")
            A("s_lshl_b32 s26, s22, 12")
            A("s_lshl_b32 s27, s3, 10")
            A("s_add_u32 s26, s26, s27")
            A(f"s_add_u32 s26, s26, {WS_Y}")
            srd(g, sY, 14, 15, "s26", 1024)
            A(f"v_cmp_lt_u32 s[74+22:74+23], v{vL}, 32".replace("74+22", "96").replace("74+23", "97") if not PROF else f"v_cmp_lt_u32 s[26:27], v{vL}, 32")
        if t == MLT:
            cfactor()
    assert st["next"] == len(plan), (st["next"], len(plan))
    sLo = "s[96:97]" if not PROF else "s[26:27]"
    stamp()
    aQ, GR, vSA = vT + 8, vT + 4, vT + 10
    g.nop(8)
    A(f"ds_write_b128 v{aQ}, {vr(vD)} offset:{L_OP}")
    A("s_waitcnt lgkmcnt(0)")
    A("s_barrier")
    O4 = vR + 48
    for w in range(4):
        A(f"ds_read_b64 v[{O4+2*w}:{O4+2*w+1}], v{vT+9} offset:{L_OP + w*512}")
    A("s_waitcnt lgkmcnt(0)")
    A(f"v_add_f32 v{O4}, v{O4}, v{O4+2}")
    A(f"v_add_f32 v{O4+1}, v{O4+1}, v{O4+3}")
    A(f"v_add_f32 v{O4+4}, v{O4+4}, v{O4+6}")
    A(f"v_add_f32 v{O4+5}, v{O4+5}, v{O4+7}")
    A(f"v_add_f32 v{O4}, v{O4}, v{O4+4}")
    A(f"v_add_f32 v{O4+1}, v{O4+1}, v{O4+5}")
    A(f"v_cvt_pk_bf16_f32 v{O4}, v{O4}, v{O4}")
    A(f"v_cvt_pk_bf16_f32 v{O4+1}, v{O4+1}, v{O4+1}")
    A(f"ds_write_b64 v{vT+1}, v[{O4}:{O4+1}] offset:{L_OB}")
    A("s_waitcnt lgkmcnt(0)")
    ODr = [vSC + k for k in range(16)] + [vR + 48 + k for k in range(16)]
    for k in range(8):
        A(f"ds_read_b128 {vr(ODr[4*k])}, v{vT+2} offset:{L_OB+16*k}")

    def wand(t):
        for r in range(4):
            A(f"v_and_b32 v{vA+4*(t%2)+r}, v{vM+r}, v{ODr[t]}")
    A("s_waitcnt lgkmcnt(7)")
    wand(0)
    for t in range(32):
        if t + 1 < 32:
            if (t + 1) % 4 == 0:
                A(f"s_waitcnt lgkmcnt({7 - (t+1)//4})")
            wand(t + 1)
        else:
            g.nop(2)
        g.wait(("wo", t))
        c = "0" if t == 0 else vr(vD)
        A(f"v_mfma_f32_16x16x32_bf16 {vr(vD)}, {vr(vA+4*(t%2))}, {vr(vW+4*t)}, {c}")
    stamp()
    if PROF:
        A(f"v_cmp_lt_u32 s[26:27], v{vL}, 32")
        g.nop(2)
    g.wait("gg")
    g.nop(8)
    A(f"v_cndmask_b32 v{GR}, v{vD+2}, v{vD}, {sLo}")
    A(f"v_cndmask_b32 v{GR+2}, v{vD+3}, v{vD+1}, {sLo}")
    A(f"v_mul_f32 v{GR}, v{GR}, v{vCc}")
    A(f"v_mul_f32 v{GR+2}, v{GR+2}, v{vCc}")
    g.vmem(f"buffer_store_dwordx4 {vr(GR)}, v{vSA}, s[{sY}:{sY+3}], 0 offen {HF}", "yst")
    stamp()
    if P.get("nofinal"):
        A(f"s_branch {name}_fin")
    A(f"s_sub_u32 s21, s2, {RED0}")
    A(f"s_cmp_ge_u32 s21, {NRED}")
    A(f"s_cbranch_scc1 {name}_fin")
    RY = [vW + 4 * k for k in range(GPP)]
    A(f"s_lshl_b32 s26, s21, {4+lg}")
    A(f"s_add_u32 s27, s26, {WS_Y}")
    A(f"s_sub_u32 s24, {256*4096}, s26")
    srd(g, sY, 14, 15, "s27", "s24")

    def ypoll():
        for k in range(GPP):
            A(f"s_mov_b32 s26, {k*PPL*4096}")
            A(f"buffer_load_dwordx4 {vr(RY[k])}, v{vOy}, s[{sY}:{sY+3}], s26 offen {HF}")
    A(f"s_lshl_b32 s27, s21, {2+lg}")
    srd(g, sV, 4, 5, "s27", 4 * GPP)
    srd(g, sWQ, 70, 71, "s27", 4 * GPP)
    A(f"v_and_b32 v{vT+2}, {2*GPP-1}, v{vL}")
    A(f"v_lshlrev_b32 v{vT+2}, 1, v{vT+2}")
    A(f"buffer_load_ushort v{vXo}, v{vT+2}, s[{sV}:{sV+3}], 0 offen")
    A("s_mov_b32 s24, 0")
    g.label(name + "_gchk")
    for k in range(NGL):
        A(f"v_xor_b32 v{vT}, s73, v{RG[k]+1}")
        A(f"v_xor_b32 v{vT+1}, s74, v{RG[k]+3}")
        if k == 0:
            A(f"v_or_b32 v{vDf}, v{vT}, v{vT+1}")
        elif k < NGL - 1:
            A(f"v_or3_b32 v{vDf}, v{vDf}, v{vT}, v{vT+1}")
        else:
            A(f"v_or_b32 v{vT}, v{vT}, v{vT+1}")
            A(f"v_and_or_b32 v{vDf}, v{vT}, v{vGm}, v{vDf}")
    A(f"v_cmp_ne_u32 vcc, 0, v{vDf}")
    A("s_add_u32 s24, s24, 1")
    A(f"s_cbranch_vccz {name}_gok")
    A("s_cmp_ge_u32 s24, 0x40000")
    A(f"s_cbranch_scc1 {name}_gok")
    for k in range(NGL):
        A(f"s_mov_b32 s26, {k*PPL*4096}")
        A(f"buffer_load_dwordx4 {vr(RG[k])}, v{vOy}, s[{sW1}:{sW1+3}], s26 offen {HF}")
    A("s_waitcnt vmcnt(0)")
    A(f"s_branch {name}_gchk")
    g.label(name + "_gok")
    a0, a1, a2, a3 = vT + 8, vT + 9, vT + 10, vT + 11
    A(f"v_mov_b32 v{a2}, v{RG[0]}")
    A(f"v_mov_b32 v{a3}, v{RG[0]+2}")
    for k in range(1, NGL):
        A(f"v_add_f32 v{a2}, v{a2}, v{RG[k]}")
        A(f"v_add_f32 v{a3}, v{a3}, v{RG[k]+2}")
    A("s_mov_b32 s24, 0")
    g.label(name + "_poll")
    ypoll()
    A("s_waitcnt vmcnt(0)")
    for k in range(GPP):
        A(f"v_xor_b32 v{vT}, s73, v{RY[k]+1}")
        A(f"v_xor_b32 v{vT+1}, s74, v{RY[k]+3}")
        if k == 0:
            A(f"v_or_b32 v{vDf}, v{vT}, v{vT+1}")
        else:
            A(f"v_or3_b32 v{vDf}, v{vDf}, v{vT}, v{vT+1}")
    A(f"v_cmp_ne_u32 vcc, 0, v{vDf}")
    A("s_add_u32 s24, s24, 1")
    A("s_and_b64 exec, exec, vcc")
    A(f"s_cbranch_execz {name}_got")
    A(f"s_cmp_ge_u32 s24, 0x40000")
    A(f"s_cbranch_scc1 {name}_got")
    if SLEEP:
        A(f"s_sleep {SLEEP}")
    A(f"s_branch {name}_poll")
    g.label(name + "_got")
    A("s_mov_b64 exec, -1")
    A(f"v_add_f32 v{a0}, v{RY[0]}, v{RY[1]}")
    A(f"v_add_f32 v{a1}, v{RY[0]+2}, v{RY[1]+2}")
    for k in range(2, GPP):
        A(f"v_add_f32 v{a0}, v{a0}, v{RY[k]}")
        A(f"v_add_f32 v{a1}, v{a1}, v{RY[k]+2}")
    g.nop(2)
    A(f"v_permlane32_swap_b32 v{a0}, v{a2}")
    A(f"v_permlane32_swap_b32 v{a1}, v{a3}")
    g.nop(1)
    A(f"v_add_f32 v{a0}, v{a0}, v{a2}")
    A(f"v_add_f32 v{a1}, v{a1}, v{a3}")
    g.nop(2)
    A(f"v_permlane16_swap_b32 v{a0}, v{a1}")
    g.nop(1)
    A(f"v_add_f32 v{a0}, v{a0}, v{a1}")
    rot = [r for r in (8, 4, 2, 1) if r >= GPP]
    for r in rot:
        g.nop(2)
        A(f"v_add_f32_dpp v{a0}, v{a0}, v{a0} row_ror:{r} row_mask:0xf bank_mask:0xf")
    A(f"v_and_b32 v{vT+12}, {GPP-1}, v{vL}")
    A(f"v_lshl_add_u32 v{vT+12}, v{vG}, {lg}, v{vT+12}")
    A(f"v_lshlrev_b32 v{vT+12}, 4, v{vT+12}")
    A("s_lshl_b32 s26, s3, 2")
    A(f"v_add_u32 v{vT+12}, s26, v{vT+12}")
    A(f"ds_write_b32 v{vT+12}, v{a0} offset:{L_RED}")
    A("s_waitcnt lgkmcnt(0)")
    A("s_barrier")
    A("s_cmp_lg_u32 s3, 0")
    A(f"s_cbranch_scc1 {name}_fin")
    A(f"v_and_b32 v{vT}, 1, v{vL}")
    A(f"v_bfe_u32 v{vT+1}, v{vL}, 1, {max(lg,1)}")
    A(f"v_lshl_add_u32 v{vT}, v{vT}, {lg}, v{vT+1}")
    A(f"v_lshlrev_b32 v{vT}, 4, v{vT}")
    A(f"ds_read_b128 {vr(vT+4)}, v{vT} offset:{L_RED}")
    A(f"ds_read_b128 {vr(vT+12)}, v{vT} offset:{L_RED+2*GPP*16}")
    A("s_waitcnt lgkmcnt(0)")
    for k in range(1, 4):
        A(f"v_add_f32 v{vT+4}, v{vT+4}, v{vT+4+k}")
        A(f"v_add_f32 v{vT+12}, v{vT+12}, v{vT+12+k}")
    sv, gv = vT + 4, vT + 12
    bf16r(g, sv)
    bf16r(g, gv)
    silu(gv, vT + 20)
    A(f"v_mul_f32 v{sv}, v{sv}, v{gv}")
    bf16r(g, sv)
    A(f"v_lshlrev_b32 v{vXo}, 16, v{vXo}")
    A(f"v_add_f32 v{sv}, v{sv}, v{vXo}")
    A(f"v_cvt_pk_bf16_f32 v{sv}, v{sv}, v{sv}")
    A(f"v_and_b32 v{vT+2}, {2*GPP-1}, v{vL}")
    A(f"v_lshlrev_b32 v{vT+2}, 1, v{vT+2}")
    A(f"s_mov_b32 exec_lo, {(1 << (2*GPP)) - 1}")
    A("s_mov_b32 exec_hi, 0")
    A(f"buffer_store_short v{sv}, v{vT+2}, s[{sWQ}:{sWQ+3}], 0 offen {P.get('outflags', 'sc0 sc1')}")
    A(f"s_cmp_lg_u32 s21, 0")
    A(f"s_cbranch_scc1 {name}_fin")
    A(f"s_mov_b32 s27, {WS_EP}")
    srd(g, sGs, 14, 15, "s27", 4)
    A("s_mov_b32 exec_lo, 1")
    A(f"v_mov_b32 v{vT}, s73")
    A(f"v_mov_b32 v{vT+1}, 0")
    A(f"buffer_store_dword v{vT}, v{vT+1}, s[{sGs}:{sGs+3}], 0 offen sc0 sc1")
    g.label(name + "_fin")
    if PROF:
        A("s_cmp_lg_u32 s3, 0")
        A(f"s_cbranch_scc1 {name}_end")
        A("s_waitcnt vmcnt(0)")
        stamp()
        A("s_waitcnt lgkmcnt(0)")
        A("s_lshl_b32 s26, s2, 8")
        A(f"s_add_u32 s26, s26, {WS_PROF}")
        srd(g, sGs, 14, 15, "s26", 256)
        A("s_mov_b32 exec_lo, 1")
        A("s_mov_b32 exec_hi, 0")
        A(f"v_mov_b32 v{vT+2}, 0")
        for k in stamps:
            A(f"v_mov_b32 v{vT}, s{76+2*k}")
            A(f"v_mov_b32 v{vT+1}, s{77+2*k}")
            A(f"buffer_store_dwordx2 v[{vT}:{vT+1}], v{vT+2}, s[{sGs}:{sGs+3}], 0 offen offset:{8*k}")
            A("s_nop 2")
    if P.get("dbg"):
        A("s_cmp_lg_u32 s3, 0")
        A(f"s_cbranch_scc1 {name}_end")
        A("s_cmp_ge_u32 s2, 8")
        A(f"s_cbranch_scc1 {name}_end")
        A("s_memrealtime s[78:79]")
        A("s_load_dwordx2 s[80:81], s[0:1], 72")
        A("s_waitcnt lgkmcnt(0)")
        A("s_lshl_b32 s26, s2, 2")
        srd(g, sGs, 80, 81, "s26", 64)
        A("s_mov_b32 exec_lo, 1")
        A("s_mov_b32 exec_hi, 0")
        A(f"v_mov_b32 v{vT+2}, 0")
        A(f"v_mov_b32 v{vT}, s76")
        A(f"v_mov_b32 v{vT+1}, s78")
        A(f"buffer_store_dword v{vT}, v{vT+2}, s[{sGs}:{sGs+3}], 0 offen")
        A(f"buffer_store_dword v{vT+1}, v{vT+2}, s[{sGs}:{sGs+3}], 0 offen offset:32")
    g.label(name + "_end")
    A("s_endpgm")
    assert len(stamps) <= 12
    return nv, NACC, lds


def build(**P):
    P.setdefault("name", KNAME)
    g = G2()
    nv1, nacc, lds1 = kernel(g, P)
    body1 = g.text()
    out = HEADER
    out += f"; @launch grid=(256,1,1) block=(256,1,1) lds={lds1}\n"
    out += '.amdgcn_target "amdgcn-amd-amdhsa--gfx950"\n.text\n'
    out += f".globl {P['name']}\n.p2align 8\n.type {P['name']},@function\n" + body1
    out += '.section .rodata,"a"\n'
    out += descriptor2(P["name"], nv1, nacc)
    return out


if __name__ == "__main__":
    P = {}
    for a in sys.argv[1:]:
        k, v = a.split("=", 1)
        try:
            v = eval(v)
        except Exception:
            pass
        P[k] = v
    sys.stdout.write(build(**P))
```

```python
import sys
from gen import Gen, vr, allreduce64, rows_allreduce, bf16r, srd, KNAME, HEADER, LOG2E, SCALE, EPS, NUNITS
from gen4 import G2, descriptor2

WS_EP = 0
WS_ML = 4096
WS_Y = 32768
WS_G = 32768 + (1 << 20)
WS_Q = 2 << 20
WS_H = (2 << 20) + (256 << 10)
WS_PROF = 4 << 20
W1_BYTES = 512 * 2752


def kernel(g, P):
    RING = 16
    KVF = P.get("kvflags", "nt")
    name = P["name"]
    PROF = P.get("prof", 0)
    SLEEP = P.get("sleep", 1)
    GPP = P.get("gpp", 8)
    NRED = 256 // GPP
    RED0 = P.get("red0", 256 - NRED)
    NV1 = P.get("nv1", 24)
    AUTO = P.get("auto", 40)
    PRE = P.get("pre", 4)
    HF = P.get("hflags", "sc0 sc1")
    NT = 16
    DEPTH = P.get("depth", 12)
    vTID = 0
    vL, vJ, vG = 1, 2, 3
    vM = 4
    vNo = 8
    vMx, vLs = 12, 13
    vQ = 14
    vD2 = 16
    vA = 20
    vD = 28
    vT = 32
    vCc = 62
    vWOo = 63
    vR = 64
    vW = 128
    nv = 256
    NACC = 256
    vSC = vT + 14

    def slot(j):
        return vR + 4 * (j % RING)

    vXA = vW
    vXM = vW + 4
    vWQ = vW + 8
    vW1 = vW + 24
    vW2 = vW + 40
    vQG = vW + 48
    vHG = vW + 56
    vWQo = vW + 60
    vW1o = vW + 61
    vHo = vW + 62
    Yg = vW + 64

    L_QP = 0
    L_HP = 2048
    L_QB = 4096
    L_MX = 5120
    L_RED = 5248
    L_Q2 = 6144
    L_YP = 8192
    L_OP = 16384
    L_OB = 18432
    lds = 20480

    A = g.A
    stamps = []

    def stamp():
        if PROF:
            k = len(stamps)
            A(f"s_memrealtime s[{76+2*k}:{77+2*k}]")
            stamps.append(k)

    sX, sK, sV, sWQ, sWO, sW1, sW2, sY, sGs = 28, 32, 36, 40, 44, 48, 52, 56, 60

    events = set()
    plan = []

    def kv_text(kind, i, t):
        sr = sK if kind == "k" else sV
        so = 64 + i // 4
        vo = vNo + i % 4
        dst = vr(slot(4 * i + t)) if kind == "k" else f"a[{16*i+4*t}:{16*i+4*t+3}]"
        return [f"buffer_load_dwordx4 {dst}, v{vo}, s[{sr}:{sr+3}], s{so} offen offset:{t*1024} {KVF}"]

    def K(i, cond=None):
        return [(cond, kv_text("k", i, t), ("k", i, t)) for t in range(4)]

    def V(j):
        return (None, kv_text("v", j // 4, j % 4), ("v", j))

    def WO(t):
        return ("w_free", [f"s_mov_b32 s69, {(t//4)*4096}", f"buffer_load_dwordx4 {vr(vW+4*t)}, v{vWOo}, s[{sWO}:{sWO+3}], s69 offen offset:{(t%4)*1024}"], ("wo", t))

    NVA = P.get("nva", 8)
    plan += K(0) + K(1)
    plan += [V(j) for j in range(NVA)]
    plan += K(2) + K(3)
    plan += [V(j) for j in range(NVA, NV1)]
    n_pre_qk = len(plan)
    rest = [WO(t) for t in range(32)]
    WO0 = P.get("wo0", 8)
    per = -(-32 // (NT - WO0))
    vnext = [NV1]
    WOLAST = P.get("wolast", 0)
    early = rest[:32 - WOLAST]
    late = rest[32 - WOLAST:]
    per = -(-len(early) // (NT - WO0)) if early else 0
    for i in range(4, NT):
        plan += K(i, ("kt", i - 4))
        if i >= WO0:
            for _ in range(per):
                if early:
                    plan.append(early.pop(0))
        for _ in range(P.get("vq", 0)):
            plan.append(V(vnext[0])); vnext[0] += 1
    plan += early
    plan += [V(j) for j in range(vnext[0], 64)]
    plan += late
    st = {"next": 0}

    def pump(n, upto=None):
        done = 0
        while done < n and st["next"] < len(plan):
            if upto is not None and st["next"] >= upto:
                break
            cond, text, tag = plan[st["next"]]
            if cond is not None and cond not in events:
                break
            if DEPTH:
                g.pace(DEPTH)
            for s in text[:-1]:
                g.A(s)
            g.vmem(text[-1], tag)
            st["next"] += 1
            done += 1
        return done

    def issued_tags():
        return set(p[2] for p in plan[:st["next"]])

    limit = {"v": n_pre_qk}
    g.pump = lambda n: pump(n, limit["v"])

    g.label(name)
    stamp()
    A("s_load_dwordx8 s[4:11], s[0:1], 0")
    A("s_load_dwordx2 s[14:15], s[0:1], 80")
    A("s_load_dwordx4 s[16:19], s[0:1], 48")
    A("s_cmp_ge_u32 s2, 256")
    A(f"s_cbranch_scc1 {name}_end")
    A(f"v_lshrrev_b32 v{vT}, 6, v{vTID}")
    A(f"v_and_b32 v{vL}, 63, v{vTID}")
    A("s_and_b32 s20, s2, 7")
    A(f"v_readfirstlane_b32 s3, v{vT}")
    A(f"v_lshlrev_b32 v{vNo}, 4, v{vL}")
    A("s_lshl_b32 s20, s20, 2")
    A("s_bfe_u32 s22, s2, 0x20003")
    A("s_add_u32 s20, s20, s22")
    A("s_lshr_b32 s21, s2, 5")
    A("s_lshl_b32 s22, s20, 3")
    A("s_add_u32 s22, s22, s21")
    A("s_lshl_b32 s26, s22, 18")
    A("s_lshl_b32 s64, s3, 12")
    A(f"v_add_u32 v{vNo+1}, 16384, v{vNo}")
    A(f"v_add_u32 v{vNo+2}, 32768, v{vNo}")
    A(f"s_mov_b32 s{sK+2}, 262144")
    A(f"s_mov_b32 s{sK+3}, 0x00020000")
    A("s_waitcnt lgkmcnt(0)")
    A(f"s_add_u32 s{sK}, s6, s26")
    A(f"s_addc_u32 s{sK+1}, s7, 0")
    pump(4)
    srd(g, sX, 4, 5, None, 1024)
    A(f"v_lshrrev_b32 v{vG}, 4, v{vL}")
    A("s_lshl_b32 s69, s21, 6")
    A("s_lshl_b32 s25, s3, 4")
    A("s_add_u32 s69, s69, s25")
    A(f"v_lshlrev_b32 v{vT+3}, 3, v{vG}")
    A("s_lshl_b32 s24, s69, 1")
    g.vmem(f"buffer_load_dwordx4 {vr(vXA)}, v{vNo}, s[{sX}:{sX+3}], 0 offen", "xa")
    g.vmem(f"buffer_load_dwordx2 v[{vXM}:{vXM+1}], v{vT+3}, s[{sX}:{sX+3}], s24 offen", "xm")
    pump(4)
    A("s_load_dwordx2 s[12:13], s[0:1], 32")
    A("s_load_dwordx2 s[70:71], s[0:1], 64")
    A(f"s_load_dword s72, s[14:15], {WS_EP}")
    A(f"v_and_b32 v{vJ}, 15, v{vL}")
    A(f"v_lshlrev_b32 v{vT}, 4, v{vJ}")
    A(f"v_lshl_add_u32 v{vWQo}, v{vG}, 15, v{vT}")
    A("s_lshl_b32 s23, s69, 13")
    A("s_lshl_b32 s25, s20, 8")
    A("s_add_u32 s23, s23, s25")
    A("s_sub_u32 s27, 0x400000, s23")
    srd(g, sWQ, 10, 11, "s23", "s27")
    for t in range(4):
        A(f"s_mov_b32 s68, {t*8192}")
        g.vmem(f"buffer_load_dwordx4 {vr(vWQ+4*t)}, v{vWQo}, s[{sWQ}:{sWQ+3}], s68 offen", ("wq", t))
    srd(g, sV, 8, 9, "s26", 262144)
    pump(PRE)
    A(f"v_add_u32 v{vNo+3}, 49152, v{vNo}")
    for a_ in range(1, 4):
        A(f"s_add_u32 s{64+a_}, s64, {a_*65536}")
    A(f"v_lshl_add_u32 v{vWOo}, v{vG}, 15, v{vT}")
    A(f"v_mul_u32_u24 v{vW1o}, {4*2752}, v{vG}")
    A(f"v_add_u32 v{vW1o}, v{vW1o}, v{vT}")
    A("s_mul_i32 s23, s69, 2752")
    A("s_add_u32 s23, s23, s25")
    A(f"s_sub_u32 s27, {W1_BYTES}, s23")
    A("s_cmp_lt_u32 s20, 11")
    A("s_cselect_b32 s27, s27, 0")
    A("s_cselect_b32 s23, s23, 0")
    srd(g, sW1, 16, 17, "s23", "s27")
    for t in range(4):
        A(f"s_mov_b32 s68, {t*2752}")
        g.vmem(f"buffer_load_dwordx4 {vr(vW1+4*t)}, v{vW1o}, s[{sW1}:{sW1+3}], s68 offen", ("w1", t), real=False)
    A("s_waitcnt lgkmcnt(0)")
    A("s_add_u32 s23, s20, 21")
    A("s_and_b32 s23, s23, 31")
    A("s_lshl_b32 s23, s23, 3")
    A("s_add_u32 s23, s23, s21")
    A(f"s_cmp_lt_u32 s23, {NUNITS}")
    A("s_cselect_b32 s25, 1, 0")
    A("s_cselect_b32 s23, s23, 0")
    if P.get("nog"): A("s_mov_b32 s25, 0")
    A("s_lshl_b32 s26, s23, 3")
    A("s_add_u32 s26, s26, s3")
    A("s_lshl_b32 s26, s26, 10")
    A("s_mul_i32 s27, s25, 5120")
    srd(g, sW2, 18, 19, "s26", "s27")
    A("s_lshl_b32 s26, s20, 17")
    A("s_lshl_b32 s27, s3, 8")
    A("s_add_u32 s26, s26, s27")
    A("s_sub_u32 s27, 0x400000, s26")
    if P.get("nowo"): A("s_mov_b32 s27, 0")
    srd(g, sWO, 12, 13, "s26", "s27")
    stamp()
    g.auto = AUTO
    A(f"v_and_b32 v{vT}, 1, v{vJ}")
    A(f"v_lshlrev_b32 v{vT}, 4, v{vT}")
    A(f"v_mov_b32 v{vT+1}, 0xffff")
    A(f"v_lshlrev_b32 v{vT+1}, v{vT}, v{vT+1}")
    A(f"v_bfe_u32 v{vT}, v{vJ}, 1, 2")
    for r in range(4):
        A(f"v_cmp_eq_u32 vcc, {r}, v{vT}")
        g.nop(2)
        A(f"v_cndmask_b32 v{vM+r}, 0, v{vT+1}, vcc")

    g.wait("xa")
    X = vT
    for k in range(4):
        A(f"v_lshlrev_b32 v{X+2*k}, 16, v{vXA+k}")
        A(f"v_and_b32 v{X+2*k+1}, 0xffff0000, v{vXA+k}")
    S, Tm = vT + 8, vT + 9
    A(f"v_add_f32 v{S}, v{X}, v{X+1}")
    for k in range(2, 8):
        A(f"v_add_f32 v{S}, v{S}, v{X+k}")
    allreduce64(g, "add", S, Tm)
    A(f"v_mul_f32 v{S}, 0x3b000000, v{S}")
    Q = vT + 10
    for k in range(8):
        A(f"v_sub_f32 v{X+k}, v{X+k}, v{S}")
    A(f"v_mul_f32 v{Q}, v{X}, v{X}")
    for k in range(1, 8):
        A(f"v_fmac_f32 v{Q}, v{X+k}, v{X+k}")
    allreduce64(g, "add", Q, Tm)
    A(f"v_mul_f32 v{Q}, 0x3b000000, v{Q}")
    bf16r(g, S)
    bf16r(g, Q)
    A(f"v_add_f32 v{Q}, {hex(EPS)}, v{Q}")
    bf16r(g, Q)
    A(f"v_sqrt_f32 v{Q}, v{Q}")
    g.nop(1)
    bf16r(g, Q)
    RS = vT + 11
    A(f"v_rcp_f32 v{RS}, v{Q}")
    g.nop(1)
    MEAN, SD = S, Q

    def normalize(src, t0, t1):
        A(f"v_sub_f32 v{src}, v{src}, v{MEAN}")
        bf16r(g, src)
        A(f"v_mul_f32 v{t0}, v{src}, v{RS}")
        A(f"v_fma_f32 v{t1}, -v{t0}, v{SD}, v{src}")
        A(f"v_fma_f32 v{t0}, v{t1}, v{RS}, v{t0}")

    vXP = vT + 14
    g.wait("xm")
    for k in range(2):
        A(f"v_lshlrev_b32 v{X}, 16, v{vXM+k}")
        A(f"v_and_b32 v{X+1}, 0xffff0000, v{vXM+k}")
        normalize(X, X + 2, X + 3)
        normalize(X + 1, X + 4, X + 5)
        A(f"v_cvt_pk_bf16_f32 v{vXP+2*k}, v{X+2}, v{X+2}")
        A(f"v_cvt_pk_bf16_f32 v{vXP+2*k+1}, v{X+4}, v{X+4}")

    def ands(src, aset):
        for r in range(4):
            A(f"v_and_b32 v{vA+4*aset+r}, v{vM+r}, v{src}")

    ands(vXP, 0)
    for t in range(4):
        if t < 3:
            ands(vXP + t + 1, (t + 1) % 2)
        else:
            g.nop(2)
        g.wait(("wq", t))
        c = "0" if t == 0 else vr(vD)
        A(f"v_mfma_f32_16x16x32_bf16 {vr(vD)}, {vr(vA+4*(t%2))}, {vr(vWQ+4*t)}, {c}")
        g.wait(("w1", t))
        c = "0" if t == 0 else vr(vD2)
        A(f"v_mfma_f32_16x16x32_bf16 {vr(vD2)}, {vr(vA+4*(t%2))}, {vr(vW1+4*t)}, {c}")
    aQ = vT + 6
    A(f"v_and_b32 v{aQ}, 1, v{vG}")
    A(f"v_lshlrev_b32 v{aQ}, 4, v{aQ}")
    A(f"v_lshl_add_u32 v{aQ}, v{vJ}, 5, v{aQ}")
    A("s_lshl_b32 s26, s3, 9")
    A(f"v_add_u32 v{aQ}, s26, v{aQ}")
    A("s_lshl_b32 s26, s22, 10")
    A(f"s_add_u32 s27, s26, {WS_Q}")
    A(f"s_add_u32 s26, s26, {WS_H}")
    A("s_cmp_eq_u32 s3, 0")
    A("s_cselect_b32 s26, s27, s26")
    A("s_cselect_b32 s27, 1024, 0")
    A("s_cselect_b32 s24, 0, 2048")
    A("s_cmp_eq_u32 s3, 1")
    A("s_cselect_b32 s68, 1024, 0")
    A("s_cmp_lt_u32 s20, 11")
    A("s_cselect_b32 s68, s68, 0")
    A("s_add_u32 s27, s27, s68")
    srd(g, sGs, 14, 15, "s26", "s27")
    A(f"ds_write_b128 v{aQ}, {vr(vD)} offset:{L_QP}")
    A(f"ds_write_b128 v{aQ}, {vr(vD2)} offset:{L_HP}")
    g.auto = 0
    aR = vT + 6
    A(f"v_lshlrev_b32 v{aR}, 3, v{vL}")
    A(f"v_add_u32 v{aR}, s24, v{aR}")
    A("s_waitcnt lgkmcnt(0)")
    A("s_barrier")
    stamp()
    QS = vT + 14
    for w in range(4):
        A(f"ds_read_b64 v[{QS+2*w}:{QS+2*w+1}], v{aR} offset:{L_QP + w*512}")
    A("s_mul_i32 s73, s72, 0x9E3779B1")
    A("s_add_u32 s73, s73, 0x7F4A7C15")
    A("s_mul_i32 s74, s72, 0x85EBCA77")
    A("s_add_u32 s74, s74, 0xC2B2AE3D")
    A("s_waitcnt lgkmcnt(0)")
    A(f"v_add_f32 v{QS}, v{QS}, v{QS+2}")
    A(f"v_add_f32 v{QS+1}, v{QS+1}, v{QS+3}")
    A(f"v_add_f32 v{QS+4}, v{QS+4}, v{QS+6}")
    A(f"v_add_f32 v{QS+5}, v{QS+5}, v{QS+7}")
    A(f"v_add_f32 v{QS}, v{QS}, v{QS+4}")
    A(f"v_add_f32 v{QS+2}, v{QS+1}, v{QS+5}")
    A(f"v_mov_b32 v{QS+1}, s73")
    A(f"v_mov_b32 v{QS+3}, s74")
    g.vmem(f"buffer_store_dwordx4 {vr(QS)}, v{vNo}, s[{sGs}:{sGs+3}], 0 offen {HF}", "qst")
    stamp()
    g.vmem(f"buffer_load_dwordx4 {vr(vW2)}, v{vNo}, s[{sW2}:{sW2+3}], 0 offen", "w2", real=False)
    A("s_movk_i32 s27, 4096")
    g.vmem(f"buffer_load_dwordx4 {vr(vW2+4)}, v{vNo}, s[{sW2}:{sW2+3}], s27 offen", "w2", real=False)
    pump(P.get("pre3", 12))
    A("s_lshl_b32 s26, s20, 13")
    A("s_lshl_b32 s27, s3, 11")
    A("s_add_u32 s26, s26, s27")
    A(f"s_add_u32 s26, s26, {WS_Q}")
    srd(g, sGs, 14, 15, "s26", 2048)
    g.vmem(f"buffer_load_dwordx4 {vr(vQG)}, v{vNo}, s[{sGs}:{sGs+3}], 0 offen {HF}", "qg")
    g.vmem(f"buffer_load_dwordx4 {vr(vQG+4)}, v{vNo}, s[{sGs}:{sGs+3}], 0 offen offset:1024 {HF}", "qg")
    pump(P.get("pre4", 16))
    A("s_mov_b32 s24, 0")
    g.wait("qg")
    g.label(name + "_qchk")
    A(f"v_xor_b32 v{vT}, s73, v{vQG+1}")
    A(f"v_xor_b32 v{vT+1}, s74, v{vQG+3}")
    A(f"v_xor_b32 v{vT+2}, s73, v{vQG+5}")
    A(f"v_xor_b32 v{vT+3}, s74, v{vQG+7}")
    A(f"v_or3_b32 v{vT}, v{vT}, v{vT+1}, v{vT+2}")
    A(f"v_or_b32 v{vT}, v{vT}, v{vT+3}")
    A(f"v_cmp_ne_u32 vcc, 0, v{vT}")
    A("s_add_u32 s24, s24, 1")
    if P.get("noqwait"): A(f"s_branch {name}_qok")
    A(f"s_cbranch_vccz {name}_qok")
    A("s_cmp_ge_u32 s24, 0x40000")
    A(f"s_cbranch_scc1 {name}_qok")
    A(f"buffer_load_dwordx4 {vr(vQG)}, v{vNo}, s[{sGs}:{sGs+3}], 0 offen {HF}")
    A(f"buffer_load_dwordx4 {vr(vQG+4)}, v{vNo}, s[{sGs}:{sGs+3}], 0 offen offset:1024 {HF}")
    A("s_waitcnt vmcnt(0)")
    A(f"s_branch {name}_qchk")
    g.label(name + "_qok")
    A(f"v_add_f32 v{vT}, v{vQG}, v{vQG+4}")
    A(f"v_add_f32 v{vT+1}, v{vQG+2}, v{vQG+6}")
    A(f"v_lshlrev_b32 v{aR}, 3, v{vL}")
    A("s_lshl_b32 s26, s3, 9")
    A(f"v_add_u32 v{vT+2}, s26, v{aR}")
    A(f"ds_write_b64 v{vT+2}, v[{vT}:{vT+1}] offset:{L_Q2}")
    A(f"v_bfe_u32 v{vHo}, v{vL}, 2, 3")
    A(f"v_lshlrev_b32 v{vHo}, 10, v{vHo}")
    A(f"v_and_b32 v{vT+3}, 3, v{vL}")
    A(f"v_lshl_add_u32 v{vHo}, v{vT+3}, 4, v{vHo}")
    A("s_lshr_b32 s26, s23, 4")
    A("s_lshl_b32 s26, s26, 13")
    A("s_and_b32 s27, s23, 15")
    A("s_lshl_b32 s27, s27, 6")
    A("s_add_u32 s26, s26, s27")
    A(f"s_add_u32 s26, s26, {WS_H}")
    A("s_mul_i32 s27, s25, 8192")
    srd(g, sW1, 14, 15, "s26", "s27")
    g.vmem(f"buffer_load_dwordx4 {vr(vHG)}, v{vHo}, s[{sW1}:{sW1+3}], 0 offen {HF}", "hg", real=False)
    pump(1000, n_pre_qk)
    A("s_waitcnt lgkmcnt(0)")
    A("s_barrier")
    stamp()
    for w in range(4):
        A(f"ds_read_b64 v[{QS+2*w}:{QS+2*w+1}], v{aR} offset:{L_Q2 + w*512}")
    A(f"v_lshlrev_b32 v{vT+2}, 2, v{vL}")
    A("s_lshl_b32 s26, s3, 8")
    A(f"v_add_u32 v{vT+2}, s26, v{vT+2}")
    A(f"v_lshlrev_b32 v{vT+3}, 4, v{vJ}")
    A(f"v_add_u32 v{vT+3}, s26, v{vT+3}")
    A("s_waitcnt lgkmcnt(0)")
    A(f"v_add_f32 v{QS}, v{QS}, v{QS+2}")
    A(f"v_add_f32 v{QS+1}, v{QS+1}, v{QS+3}")
    A(f"v_add_f32 v{QS+4}, v{QS+4}, v{QS+6}")
    A(f"v_add_f32 v{QS+5}, v{QS+5}, v{QS+7}")
    A(f"v_add_f32 v{QS}, v{QS}, v{QS+4}")
    A(f"v_add_f32 v{QS+1}, v{QS+1}, v{QS+5}")
    A(f"v_cvt_pk_bf16_f32 v{QS}, v{QS}, v{QS+1}")
    A(f"ds_write_b32 v{vT+2}, v{QS} offset:{L_QB}")
    A("s_waitcnt lgkmcnt(0)")
    A(f"ds_read_b128 {vr(vQ)}, v{vT+3} offset:{L_QB}")

    def silu(v, t):
        A(f"v_mul_f32 v{t}, {hex(LOG2E ^ 0x80000000)}, v{v}")
        A(f"v_exp_f32 v{t}, v{t}")
        g.nop(1)
        A(f"v_add_f32 v{t}, 1.0, v{t}")
        A(f"v_rcp_f32 v{t+1}, v{t}")
        g.nop(1)
        A(f"v_mul_f32 v{t+2}, v{v}, v{t+1}")
        A(f"v_fma_f32 v{t+3}, -v{t+2}, v{t}, v{v}")
        A(f"v_fma_f32 v{t+2}, v{t+3}, v{t+1}, v{t+2}")
        A(f"v_cmp_lt_f32 vcc, 0x7f000000, v{t}")
        A(f"v_mul_f32 v{t+3}, v{v}, v{t+1}")
        g.nop(1)
        A(f"v_cndmask_b32 v{v}, v{t+2}, v{t+3}, vcc")
        bf16r(g, v)

    a = [vT + 1, vT + 2, vT + 3, vT + 4]
    b0, b1 = vT + 5, vT + 6
    PQ = P.get("pq", 12)

    def qk(i):
        while ("k", i, 3) not in issued_tags():
            assert pump(1) == 1
        g.wait(("k", i, 3))
        for c in range(4):
            for t in range(4):
                if c == 0:
                    A(f"v_dot2_f32_bf16 v{a[t]}, v{slot(4*i+t)}, v{vQ}, 0")
                else:
                    A(f"v_dot2c_f32_bf16 v{a[t]}, v{slot(4*i+t)+c}, v{vQ+c}")
        events.add(("kt", i))
        pump(PQ if i < NT - 4 else P.get("pql", 4))
        A(f"v_add_f32_dpp v{b0}, v{a[0]}, v{a[0]} row_ror:8 row_mask:0xf bank_mask:0x3")
        A(f"v_add_f32_dpp v{b1}, v{a[1]}, v{a[1]} row_ror:8 row_mask:0xf bank_mask:0x3")
        A(f"v_add_f32_dpp v{b0}, v{a[2]}, v{a[2]} row_ror:8 row_mask:0xf bank_mask:0xc")
        A(f"v_add_f32_dpp v{b1}, v{a[3]}, v{a[3]} row_ror:8 row_mask:0xf bank_mask:0xc")
        g.nop(2)
        c_ = vSC + i
        A(f"v_add_f32_dpp v{c_}, v{b0}, v{b0} row_half_mirror row_mask:0xf bank_mask:0x5")
        A(f"v_add_f32_dpp v{c_}, v{b1}, v{b1} row_half_mirror row_mask:0xf bank_mask:0xa")
        g.nop(2)
        A(f"v_add_f32_dpp v{c_}, v{c_}, v{c_} quad_perm:[1,0,3,2] row_mask:0xf bank_mask:0xf")
        g.nop(2)
        A(f"v_add_f32_dpp v{c_}, v{c_}, v{c_} quad_perm:[2,3,0,1] row_mask:0xf bank_mask:0xf")
        bf16r(g, c_)
        A(f"v_mul_f32 v{c_}, {hex(SCALE)}, v{c_}")
        bf16r(g, c_)

    limit["v"] = None
    A("s_waitcnt lgkmcnt(0)")
    stamp()
    GT = P.get("gt", 3)
    for i in range(GT):
        qk(i)
    g.wait("hg")
    A("s_mov_b32 s24, 0")
    g.label(name + "_hchk")
    A(f"v_xor_b32 v{vT}, s73, v{vHG+1}")
    A(f"v_xor_b32 v{vT+1}, s74, v{vHG+3}")
    A(f"v_or_b32 v{vT}, v{vT}, v{vT+1}")
    A(f"v_cmp_ne_u32 vcc, 0, v{vT}")
    A("s_add_u32 s24, s24, 1")
    A(f"s_cbranch_vccz {name}_hok")
    A("s_cmp_eq_u32 s25, 0")
    A(f"s_cbranch_scc1 {name}_hok")
    A("s_cmp_ge_u32 s24, 0x40000")
    A(f"s_cbranch_scc1 {name}_hok")
    A(f"buffer_load_dwordx4 {vr(vHG)}, v{vHo}, s[{sW1}:{sW1+3}], 0 offen {HF}")
    A("s_waitcnt vmcnt(0)")
    A(f"s_branch {name}_hchk")
    g.label(name + "_hok")
    h0, h1 = vHG, vHG + 2
    for ctl in ("row_ror:4", "row_ror:8"):
        g.nop(1)
        A(f"v_add_f32_dpp v{h0}, v{h0}, v{h0} {ctl} row_mask:0xf bank_mask:0xf")
        A(f"v_add_f32_dpp v{h1}, v{h1}, v{h1} {ctl} row_mask:0xf bank_mask:0xf")
    A(f"v_mov_b32 v{vT}, v{h0}")
    A(f"v_mov_b32 v{vT+1}, v{h1}")
    g.nop(1)
    A(f"v_permlane16_swap_b32 v{h0}, v{vT}")
    A(f"v_permlane16_swap_b32 v{h1}, v{vT+1}")
    g.nop(1)
    A(f"v_add_f32 v{h0}, v{h0}, v{vT}")
    A(f"v_add_f32 v{h1}, v{h1}, v{vT+1}")
    A("s_and_b32 s26, s3, 1")
    A("s_cmp_eq_u32 s26, 1")
    A("s_cselect_b64 s[26:27], -1, 0")
    A("s_lshr_b32 s24, s3, 1")
    A("s_add_u32 s68, s24, 2")
    A(f"v_cndmask_b32 v{h0}, v{h0}, v{h1}, s[26:27]")
    g.nop(1)
    A(f"v_readlane_b32 s26, v{h0}, s24")
    A(f"v_readlane_b32 s27, v{h0}, s68")
    Ha, Hb = vT, vT + 7
    g.nop(2)
    A(f"v_mov_b32 v{Ha}, s26")
    A(f"v_mov_b32 v{Hb}, s27")
    bf16r(g, Ha)
    bf16r(g, Hb)
    silu(Ha, vT + 1)
    silu(Hb, vT + 1)
    g.wait("w2")
    for k in range(4):
        A(f"v_lshlrev_b32 v{Yg+2*k}, 16, v{vW2+k}")
        A(f"v_and_b32 v{Yg+2*k+1}, 0xffff0000, v{vW2+k}")
        A(f"v_lshlrev_b32 v{vT+8}, 16, v{vW2+4+k}")
        A(f"v_and_b32 v{vT+9}, 0xffff0000, v{vW2+4+k}")
        A(f"v_mul_f32 v{Yg+2*k}, v{Yg+2*k}, v{Ha}")
        A(f"v_mul_f32 v{Yg+2*k+1}, v{Yg+2*k+1}, v{Ha}")
        A(f"v_fmac_f32 v{Yg+2*k}, v{vT+8}, v{Hb}")
        A(f"v_fmac_f32 v{Yg+2*k+1}, v{vT+9}, v{Hb}")
    aY = vT + 1
    A(f"v_lshlrev_b32 v{aY}, 5, v{vL}")
    A("s_lshl_b32 s26, s3, 11")
    A(f"v_add_u32 v{aY}, s26, v{aY}")
    A(f"ds_write_b128 v{aY}, {vr(Yg)} offset:{L_YP}")
    A(f"ds_write_b128 v{aY}, {vr(Yg+4)} offset:{L_YP+16}")
    A("s_waitcnt lgkmcnt(0)")
    events.add("w_free")
    qk(GT)
    A("s_barrier")
    GS = vT + 6
    A(f"v_lshlrev_b32 v{vT}, 3, v{vTID}")
    for w in range(4):
        A(f"ds_read_b64 v[{GS+2*w}:{GS+2*w+1}], v{vT} offset:{L_YP + w*2048}")
    A(f"s_lshl_b32 s26, s23, 12")
    A(f"s_add_u32 s26, s26, {WS_G}")
    A("s_lshl_b32 s27, s25, 12")
    srd(g, sGs, 14, 15, "s26", "s27")
    A(f"v_lshlrev_b32 v{vT+1}, 4, v{vTID}")
    A("s_waitcnt lgkmcnt(0)")
    A(f"v_add_f32 v{GS}, v{GS}, v{GS+2}")
    A(f"v_add_f32 v{GS+1}, v{GS+1}, v{GS+3}")
    A(f"v_add_f32 v{GS+4}, v{GS+4}, v{GS+6}")
    A(f"v_add_f32 v{GS+5}, v{GS+5}, v{GS+7}")
    A(f"v_add_f32 v{GS}, v{GS}, v{GS+4}")
    A(f"v_add_f32 v{GS+2}, v{GS+1}, v{GS+5}")
    A(f"v_mov_b32 v{GS+1}, s73")
    A(f"v_mov_b32 v{GS+3}, s74")
    g.vmem(f"buffer_store_dwordx4 {vr(GS)}, v{vT+1}, s[{sGs}:{sGs+3}], 0 offen {HF}", "gst")
    for i in range(GT + 1, NT):
        qk(i)
    stamp()
    A(f"v_max3_f32 v{vMx}, v{vSC}, v{vSC+1}, v{vSC+2}")
    for k in range(3, NT - 1, 2):
        A(f"v_max3_f32 v{vMx}, v{vMx}, v{vSC+k}, v{vSC+k+1}")
    A(f"v_max_f32 v{vMx}, v{vMx}, v{vSC+NT-1}")
    for ctl in ("row_ror:4", "row_ror:8"):
        g.nop(2)
        A(f"v_max_f32_dpp v{vMx}, v{vMx}, v{vMx} {ctl} row_mask:0xf bank_mask:0xf")
    rows_allreduce(g, "max", vMx, vT)
    A("s_lshl_b32 s26, s3, 2")
    A(f"v_mov_b32 v{vT}, s26")
    A(f"ds_write_b32 v{vT}, v{vMx} offset:{L_MX}")
    pump(P.get("pm", 4))
    A("s_waitcnt lgkmcnt(0)")
    A("s_barrier")
    A(f"v_mov_b32 v{vT}, 0")
    A(f"ds_read_b128 {vr(vT+4)}, v{vT} offset:{L_MX}")
    A("s_lshl_b32 s26, s22, 2")
    A("s_add_u32 s26, s26, s3")
    A("s_lshl_b32 s26, s26, 4")
    A(f"s_add_u32 s26, s26, {WS_ML}")
    srd(g, sGs, 14, 15, "s26", 16)
    A(f"s_mov_b32 s26, {hex(LOG2E)}")
    A("s_waitcnt lgkmcnt(0)")
    A(f"v_max3_f32 v{vMx}, v{vT+4}, v{vT+5}, v{vT+6}")
    A(f"v_max_f32 v{vMx}, v{vMx}, v{vT+7}")
    A(f"v_mul_f32 v{vT}, s26, v{vMx}")
    for k in range(NT):
        A(f"v_fma_f32 v{vSC+k}, v{vSC+k}, s26, -v{vT}")
    for k in range(NT):
        A(f"v_exp_f32 v{vSC+k}, v{vSC+k}")
    A(f"v_mov_b32 v{vT+1}, s73")
    A(f"v_add_f32 v{vLs}, v{vSC}, v{vSC+1}")
    A(f"v_add_f32 v{vT+5}, v{vSC+2}, v{vSC+3}")
    for k in range(4, NT, 2):
        A(f"v_add_f32 v{vLs}, v{vLs}, v{vSC+k}")
        A(f"v_add_f32 v{vT+5}, v{vT+5}, v{vSC+k+1}")
    A(f"v_add_f32 v{vLs}, v{vLs}, v{vT+5}")
    for k in range(NT):
        A(f"v_cvt_pk_bf16_f32 v{vSC+k}, v{vSC+k}, v{vSC+k}")
        if k == 3:
            A(f"v_add_f32_dpp v{vLs}, v{vLs}, v{vLs} row_ror:4 row_mask:0xf bank_mask:0xf")
        if k == 7:
            A(f"v_add_f32_dpp v{vLs}, v{vLs}, v{vLs} row_ror:8 row_mask:0xf bank_mask:0xf")
    rows_allreduce(g, "add", vLs, vT + 5)
    A(f"v_mov_b32 v{vT}, v{vMx}")
    A(f"v_mov_b32 v{vT+2}, v{vLs}")
    A(f"v_mov_b32 v{vT+3}, s74")
    A(f"v_lshlrev_b32 v{vT+4}, 4, v{vL}")
    g.vmem(f"buffer_store_dwordx4 {vr(vT)}, v{vT+4}, s[{sGs}:{sGs+3}], 0 offen {HF}", "mlst")
    RML = vR
    vOm = vR + 41
    A("s_lshl_b32 s26, s20, 9")
    A(f"s_add_u32 s26, s26, {WS_ML}")
    srd(g, sK, 14, 15, "s26", 512)
    A(f"v_and_b32 v{vOm}, 31, v{vL}")
    A(f"v_lshlrev_b32 v{vOm}, 4, v{vOm}")
    n_vend = max(i for i, p_ in enumerate(plan) if p_[2][0] == "v") + 1
    left = n_vend - st["next"]
    pump(max(0, left - P.get("mlafter", 8)))
    g.vmem(f"buffer_load_dwordx4 {vr(RML)}, v{vOm}, s[{sK}:{sK+3}], 0 offen {HF}", "mlg")
    pump(1000, n_vend)
    stamp()
    def pand(tt):
        for r in range(4):
            A(f"v_and_b32_dpp v{vA+4*(tt%2)+r}, v{vSC+tt//4}, v{vM+r} row_newbcast:{4*(tt%4)} row_mask:0xf bank_mask:0xf")
    NV = 4 * NT
    RML = vR
    PPL = 256 // GPP
    NGL = (NUNITS + PPL - 1) // PPL
    RG = [vR + 4 + 4 * k for k in range(NGL)]
    assert 4 + 4 * NGL <= 40
    vOy, vOm, vDf, vXo = vR + 40, vR + 41, vR + 42, vR + 43
    vGm = vR + 44
    lg = {1: 0, 2: 1, 4: 2, 8: 3}[GPP]
    GLT = P.get("glt", 8)
    MLT = P.get("mlt", 52)

    cT = vR + 48
    def cfactor():
        g.wait("mlg")
        A("s_mov_b32 s24, 0")
        g.label(name + "_mlchk")
        A(f"v_xor_b32 v{cT}, s73, v{RML+1}")
        A(f"v_xor_b32 v{cT+1}, s74, v{RML+3}")
        A(f"v_or_b32 v{cT}, v{cT}, v{cT+1}")
        A(f"v_cmp_ne_u32 vcc, 0, v{cT}")
        A("s_add_u32 s24, s24, 1")
        if P.get("nomlwait"): A(f"s_branch {name}_mlok")
        A(f"s_cbranch_vccz {name}_mlok")
        A("s_cmp_ge_u32 s24, 0x40000")
        A(f"s_cbranch_scc1 {name}_mlok")
        A(f"buffer_load_dwordx4 {vr(RML)}, v{vOm}, s[{sK}:{sK+3}], 0 offen {HF}")
        A("s_waitcnt vmcnt(0)")
        A(f"s_branch {name}_mlchk")
        g.label(name + "_mlok")
        Mh, E_, L_, C_ = cT, cT + 1, cT + 2, vCc
        A(f"v_mov_b32 v{Mh}, v{RML}")
        for ctl in ("quad_perm:[1,0,3,2]", "quad_perm:[2,3,0,1]", "row_half_mirror", "row_mirror"):
            g.nop(2)
            A(f"v_max_f32_dpp v{Mh}, v{Mh}, v{Mh} {ctl} row_mask:0xf bank_mask:0xf")
        A(f"v_mov_b32 v{cT+3}, v{Mh}")
        g.nop(2)
        A(f"v_permlane16_swap_b32 v{Mh}, v{cT+3}")
        g.nop(1)
        A(f"v_max_f32 v{Mh}, v{Mh}, v{cT+3}")
        A(f"v_sub_f32 v{E_}, v{RML}, v{Mh}")
        A(f"v_sub_f32 v{C_}, v{vMx}, v{Mh}")
        A(f"v_mul_f32 v{E_}, {hex(LOG2E)}, v{E_}")
        A(f"v_mul_f32 v{C_}, {hex(LOG2E)}, v{C_}")
        A(f"v_exp_f32 v{E_}, v{E_}")
        A(f"v_exp_f32 v{C_}, v{C_}")
        g.nop(1)
        A(f"v_mul_f32 v{L_}, v{E_}, v{RML+2}")
        for ctl in ("quad_perm:[1,0,3,2]", "quad_perm:[2,3,0,1]", "row_half_mirror", "row_mirror"):
            g.nop(2)
            A(f"v_add_f32_dpp v{L_}, v{L_}, v{L_} {ctl} row_mask:0xf bank_mask:0xf")
        A(f"v_mov_b32 v{cT+3}, v{L_}")
        g.nop(2)
        A(f"v_permlane16_swap_b32 v{L_}, v{cT+3}")
        g.nop(1)
        A(f"v_add_f32 v{L_}, v{L_}, v{cT+3}")
        A(f"v_rcp_f32 v{cT+3}, v{L_}")
        g.nop(1)
        A(f"v_mul_f32 v{cT}, v{C_}, v{cT+3}")
        A(f"v_fma_f32 v{cT+1}, -v{cT}, v{L_}, v{C_}")
        A(f"v_fma_f32 v{C_}, v{cT+1}, v{cT+3}, v{cT}")

    pand(0)
    for t in range(NV):
        if t + 1 < NV:
            pand(t + 1)
        else:
            g.nop(2)
        g.wait(("v", t))
        c = "0" if t == 0 else vr(vD)
        A(f"v_mfma_f32_16x16x32_bf16 {vr(vD)}, {vr(vA+4*(t%2))}, a[{4*t}:{4*t+3}], {c}")
        pump(1)
        if t == GLT:
            A(f"v_lshrrev_b32 v{vT}, {lg}, v{vTID}")
            A(f"v_and_b32 v{vT+1}, {GPP-1}, v{vTID}")
            A(f"v_lshlrev_b32 v{vT+1}, 4, v{vT+1}")
            A(f"v_lshl_add_u32 v{vOy}, v{vT}, 12, v{vT+1}")
            klast = NGL - 1
            A(f"v_cmp_gt_u32 vcc, {NUNITS - klast*PPL}, v{vT}")
            A(f"v_mov_b32 v{vGm}, 0")
            g.nop(1)
            A(f"v_cndmask_b32 v{vGm}, v{vGm}, -1, vcc")
            A(f"s_sub_u32 s24, s2, {RED0}")
            A(f"s_cmp_lt_u32 s24, {NRED}")
            A(f"s_cselect_b32 s21, 1, 0")
            A(f"s_cselect_b32 s24, s24, 0")
            A(f"s_lshl_b32 s26, s24, {4+lg}")
            A(f"s_add_u32 s27, s26, {WS_G}")
            A(f"s_sub_u32 s24, {NUNITS*4096}, s26")
            A(f"s_mul_i32 s24, s24, s21")
            srd(g, sW1, 14, 15, "s27", "s24")
            for k in range(NGL):
                A(f"s_mov_b32 s26, {k*PPL*4096}")
                g.vmem(f"buffer_load_dwordx4 {vr(RG[k])}, v{vOy}, s[{sW1}:{sW1+3}], s26 offen {HF}", "gg", real=False)
            A(f"v_and_b32 v{vT+8}, 1, v{vG}")
            A(f"v_lshlrev_b32 v{vT+8}, 4, v{vT+8}")
            A(f"v_lshl_add_u32 v{vT+8}, v{vJ}, 5, v{vT+8}")
            A("s_lshl_b32 s26, s3, 9")
            A(f"v_add_u32 v{vT+8}, s26, v{vT+8}")
            A(f"v_lshlrev_b32 v{vT+9}, 3, v{vL}")
            A(f"v_add_u32 v{vT+1}, s26, v{vT+9}")
            A(f"v_lshlrev_b32 v{vT+2}, 7, v{vG}")
            A(f"v_add_u32 v{vT+2}, s26, v{vT+2}")
            A(f"v_mov_b32 v{vT+5}, s73")
            A(f"v_mov_b32 v{vT+7}, s74")
            A(f"v_and_b32 v{vT+10}, 1, v{vG}")
            A(f"v_lshlrev_b32 v{vT+10}, 5, v{vT+10}")
            A(f"v_lshl_add_u32 v{vT+10}, v{vJ}, 6, v{vT+10}")
            A(f"v_lshrrev_b32 v{vT+11}, 1, v{vG}")
            A(f"v_lshl_add_u32 v{vT+10}, v{vT+11}, 4, v{vT+10}")
            A("s_lshl_b32 s26, s22, 12")
            A("s_lshl_b32 s27, s3, 10")
            A("s_add_u32 s26, s26, s27")
            A(f"s_add_u32 s26, s26, {WS_Y}")
            srd(g, sY, 14, 15, "s26", 1024)
            A(f"v_cmp_lt_u32 s[74+22:74+23], v{vL}, 32".replace("74+22", "96").replace("74+23", "97") if not PROF else f"v_cmp_lt_u32 s[26:27], v{vL}, 32")
        if t == MLT:
            cfactor()
    assert st["next"] == len(plan), (st["next"], len(plan))
    sLo = "s[96:97]" if not PROF else "s[26:27]"
    stamp()
    aQ, GR, vSA = vT + 8, vT + 4, vT + 10
    g.nop(8)
    A(f"ds_write_b128 v{aQ}, {vr(vD)} offset:{L_OP}")
    A("s_waitcnt lgkmcnt(0)")
    A("s_barrier")
    O4 = vR + 48
    for w in range(4):
        A(f"ds_read_b64 v[{O4+2*w}:{O4+2*w+1}], v{vT+9} offset:{L_OP + w*512}")
    A("s_waitcnt lgkmcnt(0)")
    A(f"v_add_f32 v{O4}, v{O4}, v{O4+2}")
    A(f"v_add_f32 v{O4+1}, v{O4+1}, v{O4+3}")
    A(f"v_add_f32 v{O4+4}, v{O4+4}, v{O4+6}")
    A(f"v_add_f32 v{O4+5}, v{O4+5}, v{O4+7}")
    A(f"v_add_f32 v{O4}, v{O4}, v{O4+4}")
    A(f"v_add_f32 v{O4+1}, v{O4+1}, v{O4+5}")
    A(f"v_cvt_pk_bf16_f32 v{O4}, v{O4}, v{O4}")
    A(f"v_cvt_pk_bf16_f32 v{O4+1}, v{O4+1}, v{O4+1}")
    A(f"ds_write_b64 v{vT+1}, v[{O4}:{O4+1}] offset:{L_OB}")
    A("s_waitcnt lgkmcnt(0)")
    ODr = [vSC + k for k in range(16)] + [vR + 48 + k for k in range(16)]
    for k in range(8):
        A(f"ds_read_b128 {vr(ODr[4*k])}, v{vT+2} offset:{L_OB+16*k}")

    def wand(t):
        for r in range(4):
            A(f"v_and_b32 v{vA+4*(t%2)+r}, v{vM+r}, v{ODr[t]}")
    A("s_waitcnt lgkmcnt(7)")
    wand(0)
    for t in range(32):
        if t + 1 < 32:
            if (t + 1) % 4 == 0:
                A(f"s_waitcnt lgkmcnt({7 - (t+1)//4})")
            wand(t + 1)
        else:
            g.nop(2)
        g.wait(("wo", t))
        c = "0" if t == 0 else vr(vD)
        A(f"v_mfma_f32_16x16x32_bf16 {vr(vD)}, {vr(vA+4*(t%2))}, {vr(vW+4*t)}, {c}")
    stamp()
    if PROF:
        A(f"v_cmp_lt_u32 s[26:27], v{vL}, 32")
        g.nop(2)
    g.wait("gg")
    g.nop(8)
    A(f"v_cndmask_b32 v{GR}, v{vD+2}, v{vD}, {sLo}")
    A(f"v_cndmask_b32 v{GR+2}, v{vD+3}, v{vD+1}, {sLo}")
    A(f"v_mul_f32 v{GR}, v{GR}, v{vCc}")
    A(f"v_mul_f32 v{GR+2}, v{GR+2}, v{vCc}")
    g.vmem(f"buffer_store_dwordx4 {vr(GR)}, v{vSA}, s[{sY}:{sY+3}], 0 offen {HF}", "yst")
    stamp()
    if P.get("nofinal"):
        A(f"s_branch {name}_fin")
    A(f"s_sub_u32 s21, s2, {RED0}")
    A(f"s_cmp_ge_u32 s21, {NRED}")
    A(f"s_cbranch_scc1 {name}_fin")
    RY = [vW + 4 * k for k in range(GPP)]
    A(f"s_lshl_b32 s26, s21, {4+lg}")
    A(f"s_add_u32 s27, s26, {WS_Y}")
    A(f"s_sub_u32 s24, {256*4096}, s26")
    srd(g, sY, 14, 15, "s27", "s24")

    def ypoll():
        for k in range(GPP):
            A(f"s_mov_b32 s26, {k*PPL*4096}")
            A(f"buffer_load_dwordx4 {vr(RY[k])}, v{vOy}, s[{sY}:{sY+3}], s26 offen {HF}")
    A(f"s_lshl_b32 s27, s21, {2+lg}")
    srd(g, sV, 4, 5, "s27", 4 * GPP)
    srd(g, sWQ, 70, 71, "s27", 4 * GPP)
    A(f"v_and_b32 v{vT+2}, {2*GPP-1}, v{vL}")
    A(f"v_lshlrev_b32 v{vT+2}, 1, v{vT+2}")
    A(f"buffer_load_ushort v{vXo}, v{vT+2}, s[{sV}:{sV+3}], 0 offen")
    A("s_mov_b32 s24, 0")
    g.label(name + "_gchk")
    for k in range(NGL):
        A(f"v_xor_b32 v{vT}, s73, v{RG[k]+1}")
        A(f"v_xor_b32 v{vT+1}, s74, v{RG[k]+3}")
        if k == 0:
            A(f"v_or_b32 v{vDf}, v{vT}, v{vT+1}")
        elif k < NGL - 1:
            A(f"v_or3_b32 v{vDf}, v{vDf}, v{vT}, v{vT+1}")
        else:
            A(f"v_or_b32 v{vT}, v{vT}, v{vT+1}")
            A(f"v_and_or_b32 v{vDf}, v{vT}, v{vGm}, v{vDf}")
    A(f"v_cmp_ne_u32 vcc, 0, v{vDf}")
    A("s_add_u32 s24, s24, 1")
    A(f"s_cbranch_vccz {name}_gok")
    A("s_cmp_ge_u32 s24, 0x40000")
    A(f"s_cbranch_scc1 {name}_gok")
    for k in range(NGL):
        A(f"s_mov_b32 s26, {k*PPL*4096}")
        A(f"buffer_load_dwordx4 {vr(RG[k])}, v{vOy}, s[{sW1}:{sW1+3}], s26 offen {HF}")
    A("s_waitcnt vmcnt(0)")
    A(f"s_branch {name}_gchk")
    g.label(name + "_gok")
    a0, a1, a2, a3 = vT + 8, vT + 9, vT + 10, vT + 11
    A(f"v_mov_b32 v{a2}, v{RG[0]}")
    A(f"v_mov_b32 v{a3}, v{RG[0]+2}")
    for k in range(1, NGL):
        A(f"v_add_f32 v{a2}, v{a2}, v{RG[k]}")
        A(f"v_add_f32 v{a3}, v{a3}, v{RG[k]+2}")
    A("s_mov_b32 s24, 0")
    g.label(name + "_poll")
    ypoll()
    A("s_waitcnt vmcnt(0)")
    for k in range(GPP):
        A(f"v_xor_b32 v{vT}, s73, v{RY[k]+1}")
        A(f"v_xor_b32 v{vT+1}, s74, v{RY[k]+3}")
        if k == 0:
            A(f"v_or_b32 v{vDf}, v{vT}, v{vT+1}")
        else:
            A(f"v_or3_b32 v{vDf}, v{vDf}, v{vT}, v{vT+1}")
    A(f"v_cmp_ne_u32 vcc, 0, v{vDf}")
    A("s_add_u32 s24, s24, 1")
    A("s_and_b64 exec, exec, vcc")
    A(f"s_cbranch_execz {name}_got")
    A(f"s_cmp_ge_u32 s24, 0x40000")
    A(f"s_cbranch_scc1 {name}_got")
    if SLEEP:
        A(f"s_sleep {SLEEP}")
    A(f"s_branch {name}_poll")
    g.label(name + "_got")
    A("s_mov_b64 exec, -1")
    A(f"v_add_f32 v{a0}, v{RY[0]}, v{RY[1]}")
    A(f"v_add_f32 v{a1}, v{RY[0]+2}, v{RY[1]+2}")
    for k in range(2, GPP):
        A(f"v_add_f32 v{a0}, v{a0}, v{RY[k]}")
        A(f"v_add_f32 v{a1}, v{a1}, v{RY[k]+2}")
    g.nop(2)
    A(f"v_permlane32_swap_b32 v{a0}, v{a2}")
    A(f"v_permlane32_swap_b32 v{a1}, v{a3}")
    g.nop(1)
    A(f"v_add_f32 v{a0}, v{a0}, v{a2}")
    A(f"v_add_f32 v{a1}, v{a1}, v{a3}")
    g.nop(2)
    A(f"v_permlane16_swap_b32 v{a0}, v{a1}")
    g.nop(1)
    A(f"v_add_f32 v{a0}, v{a0}, v{a1}")
    rot = [r for r in (8, 4, 2, 1) if r >= GPP]
    for r in rot:
        g.nop(2)
        A(f"v_add_f32_dpp v{a0}, v{a0}, v{a0} row_ror:{r} row_mask:0xf bank_mask:0xf")
    A(f"v_and_b32 v{vT+12}, {GPP-1}, v{vL}")
    A(f"v_lshl_add_u32 v{vT+12}, v{vG}, {lg}, v{vT+12}")
    A(f"v_lshlrev_b32 v{vT+12}, 4, v{vT+12}")
    A("s_lshl_b32 s26, s3, 2")
    A(f"v_add_u32 v{vT+12}, s26, v{vT+12}")
    A(f"ds_write_b32 v{vT+12}, v{a0} offset:{L_RED}")
    A("s_waitcnt lgkmcnt(0)")
    A("s_barrier")
    A("s_cmp_lg_u32 s3, 0")
    A(f"s_cbranch_scc1 {name}_fin")
    A(f"v_and_b32 v{vT}, 1, v{vL}")
    A(f"v_bfe_u32 v{vT+1}, v{vL}, 1, {max(lg,1)}")
    A(f"v_lshl_add_u32 v{vT}, v{vT}, {lg}, v{vT+1}")
    A(f"v_lshlrev_b32 v{vT}, 4, v{vT}")
    A(f"ds_read_b128 {vr(vT+4)}, v{vT} offset:{L_RED}")
    A(f"ds_read_b128 {vr(vT+12)}, v{vT} offset:{L_RED+2*GPP*16}")
    A("s_waitcnt lgkmcnt(0)")
    for k in range(1, 4):
        A(f"v_add_f32 v{vT+4}, v{vT+4}, v{vT+4+k}")
        A(f"v_add_f32 v{vT+12}, v{vT+12}, v{vT+12+k}")
    sv, gv = vT + 4, vT + 12
    bf16r(g, sv)
    bf16r(g, gv)
    silu(gv, vT + 20)
    A(f"v_mul_f32 v{sv}, v{sv}, v{gv}")
    bf16r(g, sv)
    A(f"v_lshlrev_b32 v{vXo}, 16, v{vXo}")
    A(f"v_add_f32 v{sv}, v{sv}, v{vXo}")
    A(f"v_cvt_pk_bf16_f32 v{sv}, v{sv}, v{sv}")
    A(f"v_and_b32 v{vT+2}, {2*GPP-1}, v{vL}")
    A(f"v_lshlrev_b32 v{vT+2}, 1, v{vT+2}")
    A(f"s_mov_b32 exec_lo, {(1 << (2*GPP)) - 1}")
    A("s_mov_b32 exec_hi, 0")
    A(f"buffer_store_short v{sv}, v{vT+2}, s[{sWQ}:{sWQ+3}], 0 offen {P.get('outflags', 'sc0 sc1')}")
    A(f"s_cmp_lg_u32 s21, 0")
    A(f"s_cbranch_scc1 {name}_fin")
    A(f"s_mov_b32 s27, {WS_EP}")
    srd(g, sGs, 14, 15, "s27", 4)
    A("s_mov_b32 exec_lo, 1")
    A(f"v_mov_b32 v{vT}, s73")
    A(f"v_mov_b32 v{vT+1}, 0")
    A(f"buffer_store_dword v{vT}, v{vT+1}, s[{sGs}:{sGs+3}], 0 offen sc0 sc1")
    g.label(name + "_fin")
    if PROF:
        A("s_cmp_lg_u32 s3, 0")
        A(f"s_cbranch_scc1 {name}_end")
        A("s_waitcnt vmcnt(0)")
        stamp()
        A("s_waitcnt lgkmcnt(0)")
        A("s_lshl_b32 s26, s2, 8")
        A(f"s_add_u32 s26, s26, {WS_PROF}")
        srd(g, sGs, 14, 15, "s26", 256)
        A("s_mov_b32 exec_lo, 1")
        A("s_mov_b32 exec_hi, 0")
        A(f"v_mov_b32 v{vT+2}, 0")
        for k in stamps:
            A(f"v_mov_b32 v{vT}, s{76+2*k}")
            A(f"v_mov_b32 v{vT+1}, s{77+2*k}")
            A(f"buffer_store_dwordx2 v[{vT}:{vT+1}], v{vT+2}, s[{sGs}:{sGs+3}], 0 offen offset:{8*k}")
            A("s_nop 2")
    g.label(name + "_end")
    A("s_endpgm")
    assert len(stamps) <= 12
    return nv, NACC, lds


def build(**P):
    P.setdefault("name", KNAME)
    g = G2()
    nv1, nacc, lds1 = kernel(g, P)
    body1 = g.text()
    out = HEADER
    out += f"; @launch grid=(256,1,1) block=(256,1,1) lds={lds1}\n"
    out += '.amdgcn_target "amdgcn-amd-amdhsa--gfx950"\n.text\n'
    out += f".globl {P['name']}\n.p2align 8\n.type {P['name']},@function\n" + body1
    out += '.section .rodata,"a"\n'
    out += descriptor2(P["name"], nv1, nacc)
    return out


if __name__ == "__main__":
    P = {}
    for a in sys.argv[1:]:
        k, v = a.split("=", 1)
        try:
            v = eval(v)
        except Exception:
            pass
        P[k] = v
    sys.stdout.write(build(**P))
```

```python
import sys
from gen import Gen, vr, allreduce64, rows_allreduce, bf16r, srd, KNAME, HEADER, LOG2E, SCALE, EPS, NUNITS
from gen4 import G2, descriptor2

WS_EP = 0
WS_ML = 4096
WS_Y = 32768
WS_G = 32768 + (1 << 20)
WS_Q = 2 << 20
WS_H = (2 << 20) + (256 << 10)
WS_PROF = 4 << 20
W1_BYTES = 512 * 2752


def kernel(g, P):
    RING = 16
    KVF = P.get("kvflags", "nt")
    name = P["name"]
    PROF = P.get("prof", 0)
    SLEEP = P.get("sleep", 1)
    GPP = P.get("gpp", 8)
    NRED = 256 // GPP
    RED0 = P.get("red0", 256 - NRED)
    NV1 = P.get("nv1", 24)
    AUTO = P.get("auto", 40)
    PRE = P.get("pre", 4)
    HF = P.get("hflags", "sc0 sc1")
    NT = 16
    DEPTH = P.get("depth", 12)
    vTID = 0
    vL, vJ, vG = 1, 2, 3
    vM = 4
    vNo = 8
    vMx, vLs = 12, 13
    vQ = 14
    vD2 = 16
    vA = 20
    vD = 28
    vT = 32
    vCc = 62
    vWOo = 63
    vR = 64
    vW = 128
    nv = 256
    NACC = 256
    vSC = vT + 14

    def slot(j):
        return vR + 4 * (j % RING)

    vXA = vW
    vXM = vW + 4
    vWQ = vW + 8
    vW1 = vW + 24
    vW2 = vW + 40
    vQG = vW + 48
    vHG = vW + 56
    vWQo = vW + 60
    vW1o = vW + 61
    vHo = vW + 62
    Yg = vW + 64

    L_QP = 0
    L_HP = 2048
    L_QB = 4096
    L_MX = 5120
    L_RED = 5248
    L_Q2 = 6144
    L_YP = 8192
    L_OP = 16384
    L_OB = 18432
    lds = 20480

    A = g.A
    stamps = []

    skip = set(P.get("skipst", ()))
    cnt_st = [0]
    def stamp(force=False):
        cnt_st[0] += 1
        if (cnt_st[0] - 1) in skip:
            return
        if PROF:
            k = len(stamps)
            A(f"s_memrealtime s[{76+2*k}:{77+2*k}]")
            stamps.append(k)

    sX, sK, sV, sWQ, sWO, sW1, sW2, sY, sGs = 28, 32, 36, 40, 44, 48, 52, 56, 60

    events = set()
    plan = []

    def kv_text(kind, i, t):
        sr = sK if kind == "k" else sV
        so = 64 + i // 4
        vo = vNo + i % 4
        dst = vr(slot(4 * i + t)) if kind == "k" else f"a[{16*i+4*t}:{16*i+4*t+3}]"
        return [f"buffer_load_dwordx4 {dst}, v{vo}, s[{sr}:{sr+3}], s{so} offen offset:{t*1024} {KVF}"]

    def K(i, cond=None):
        return [(cond, kv_text("k", i, t), ("k", i, t)) for t in range(4)]

    def V(j):
        return (None, kv_text("v", j // 4, j % 4), ("v", j))

    def WO(t):
        return ("w_free", [f"s_mov_b32 s69, {(t//4)*4096}", f"buffer_load_dwordx4 {vr(vW+4*t)}, v{vWOo}, s[{sWO}:{sWO+3}], s69 offen offset:{(t%4)*1024}"], ("wo", t))

    NVA = P.get("nva", 8)
    plan += K(0) + K(1)
    plan += [V(j) for j in range(NVA)]
    plan += K(2) + K(3)
    plan += [V(j) for j in range(NVA, NV1)]
    n_pre_qk = len(plan)
    rest = [WO(t) for t in range(32)]
    WO0 = P.get("wo0", 8)
    per = -(-32 // (NT - WO0))
    vnext = [NV1]
    WOLAST = P.get("wolast", 0)
    early = rest[:32 - WOLAST]
    late = rest[32 - WOLAST:]
    per = -(-len(early) // (NT - WO0)) if early else 0
    for i in range(4, NT):
        plan += K(i, ("kt", i - 4))
        if i >= WO0:
            for _ in range(per):
                if early:
                    plan.append(early.pop(0))
        for _ in range(P.get("vq", 0)):
            plan.append(V(vnext[0])); vnext[0] += 1
    plan += early
    plan += [V(j) for j in range(vnext[0], 64)]
    plan += late
    st = {"next": 0}

    def pump(n, upto=None):
        done = 0
        while done < n and st["next"] < len(plan):
            if upto is not None and st["next"] >= upto:
                break
            cond, text, tag = plan[st["next"]]
            if cond is not None and cond not in events:
                break
            if DEPTH:
                g.pace(DEPTH)
            for s in text[:-1]:
                g.A(s)
            g.vmem(text[-1], tag)
            st["next"] += 1
            done += 1
        return done

    def issued_tags():
        return set(p[2] for p in plan[:st["next"]])

    limit = {"v": n_pre_qk}
    g.pump = lambda n: pump(n, limit["v"])

    g.label(name)
    stamp()
    if P.get("dbg"):
        A("s_memrealtime s[76:77]")
    A("s_load_dwordx8 s[4:11], s[0:1], 0")
    A("s_load_dwordx2 s[14:15], s[0:1], 80")
    A("s_load_dwordx4 s[16:19], s[0:1], 48")
    A("s_cmp_ge_u32 s2, 256")
    A(f"s_cbranch_scc1 {name}_end")
    A(f"v_lshrrev_b32 v{vT}, 6, v{vTID}")
    A(f"v_and_b32 v{vL}, 63, v{vTID}")
    A("s_and_b32 s20, s2, 7")
    A(f"v_readfirstlane_b32 s3, v{vT}")
    A(f"v_lshlrev_b32 v{vNo}, 4, v{vL}")
    A("s_lshl_b32 s20, s20, 2")
    A("s_bfe_u32 s22, s2, 0x20003")
    A("s_add_u32 s20, s20, s22")
    A("s_lshr_b32 s21, s2, 5")
    A("s_lshl_b32 s22, s20, 3")
    A("s_add_u32 s22, s22, s21")
    A("s_lshl_b32 s26, s22, 18")
    A("s_lshl_b32 s64, s3, 12")
    A(f"v_add_u32 v{vNo+1}, 16384, v{vNo}")
    A(f"v_add_u32 v{vNo+2}, 32768, v{vNo}")
    A(f"s_mov_b32 s{sK+2}, 262144")
    A(f"s_mov_b32 s{sK+3}, 0x00020000")
    A("s_waitcnt lgkmcnt(0)")
    A(f"s_add_u32 s{sK}, s6, s26")
    A(f"s_addc_u32 s{sK+1}, s7, 0")
    pump(4)
    srd(g, sX, 4, 5, None, 1024)
    A(f"v_lshrrev_b32 v{vG}, 4, v{vL}")
    A("s_lshl_b32 s69, s21, 6")
    A("s_lshl_b32 s25, s3, 4")
    A("s_add_u32 s69, s69, s25")
    A(f"v_lshlrev_b32 v{vT+3}, 3, v{vG}")
    A("s_lshl_b32 s24, s69, 1")
    g.vmem(f"buffer_load_dwordx4 {vr(vXA)}, v{vNo}, s[{sX}:{sX+3}], 0 offen", "xa")
    g.vmem(f"buffer_load_dwordx2 v[{vXM}:{vXM+1}], v{vT+3}, s[{sX}:{sX+3}], s24 offen", "xm")
    pump(4)
    A("s_load_dwordx2 s[12:13], s[0:1], 32")
    A("s_load_dwordx2 s[70:71], s[0:1], 64")
    A(f"s_load_dword s72, s[14:15], {WS_EP}")
    A(f"v_and_b32 v{vJ}, 15, v{vL}")
    A(f"v_lshlrev_b32 v{vT}, 4, v{vJ}")
    A(f"v_lshl_add_u32 v{vWQo}, v{vG}, 15, v{vT}")
    A("s_lshl_b32 s23, s69, 13")
    A("s_lshl_b32 s25, s20, 8")
    A("s_add_u32 s23, s23, s25")
    A("s_sub_u32 s27, 0x400000, s23")
    srd(g, sWQ, 10, 11, "s23", "s27")
    for t in range(4):
        A(f"s_mov_b32 s68, {t*8192}")
        g.vmem(f"buffer_load_dwordx4 {vr(vWQ+4*t)}, v{vWQo}, s[{sWQ}:{sWQ+3}], s68 offen", ("wq", t))
    srd(g, sV, 8, 9, "s26", 262144)
    pump(PRE)
    A(f"v_add_u32 v{vNo+3}, 49152, v{vNo}")
    for a_ in range(1, 4):
        A(f"s_add_u32 s{64+a_}, s64, {a_*65536}")
    A(f"v_lshl_add_u32 v{vWOo}, v{vG}, 15, v{vT}")
    A(f"v_mul_u32_u24 v{vW1o}, {4*2752}, v{vG}")
    A(f"v_add_u32 v{vW1o}, v{vW1o}, v{vT}")
    A("s_mul_i32 s23, s69, 2752")
    A("s_add_u32 s23, s23, s25")
    A(f"s_sub_u32 s27, {W1_BYTES}, s23")
    A("s_cmp_lt_u32 s20, 11")
    A("s_cselect_b32 s27, s27, 0")
    A("s_cselect_b32 s23, s23, 0")
    srd(g, sW1, 16, 17, "s23", "s27")
    for t in range(4):
        A(f"s_mov_b32 s68, {t*2752}")
        g.vmem(f"buffer_load_dwordx4 {vr(vW1+4*t)}, v{vW1o}, s[{sW1}:{sW1+3}], s68 offen", ("w1", t), real=False)
    A("s_waitcnt lgkmcnt(0)")
    A("s_add_u32 s23, s20, 21")
    A("s_and_b32 s23, s23, 31")
    A("s_lshl_b32 s23, s23, 3")
    A("s_add_u32 s23, s23, s21")
    A(f"s_cmp_lt_u32 s23, {NUNITS}")
    A("s_cselect_b32 s25, 1, 0")
    A("s_cselect_b32 s23, s23, 0")
    if P.get("nog"): A("s_mov_b32 s25, 0")
    A("s_lshl_b32 s26, s23, 3")
    A("s_add_u32 s26, s26, s3")
    A("s_lshl_b32 s26, s26, 10")
    A("s_mul_i32 s27, s25, 5120")
    srd(g, sW2, 18, 19, "s26", "s27")
    A("s_lshl_b32 s26, s20, 17")
    A("s_lshl_b32 s27, s3, 8")
    A("s_add_u32 s26, s26, s27")
    A("s_sub_u32 s27, 0x400000, s26")
    if P.get("nowo"): A("s_mov_b32 s27, 0")
    srd(g, sWO, 12, 13, "s26", "s27")
    stamp()
    g.auto = AUTO
    A(f"v_and_b32 v{vT}, 1, v{vJ}")
    A(f"v_lshlrev_b32 v{vT}, 4, v{vT}")
    A(f"v_mov_b32 v{vT+1}, 0xffff")
    A(f"v_lshlrev_b32 v{vT+1}, v{vT}, v{vT+1}")
    A(f"v_bfe_u32 v{vT}, v{vJ}, 1, 2")
    for r in range(4):
        A(f"v_cmp_eq_u32 vcc, {r}, v{vT}")
        g.nop(2)
        A(f"v_cndmask_b32 v{vM+r}, 0, v{vT+1}, vcc")

    g.wait("xa")
    X = vT
    for k in range(4):
        A(f"v_lshlrev_b32 v{X+2*k}, 16, v{vXA+k}")
        A(f"v_and_b32 v{X+2*k+1}, 0xffff0000, v{vXA+k}")
    S, Tm = vT + 8, vT + 9
    A(f"v_add_f32 v{S}, v{X}, v{X+1}")
    for k in range(2, 8):
        A(f"v_add_f32 v{S}, v{S}, v{X+k}")
    allreduce64(g, "add", S, Tm)
    A(f"v_mul_f32 v{S}, 0x3b000000, v{S}")
    Q = vT + 10
    for k in range(8):
        A(f"v_sub_f32 v{X+k}, v{X+k}, v{S}")
    A(f"v_mul_f32 v{Q}, v{X}, v{X}")
    for k in range(1, 8):
        A(f"v_fmac_f32 v{Q}, v{X+k}, v{X+k}")
    allreduce64(g, "add", Q, Tm)
    A(f"v_mul_f32 v{Q}, 0x3b000000, v{Q}")
    bf16r(g, S)
    bf16r(g, Q)
    A(f"v_add_f32 v{Q}, {hex(EPS)}, v{Q}")
    bf16r(g, Q)
    A(f"v_sqrt_f32 v{Q}, v{Q}")
    g.nop(1)
    bf16r(g, Q)
    RS = vT + 11
    A(f"v_rcp_f32 v{RS}, v{Q}")
    g.nop(1)
    MEAN, SD = S, Q

    def normalize(src, t0, t1):
        A(f"v_sub_f32 v{src}, v{src}, v{MEAN}")
        bf16r(g, src)
        A(f"v_mul_f32 v{t0}, v{src}, v{RS}")
        A(f"v_fma_f32 v{t1}, -v{t0}, v{SD}, v{src}")
        A(f"v_fma_f32 v{t0}, v{t1}, v{RS}, v{t0}")

    vXP = vT + 14
    g.wait("xm")
    for k in range(2):
        A(f"v_lshlrev_b32 v{X}, 16, v{vXM+k}")
        A(f"v_and_b32 v{X+1}, 0xffff0000, v{vXM+k}")
        normalize(X, X + 2, X + 3)
        normalize(X + 1, X + 4, X + 5)
        A(f"v_cvt_pk_bf16_f32 v{vXP+2*k}, v{X+2}, v{X+2}")
        A(f"v_cvt_pk_bf16_f32 v{vXP+2*k+1}, v{X+4}, v{X+4}")

    def ands(src, aset):
        for r in range(4):
            A(f"v_and_b32 v{vA+4*aset+r}, v{vM+r}, v{src}")

    ands(vXP, 0)
    for t in range(4):
        if t < 3:
            ands(vXP + t + 1, (t + 1) % 2)
        else:
            g.nop(2)
        g.wait(("wq", t))
        c = "0" if t == 0 else vr(vD)
        A(f"v_mfma_f32_16x16x32_bf16 {vr(vD)}, {vr(vA+4*(t%2))}, {vr(vWQ+4*t)}, {c}")
        g.wait(("w1", t))
        c = "0" if t == 0 else vr(vD2)
        A(f"v_mfma_f32_16x16x32_bf16 {vr(vD2)}, {vr(vA+4*(t%2))}, {vr(vW1+4*t)}, {c}")
    aQ = vT + 6
    A(f"v_and_b32 v{aQ}, 1, v{vG}")
    A(f"v_lshlrev_b32 v{aQ}, 4, v{aQ}")
    A(f"v_lshl_add_u32 v{aQ}, v{vJ}, 5, v{aQ}")
    A("s_lshl_b32 s26, s3, 9")
    A(f"v_add_u32 v{aQ}, s26, v{aQ}")
    A("s_lshl_b32 s26, s22, 10")
    A(f"s_add_u32 s27, s26, {WS_Q}")
    A(f"s_add_u32 s26, s26, {WS_H}")
    A("s_cmp_eq_u32 s3, 0")
    A("s_cselect_b32 s26, s27, s26")
    A("s_cselect_b32 s27, 1024, 0")
    A("s_cselect_b32 s24, 0, 2048")
    A("s_cmp_eq_u32 s3, 1")
    A("s_cselect_b32 s68, 1024, 0")
    A("s_cmp_lt_u32 s20, 11")
    A("s_cselect_b32 s68, s68, 0")
    A("s_add_u32 s27, s27, s68")
    srd(g, sGs, 14, 15, "s26", "s27")
    A(f"ds_write_b128 v{aQ}, {vr(vD)} offset:{L_QP}")
    A(f"ds_write_b128 v{aQ}, {vr(vD2)} offset:{L_HP}")
    g.auto = 0
    aR = vT + 6
    A(f"v_lshlrev_b32 v{aR}, 3, v{vL}")
    A(f"v_add_u32 v{aR}, s24, v{aR}")
    A("s_waitcnt lgkmcnt(0)")
    A("s_barrier")
    stamp()
    QS = vT + 14
    for w in range(4):
        A(f"ds_read_b64 v[{QS+2*w}:{QS+2*w+1}], v{aR} offset:{L_QP + w*512}")
    A("s_mul_i32 s73, s72, 0x9E3779B1")
    A("s_add_u32 s73, s73, 0x7F4A7C15")
    A("s_mul_i32 s74, s72, 0x85EBCA77")
    A("s_add_u32 s74, s74, 0xC2B2AE3D")
    A("s_waitcnt lgkmcnt(0)")
    A(f"v_add_f32 v{QS}, v{QS}, v{QS+2}")
    A(f"v_add_f32 v{QS+1}, v{QS+1}, v{QS+3}")
    A(f"v_add_f32 v{QS+4}, v{QS+4}, v{QS+6}")
    A(f"v_add_f32 v{QS+5}, v{QS+5}, v{QS+7}")
    A(f"v_add_f32 v{QS}, v{QS}, v{QS+4}")
    A(f"v_add_f32 v{QS+2}, v{QS+1}, v{QS+5}")
    A(f"v_mov_b32 v{QS+1}, s73")
    A(f"v_mov_b32 v{QS+3}, s74")
    g.vmem(f"buffer_store_dwordx4 {vr(QS)}, v{vNo}, s[{sGs}:{sGs+3}], 0 offen {HF}", "qst")
    stamp()
    g.vmem(f"buffer_load_dwordx4 {vr(vW2)}, v{vNo}, s[{sW2}:{sW2+3}], 0 offen", "w2", real=False)
    A("s_movk_i32 s27, 4096")
    g.vmem(f"buffer_load_dwordx4 {vr(vW2+4)}, v{vNo}, s[{sW2}:{sW2+3}], s27 offen", "w2", real=False)
    pump(P.get("pre3", 12))
    A("s_lshl_b32 s26, s20, 13")
    A("s_lshl_b32 s27, s3, 11")
    A("s_add_u32 s26, s26, s27")
    A(f"s_add_u32 s26, s26, {WS_Q}")
    srd(g, sGs, 14, 15, "s26", 2048)
    g.vmem(f"buffer_load_dwordx4 {vr(vQG)}, v{vNo}, s[{sGs}:{sGs+3}], 0 offen {HF}", "qg")
    g.vmem(f"buffer_load_dwordx4 {vr(vQG+4)}, v{vNo}, s[{sGs}:{sGs+3}], 0 offen offset:1024 {HF}", "qg")
    pump(P.get("pre4", 16))
    A("s_mov_b32 s24, 0")
    g.wait("qg")
    g.label(name + "_qchk")
    A(f"v_xor_b32 v{vT}, s73, v{vQG+1}")
    A(f"v_xor_b32 v{vT+1}, s74, v{vQG+3}")
    A(f"v_xor_b32 v{vT+2}, s73, v{vQG+5}")
    A(f"v_xor_b32 v{vT+3}, s74, v{vQG+7}")
    A(f"v_or3_b32 v{vT}, v{vT}, v{vT+1}, v{vT+2}")
    A(f"v_or_b32 v{vT}, v{vT}, v{vT+3}")
    A(f"v_cmp_ne_u32 vcc, 0, v{vT}")
    A("s_add_u32 s24, s24, 1")
    if P.get("noqwait"): A(f"s_branch {name}_qok")
    A(f"s_cbranch_vccz {name}_qok")
    A("s_cmp_ge_u32 s24, 0x40000")
    A(f"s_cbranch_scc1 {name}_qok")
    A(f"buffer_load_dwordx4 {vr(vQG)}, v{vNo}, s[{sGs}:{sGs+3}], 0 offen {HF}")
    A(f"buffer_load_dwordx4 {vr(vQG+4)}, v{vNo}, s[{sGs}:{sGs+3}], 0 offen offset:1024 {HF}")
    A("s_waitcnt vmcnt(0)")
    A(f"s_branch {name}_qchk")
    g.label(name + "_qok")
    A(f"v_add_f32 v{vT}, v{vQG}, v{vQG+4}")
    A(f"v_add_f32 v{vT+1}, v{vQG+2}, v{vQG+6}")
    A(f"v_lshlrev_b32 v{aR}, 3, v{vL}")
    A("s_lshl_b32 s26, s3, 9")
    A(f"v_add_u32 v{vT+2}, s26, v{aR}")
    A(f"ds_write_b64 v{vT+2}, v[{vT}:{vT+1}] offset:{L_Q2}")
    A(f"v_bfe_u32 v{vHo}, v{vL}, 2, 3")
    A(f"v_lshlrev_b32 v{vHo}, 10, v{vHo}")
    A(f"v_and_b32 v{vT+3}, 3, v{vL}")
    A(f"v_lshl_add_u32 v{vHo}, v{vT+3}, 4, v{vHo}")
    A("s_lshr_b32 s26, s23, 4")
    A("s_lshl_b32 s26, s26, 13")
    A("s_and_b32 s27, s23, 15")
    A("s_lshl_b32 s27, s27, 6")
    A("s_add_u32 s26, s26, s27")
    A(f"s_add_u32 s26, s26, {WS_H}")
    A("s_mul_i32 s27, s25, 8192")
    srd(g, sW1, 14, 15, "s26", "s27")
    g.vmem(f"buffer_load_dwordx4 {vr(vHG)}, v{vHo}, s[{sW1}:{sW1+3}], 0 offen {HF}", "hg", real=False)
    pump(1000, n_pre_qk)
    A("s_waitcnt lgkmcnt(0)")
    A("s_barrier")
    stamp()
    for w in range(4):
        A(f"ds_read_b64 v[{QS+2*w}:{QS+2*w+1}], v{aR} offset:{L_Q2 + w*512}")
    A(f"v_lshlrev_b32 v{vT+2}, 2, v{vL}")
    A("s_lshl_b32 s26, s3, 8")
    A(f"v_add_u32 v{vT+2}, s26, v{vT+2}")
    A(f"v_lshlrev_b32 v{vT+3}, 4, v{vJ}")
    A(f"v_add_u32 v{vT+3}, s26, v{vT+3}")
    A("s_waitcnt lgkmcnt(0)")
    A(f"v_add_f32 v{QS}, v{QS}, v{QS+2}")
    A(f"v_add_f32 v{QS+1}, v{QS+1}, v{QS+3}")
    A(f"v_add_f32 v{QS+4}, v{QS+4}, v{QS+6}")
    A(f"v_add_f32 v{QS+5}, v{QS+5}, v{QS+7}")
    A(f"v_add_f32 v{QS}, v{QS}, v{QS+4}")
    A(f"v_add_f32 v{QS+1}, v{QS+1}, v{QS+5}")
    A(f"v_cvt_pk_bf16_f32 v{QS}, v{QS}, v{QS+1}")
    A(f"ds_write_b32 v{vT+2}, v{QS} offset:{L_QB}")
    A("s_waitcnt lgkmcnt(0)")
    A(f"ds_read_b128 {vr(vQ)}, v{vT+3} offset:{L_QB}")

    def silu(v, t):
        A(f"v_mul_f32 v{t}, {hex(LOG2E ^ 0x80000000)}, v{v}")
        A(f"v_exp_f32 v{t}, v{t}")
        g.nop(1)
        A(f"v_add_f32 v{t}, 1.0, v{t}")
        A(f"v_rcp_f32 v{t+1}, v{t}")
        g.nop(1)
        A(f"v_mul_f32 v{t+2}, v{v}, v{t+1}")
        A(f"v_fma_f32 v{t+3}, -v{t+2}, v{t}, v{v}")
        A(f"v_fma_f32 v{t+2}, v{t+3}, v{t+1}, v{t+2}")
        A(f"v_cmp_lt_f32 vcc, 0x7f000000, v{t}")
        A(f"v_mul_f32 v{t+3}, v{v}, v{t+1}")
        g.nop(1)
        A(f"v_cndmask_b32 v{v}, v{t+2}, v{t+3}, vcc")
        bf16r(g, v)

    a = [vT + 1, vT + 2, vT + 3, vT + 4]
    b0, b1 = vT + 5, vT + 6
    PQ = P.get("pq", 12)

    def qk(i):
        while ("k", i, 3) not in issued_tags():
            assert pump(1) == 1
        g.wait(("k", i, 3))
        if P.get("noqk"):
            events.add(("kt", i))
            pump(PQ if i < NT - 4 else P.get("pql", 0))
            A(f"v_mov_b32 v{vSC+i}, v{slot(4*i)}")
            return
        for c in range(4):
            for t in range(4):
                if c == 0:
                    A(f"v_dot2_f32_bf16 v{a[t]}, v{slot(4*i+t)}, v{vQ}, 0")
                else:
                    A(f"v_dot2c_f32_bf16 v{a[t]}, v{slot(4*i+t)+c}, v{vQ+c}")
        events.add(("kt", i))
        pump(PQ if i < NT - 4 else P.get("pql", 0))
        A(f"v_add_f32_dpp v{b0}, v{a[0]}, v{a[0]} row_ror:8 row_mask:0xf bank_mask:0x3")
        A(f"v_add_f32_dpp v{b1}, v{a[1]}, v{a[1]} row_ror:8 row_mask:0xf bank_mask:0x3")
        A(f"v_add_f32_dpp v{b0}, v{a[2]}, v{a[2]} row_ror:8 row_mask:0xf bank_mask:0xc")
        A(f"v_add_f32_dpp v{b1}, v{a[3]}, v{a[3]} row_ror:8 row_mask:0xf bank_mask:0xc")
        g.nop(2)
        c_ = vSC + i
        A(f"v_add_f32_dpp v{c_}, v{b0}, v{b0} row_half_mirror row_mask:0xf bank_mask:0x5")
        A(f"v_add_f32_dpp v{c_}, v{b1}, v{b1} row_half_mirror row_mask:0xf bank_mask:0xa")
        g.nop(2)
        A(f"v_add_f32_dpp v{c_}, v{c_}, v{c_} quad_perm:[1,0,3,2] row_mask:0xf bank_mask:0xf")
        g.nop(2)
        A(f"v_add_f32_dpp v{c_}, v{c_}, v{c_} quad_perm:[2,3,0,1] row_mask:0xf bank_mask:0xf")
        bf16r(g, c_)
        A(f"v_mul_f32 v{c_}, {hex(SCALE)}, v{c_}")
        bf16r(g, c_)

    limit["v"] = None
    A("s_waitcnt lgkmcnt(0)")
    stamp()
    GT = P.get("gt", 1)
    for i in range(GT):
        qk(i)
    g.wait("hg")
    A("s_mov_b32 s24, 0")
    g.label(name + "_hchk")
    A(f"v_xor_b32 v{vT}, s73, v{vHG+1}")
    A(f"v_xor_b32 v{vT+1}, s74, v{vHG+3}")
    A(f"v_or_b32 v{vT}, v{vT}, v{vT+1}")
    A(f"v_cmp_ne_u32 vcc, 0, v{vT}")
    A("s_add_u32 s24, s24, 1")
    A(f"s_cbranch_vccz {name}_hok")
    A("s_cmp_eq_u32 s25, 0")
    A(f"s_cbranch_scc1 {name}_hok")
    A("s_cmp_ge_u32 s24, 0x40000")
    A(f"s_cbranch_scc1 {name}_hok")
    A(f"buffer_load_dwordx4 {vr(vHG)}, v{vHo}, s[{sW1}:{sW1+3}], 0 offen {HF}")
    A("s_waitcnt vmcnt(0)")
    A(f"s_branch {name}_hchk")
    g.label(name + "_hok")
    g.auto = P.get("gauto", 0)
    h0, h1 = vHG, vHG + 2
    for ctl in ("row_ror:4", "row_ror:8"):
        g.nop(1)
        A(f"v_add_f32_dpp v{h0}, v{h0}, v{h0} {ctl} row_mask:0xf bank_mask:0xf")
        A(f"v_add_f32_dpp v{h1}, v{h1}, v{h1} {ctl} row_mask:0xf bank_mask:0xf")
    A(f"v_mov_b32 v{vT}, v{h0}")
    A(f"v_mov_b32 v{vT+1}, v{h1}")
    g.nop(1)
    A(f"v_permlane16_swap_b32 v{h0}, v{vT}")
    A(f"v_permlane16_swap_b32 v{h1}, v{vT+1}")
    g.nop(1)
    A(f"v_add_f32 v{h0}, v{h0}, v{vT}")
    A(f"v_add_f32 v{h1}, v{h1}, v{vT+1}")
    A("s_and_b32 s26, s3, 1")
    A("s_cmp_eq_u32 s26, 1")
    A("s_cselect_b64 s[26:27], -1, 0")
    A("s_lshr_b32 s24, s3, 1")
    A("s_add_u32 s68, s24, 2")
    A(f"v_cndmask_b32 v{h0}, v{h0}, v{h1}, s[26:27]")
    g.nop(1)
    A(f"v_readlane_b32 s26, v{h0}, s24")
    A(f"v_readlane_b32 s27, v{h0}, s68")
    Ha, Hb = vT, vT + 7
    g.nop(2)
    A(f"v_mov_b32 v{Ha}, s26")
    A(f"v_mov_b32 v{Hb}, s27")
    bf16r(g, Ha)
    bf16r(g, Hb)
    silu(Ha, vT + 1)
    silu(Hb, vT + 1)
    g.wait("w2")
    for k in range(4):
        A(f"v_lshlrev_b32 v{Yg+2*k}, 16, v{vW2+k}")
        A(f"v_and_b32 v{Yg+2*k+1}, 0xffff0000, v{vW2+k}")
        A(f"v_lshlrev_b32 v{vT+8}, 16, v{vW2+4+k}")
        A(f"v_and_b32 v{vT+9}, 0xffff0000, v{vW2+4+k}")
        A(f"v_mul_f32 v{Yg+2*k}, v{Yg+2*k}, v{Ha}")
        A(f"v_mul_f32 v{Yg+2*k+1}, v{Yg+2*k+1}, v{Ha}")
        A(f"v_fmac_f32 v{Yg+2*k}, v{vT+8}, v{Hb}")
        A(f"v_fmac_f32 v{Yg+2*k+1}, v{vT+9}, v{Hb}")
    aY = vT + 1
    A(f"v_lshlrev_b32 v{aY}, 5, v{vL}")
    A("s_lshl_b32 s26, s3, 11")
    A(f"v_add_u32 v{aY}, s26, v{aY}")
    A(f"ds_write_b128 v{aY}, {vr(Yg)} offset:{L_YP}")
    g.auto = 0
    A(f"ds_write_b128 v{aY}, {vr(Yg+4)} offset:{L_YP+16}")
    A("s_waitcnt lgkmcnt(0)")
    events.add("w_free")
    qk(GT)
    A("s_barrier")
    GS = vT + 6
    A(f"v_lshlrev_b32 v{vT}, 3, v{vTID}")
    for w in range(4):
        A(f"ds_read_b64 v[{GS+2*w}:{GS+2*w+1}], v{vT} offset:{L_YP + w*2048}")
    A(f"s_lshl_b32 s26, s23, 12")
    A(f"s_add_u32 s26, s26, {WS_G}")
    A("s_lshl_b32 s27, s25, 12")
    srd(g, sGs, 14, 15, "s26", "s27")
    A(f"v_lshlrev_b32 v{vT+1}, 4, v{vTID}")
    A("s_waitcnt lgkmcnt(0)")
    A(f"v_add_f32 v{GS}, v{GS}, v{GS+2}")
    A(f"v_add_f32 v{GS+1}, v{GS+1}, v{GS+3}")
    A(f"v_add_f32 v{GS+4}, v{GS+4}, v{GS+6}")
    A(f"v_add_f32 v{GS+5}, v{GS+5}, v{GS+7}")
    A(f"v_add_f32 v{GS}, v{GS}, v{GS+4}")
    A(f"v_add_f32 v{GS+2}, v{GS+1}, v{GS+5}")
    A(f"v_mov_b32 v{GS+1}, s73")
    A(f"v_mov_b32 v{GS+3}, s74")
    g.vmem(f"buffer_store_dwordx4 {vr(GS)}, v{vT+1}, s[{sGs}:{sGs+3}], 0 offen {HF}", "gst")
    for i in range(GT + 1, NT):
        qk(i)
    stamp()
    A(f"v_max3_f32 v{vMx}, v{vSC}, v{vSC+1}, v{vSC+2}")
    for k in range(3, NT - 1, 2):
        A(f"v_max3_f32 v{vMx}, v{vMx}, v{vSC+k}, v{vSC+k+1}")
    A(f"v_max_f32 v{vMx}, v{vMx}, v{vSC+NT-1}")
    for ctl in ("row_ror:4", "row_ror:8"):
        g.nop(2)
        A(f"v_max_f32_dpp v{vMx}, v{vMx}, v{vMx} {ctl} row_mask:0xf bank_mask:0xf")
    rows_allreduce(g, "max", vMx, vT)
    A("s_lshl_b32 s26, s3, 2")
    A(f"v_mov_b32 v{vT}, s26")
    A(f"ds_write_b32 v{vT}, v{vMx} offset:{L_MX}")
    pump(P.get("pm", 4))
    A("s_waitcnt lgkmcnt(0)")
    A("s_barrier")
    g.auto = P.get("softauto", 0)
    A(f"v_mov_b32 v{vT}, 0")
    A(f"ds_read_b128 {vr(vT+4)}, v{vT} offset:{L_MX}")
    A("s_lshl_b32 s26, s22, 2")
    A("s_add_u32 s26, s26, s3")
    A("s_lshl_b32 s26, s26, 4")
    A(f"s_add_u32 s26, s26, {WS_ML}")
    srd(g, sGs, 14, 15, "s26", 16)
    A(f"s_mov_b32 s26, {hex(LOG2E)}")
    A("s_waitcnt lgkmcnt(0)")
    A(f"v_max3_f32 v{vMx}, v{vT+4}, v{vT+5}, v{vT+6}")
    A(f"v_max_f32 v{vMx}, v{vMx}, v{vT+7}")
    A(f"v_mul_f32 v{vT}, s26, v{vMx}")
    for k in range(NT):
        A(f"v_fma_f32 v{vSC+k}, v{vSC+k}, s26, -v{vT}")
    for k in range(NT):
        A(f"v_exp_f32 v{vSC+k}, v{vSC+k}")
    A(f"v_mov_b32 v{vT+1}, s73")
    A(f"v_add_f32 v{vLs}, v{vSC}, v{vSC+1}")
    A(f"v_add_f32 v{vT+5}, v{vSC+2}, v{vSC+3}")
    for k in range(4, NT, 2):
        A(f"v_add_f32 v{vLs}, v{vLs}, v{vSC+k}")
        A(f"v_add_f32 v{vT+5}, v{vT+5}, v{vSC+k+1}")
    A(f"v_add_f32 v{vLs}, v{vLs}, v{vT+5}")
    for k in range(NT):
        A(f"v_cvt_pk_bf16_f32 v{vSC+k}, v{vSC+k}, v{vSC+k}")
        if k == 3:
            A(f"v_add_f32_dpp v{vLs}, v{vLs}, v{vLs} row_ror:4 row_mask:0xf bank_mask:0xf")
        if k == 7:
            A(f"v_add_f32_dpp v{vLs}, v{vLs}, v{vLs} row_ror:8 row_mask:0xf bank_mask:0xf")
    rows_allreduce(g, "add", vLs, vT + 5)
    A(f"v_mov_b32 v{vT}, v{vMx}")
    A(f"v_mov_b32 v{vT+2}, v{vLs}")
    A(f"v_mov_b32 v{vT+3}, s74")
    g.auto = 0
    A(f"v_lshlrev_b32 v{vT+4}, 4, v{vL}")
    g.vmem(f"buffer_store_dwordx4 {vr(vT)}, v{vT+4}, s[{sGs}:{sGs+3}], 0 offen {HF}", "mlst")
    RML = vR
    vOm = vR + 41
    A("s_lshl_b32 s26, s20, 9")
    A(f"s_add_u32 s26, s26, {WS_ML}")
    srd(g, sK, 14, 15, "s26", 512)
    A(f"v_and_b32 v{vOm}, 31, v{vL}")
    A(f"v_lshlrev_b32 v{vOm}, 4, v{vOm}")
    n_vend = max(i for i, p_ in enumerate(plan) if p_[2][0] == "v") + 1
    left = n_vend - st["next"]
    pump(max(0, left - P.get("mlafter", 8)))
    g.vmem(f"buffer_load_dwordx4 {vr(RML)}, v{vOm}, s[{sK}:{sK+3}], 0 offen {HF}", "mlg")
    pump(1000, n_vend)
    stamp()
    def pand(tt):
        if P.get("nopv"): return
        for r in range(4):
            A(f"v_and_b32_dpp v{vA+4*(tt%2)+r}, v{vSC+tt//4}, v{vM+r} row_newbcast:{4*(tt%4)} row_mask:0xf bank_mask:0xf")
    NV = 4 * NT
    RML = vR
    PPL = 256 // GPP
    NGL = (NUNITS + PPL - 1) // PPL
    RG = [vR + 4 + 4 * k for k in range(NGL)]
    assert 4 + 4 * NGL <= 40
    vOy, vOm, vDf, vXo = vR + 40, vR + 41, vR + 42, vR + 43
    vGm = vR + 44
    lg = {1: 0, 2: 1, 4: 2, 8: 3}[GPP]
    GLT = P.get("glt", 8)
    MLT = P.get("mlt", 52)

    cT = vR + 48
    def cfactor():
        g.wait("mlg")
        A("s_mov_b32 s24, 0")
        g.label(name + "_mlchk")
        A(f"v_xor_b32 v{cT}, s73, v{RML+1}")
        A(f"v_xor_b32 v{cT+1}, s74, v{RML+3}")
        A(f"v_or_b32 v{cT}, v{cT}, v{cT+1}")
        A(f"v_cmp_ne_u32 vcc, 0, v{cT}")
        A("s_add_u32 s24, s24, 1")
        if P.get("nomlwait"): A(f"s_branch {name}_mlok")
        A(f"s_cbranch_vccz {name}_mlok")
        A("s_cmp_ge_u32 s24, 0x40000")
        A(f"s_cbranch_scc1 {name}_mlok")
        A(f"buffer_load_dwordx4 {vr(RML)}, v{vOm}, s[{sK}:{sK+3}], 0 offen {HF}")
        A("s_waitcnt vmcnt(0)")
        A(f"s_branch {name}_mlchk")
        g.label(name + "_mlok")
        Mh, E_, L_, C_ = cT, cT + 1, cT + 2, vCc
        A(f"v_mov_b32 v{Mh}, v{RML}")
        for ctl in ("quad_perm:[1,0,3,2]", "quad_perm:[2,3,0,1]", "row_half_mirror", "row_mirror"):
            g.nop(2)
            A(f"v_max_f32_dpp v{Mh}, v{Mh}, v{Mh} {ctl} row_mask:0xf bank_mask:0xf")
        A(f"v_mov_b32 v{cT+3}, v{Mh}")
        g.nop(2)
        A(f"v_permlane16_swap_b32 v{Mh}, v{cT+3}")
        g.nop(1)
        A(f"v_max_f32 v{Mh}, v{Mh}, v{cT+3}")
        A(f"v_sub_f32 v{E_}, v{RML}, v{Mh}")
        A(f"v_sub_f32 v{C_}, v{vMx}, v{Mh}")
        A(f"v_mul_f32 v{E_}, {hex(LOG2E)}, v{E_}")
        A(f"v_mul_f32 v{C_}, {hex(LOG2E)}, v{C_}")
        A(f"v_exp_f32 v{E_}, v{E_}")
        A(f"v_exp_f32 v{C_}, v{C_}")
        g.nop(1)
        A(f"v_mul_f32 v{L_}, v{E_}, v{RML+2}")
        for ctl in ("quad_perm:[1,0,3,2]", "quad_perm:[2,3,0,1]", "row_half_mirror", "row_mirror"):
            g.nop(2)
            A(f"v_add_f32_dpp v{L_}, v{L_}, v{L_} {ctl} row_mask:0xf bank_mask:0xf")
        A(f"v_mov_b32 v{cT+3}, v{L_}")
        g.nop(2)
        A(f"v_permlane16_swap_b32 v{L_}, v{cT+3}")
        g.nop(1)
        A(f"v_add_f32 v{L_}, v{L_}, v{cT+3}")
        A(f"v_rcp_f32 v{cT+3}, v{L_}")
        g.nop(1)
        A(f"v_mul_f32 v{cT}, v{C_}, v{cT+3}")
        A(f"v_fma_f32 v{cT+1}, -v{cT}, v{L_}, v{C_}")
        A(f"v_fma_f32 v{C_}, v{cT+1}, v{cT+3}, v{cT}")

    pand(0)
    for t in range(NV):
        if t + 1 < NV:
            pand(t + 1)
        else:
            g.nop(2)
        g.wait(("v", t))
        c = "0" if t == 0 else vr(vD)
        if not P.get("nopv") or t == 0:
            A(f"v_mfma_f32_16x16x32_bf16 {vr(vD)}, {vr(vA+4*(t%2))}, a[{4*t}:{4*t+3}], {c}")
        pump(1)
        if t == GLT:
            A(f"v_lshrrev_b32 v{vT}, {lg}, v{vTID}")
            A(f"v_and_b32 v{vT+1}, {GPP-1}, v{vTID}")
            A(f"v_lshlrev_b32 v{vT+1}, 4, v{vT+1}")
            A(f"v_lshl_add_u32 v{vOy}, v{vT}, 12, v{vT+1}")
            klast = NGL - 1
            A(f"v_cmp_gt_u32 vcc, {NUNITS - klast*PPL}, v{vT}")
            A(f"v_mov_b32 v{vGm}, 0")
            g.nop(1)
            A(f"v_cndmask_b32 v{vGm}, v{vGm}, -1, vcc")
            A(f"s_sub_u32 s24, s2, {RED0}")
            A(f"s_cmp_lt_u32 s24, {NRED}")
            A(f"s_cselect_b32 s21, 1, 0")
            A(f"s_cselect_b32 s24, s24, 0")
            A(f"s_lshl_b32 s26, s24, {4+lg}")
            A(f"s_add_u32 s27, s26, {WS_G}")
            A(f"s_sub_u32 s24, {NUNITS*4096}, s26")
            A(f"s_mul_i32 s24, s24, s21")
            srd(g, sW1, 14, 15, "s27", "s24")
            for k in range(NGL):
                A(f"s_mov_b32 s26, {k*PPL*4096}")
                g.vmem(f"buffer_load_dwordx4 {vr(RG[k])}, v{vOy}, s[{sW1}:{sW1+3}], s26 offen {HF}", "gg", real=False)
            A(f"v_and_b32 v{vT+8}, 1, v{vG}")
            A(f"v_lshlrev_b32 v{vT+8}, 4, v{vT+8}")
            A(f"v_lshl_add_u32 v{vT+8}, v{vJ}, 5, v{vT+8}")
            A("s_lshl_b32 s26, s3, 9")
            A(f"v_add_u32 v{vT+8}, s26, v{vT+8}")
            A(f"v_lshlrev_b32 v{vT+9}, 3, v{vL}")
            A(f"v_add_u32 v{vT+1}, s26, v{vT+9}")
            A(f"v_lshlrev_b32 v{vT+2}, 7, v{vG}")
            A(f"v_add_u32 v{vT+2}, s26, v{vT+2}")
            A(f"v_mov_b32 v{vT+5}, s73")
            A(f"v_mov_b32 v{vT+7}, s74")
            A(f"v_and_b32 v{vT+10}, 1, v{vG}")
            A(f"v_lshlrev_b32 v{vT+10}, 5, v{vT+10}")
            A(f"v_lshl_add_u32 v{vT+10}, v{vJ}, 6, v{vT+10}")
            A(f"v_lshrrev_b32 v{vT+11}, 1, v{vG}")
            A(f"v_lshl_add_u32 v{vT+10}, v{vT+11}, 4, v{vT+10}")
            A("s_lshl_b32 s26, s22, 12")
            A("s_lshl_b32 s27, s3, 10")
            A("s_add_u32 s26, s26, s27")
            A(f"s_add_u32 s26, s26, {WS_Y}")
            srd(g, sY, 14, 15, "s26", 1024)
            A(f"v_cmp_lt_u32 s[74+22:74+23], v{vL}, 32".replace("74+22", "96").replace("74+23", "97") if not PROF else f"v_cmp_lt_u32 s[26:27], v{vL}, 32")
        if t == MLT:
            cfactor()
    assert st["next"] == len(plan), (st["next"], len(plan))
    sLo = "s[96:97]" if not PROF else "s[26:27]"
    stamp()
    aQ, GR, vSA = vT + 8, vT + 4, vT + 10
    g.nop(8)
    A(f"ds_write_b128 v{aQ}, {vr(vD)} offset:{L_OP}")
    A("s_waitcnt lgkmcnt(0)")
    A("s_barrier")
    O4 = vR + 48
    for w in range(4):
        A(f"ds_read_b64 v[{O4+2*w}:{O4+2*w+1}], v{vT+9} offset:{L_OP + w*512}")
    A("s_waitcnt lgkmcnt(0)")
    A(f"v_add_f32 v{O4}, v{O4}, v{O4+2}")
    A(f"v_add_f32 v{O4+1}, v{O4+1}, v{O4+3}")
    A(f"v_add_f32 v{O4+4}, v{O4+4}, v{O4+6}")
    A(f"v_add_f32 v{O4+5}, v{O4+5}, v{O4+7}")
    A(f"v_add_f32 v{O4}, v{O4}, v{O4+4}")
    A(f"v_add_f32 v{O4+1}, v{O4+1}, v{O4+5}")
    A(f"v_cvt_pk_bf16_f32 v{O4}, v{O4}, v{O4}")
    A(f"v_cvt_pk_bf16_f32 v{O4+1}, v{O4+1}, v{O4+1}")
    A(f"ds_write_b64 v{vT+1}, v[{O4}:{O4+1}] offset:{L_OB}")
    A("s_waitcnt lgkmcnt(0)")
    ODr = [vSC + k for k in range(16)] + [vR + 48 + k for k in range(16)]
    for k in range(8):
        A(f"ds_read_b128 {vr(ODr[4*k])}, v{vT+2} offset:{L_OB+16*k}")

    def wand(t):
        for r in range(4):
            A(f"v_and_b32 v{vA+4*(t%2)+r}, v{vM+r}, v{ODr[t]}")
    A("s_waitcnt lgkmcnt(7)")
    wand(0)
    for t in range(32):
        if t + 1 < 32:
            if (t + 1) % 4 == 0:
                A(f"s_waitcnt lgkmcnt({7 - (t+1)//4})")
            wand(t + 1)
        else:
            g.nop(2)
        g.wait(("wo", t))
        c = "0" if t == 0 else vr(vD)
        A(f"v_mfma_f32_16x16x32_bf16 {vr(vD)}, {vr(vA+4*(t%2))}, {vr(vW+4*t)}, {c}")
    stamp()
    if PROF:
        A(f"v_cmp_lt_u32 s[26:27], v{vL}, 32")
        g.nop(2)
    g.wait("gg")
    g.nop(8)
    A(f"v_cndmask_b32 v{GR}, v{vD+2}, v{vD}, {sLo}")
    A(f"v_cndmask_b32 v{GR+2}, v{vD+3}, v{vD+1}, {sLo}")
    A(f"v_mul_f32 v{GR}, v{GR}, v{vCc}")
    A(f"v_mul_f32 v{GR+2}, v{GR+2}, v{vCc}")
    g.vmem(f"buffer_store_dwordx4 {vr(GR)}, v{vSA}, s[{sY}:{sY+3}], 0 offen {HF}", "yst")
    stamp()
    if P.get("nofinal"):
        A(f"s_branch {name}_fin")
    A(f"s_sub_u32 s21, s2, {RED0}")
    A(f"s_cmp_ge_u32 s21, {NRED}")
    A(f"s_cbranch_scc1 {name}_fin")
    RY = [vW + 4 * k for k in range(GPP)]
    A(f"s_lshl_b32 s26, s21, {4+lg}")
    A(f"s_add_u32 s27, s26, {WS_Y}")
    A(f"s_sub_u32 s24, {256*4096}, s26")
    srd(g, sY, 14, 15, "s27", "s24")

    def ypoll():
        for k in range(GPP):
            A(f"s_mov_b32 s26, {k*PPL*4096}")
            A(f"buffer_load_dwordx4 {vr(RY[k])}, v{vOy}, s[{sY}:{sY+3}], s26 offen {HF}")
    A(f"s_lshl_b32 s27, s21, {2+lg}")
    srd(g, sV, 4, 5, "s27", 4 * GPP)
    srd(g, sWQ, 70, 71, "s27", 4 * GPP)
    A(f"v_and_b32 v{vT+2}, {2*GPP-1}, v{vL}")
    A(f"v_lshlrev_b32 v{vT+2}, 1, v{vT+2}")
    A(f"buffer_load_ushort v{vXo}, v{vT+2}, s[{sV}:{sV+3}], 0 offen")
    A("s_mov_b32 s24, 0")
    g.label(name + "_gchk")
    for k in range(NGL):
        A(f"v_xor_b32 v{vT}, s73, v{RG[k]+1}")
        A(f"v_xor_b32 v{vT+1}, s74, v{RG[k]+3}")
        if k == 0:
            A(f"v_or_b32 v{vDf}, v{vT}, v{vT+1}")
        elif k < NGL - 1:
            A(f"v_or3_b32 v{vDf}, v{vDf}, v{vT}, v{vT+1}")
        else:
            A(f"v_or_b32 v{vT}, v{vT}, v{vT+1}")
            A(f"v_and_or_b32 v{vDf}, v{vT}, v{vGm}, v{vDf}")
    A(f"v_cmp_ne_u32 vcc, 0, v{vDf}")
    A("s_add_u32 s24, s24, 1")
    A(f"s_cbranch_vccz {name}_gok")
    A("s_cmp_ge_u32 s24, 0x40000")
    A(f"s_cbranch_scc1 {name}_gok")
    for k in range(NGL):
        A(f"s_mov_b32 s26, {k*PPL*4096}")
        A(f"buffer_load_dwordx4 {vr(RG[k])}, v{vOy}, s[{sW1}:{sW1+3}], s26 offen {HF}")
    A("s_waitcnt vmcnt(0)")
    A(f"s_branch {name}_gchk")
    g.label(name + "_gok")
    assert GPP == 8
    a0, a1, a2, a3 = vT + 8, vT + 9, vT + 10, vT + 11
    RYA = [vW + 4 * k for k in range(GPP)]
    RYB = [vW + 32 + 4 * k for k in range(GPP)]

    def ypoll2(R):
        for k in range(GPP):
            A(f"s_mov_b32 s26, {k*PPL*4096}")
            A(f"buffer_load_dwordx4 {vr(R[k])}, v{vOy}, s[{sY}:{sY+3}], s26 offen {HF}")
    ypoll2(RYA)
    A(f"v_mov_b32 v{a2}, v{RG[0]}")
    A(f"v_mov_b32 v{a3}, v{RG[0]+2}")
    for k in range(1, NGL):
        A(f"v_add_f32 v{a2}, v{a2}, v{RG[k]}")
        A(f"v_add_f32 v{a3}, v{a3}, v{RG[k]+2}")

    def red2(x0, x1, t):
        g.nop(2)
        A(f"v_permlane32_swap_b32 v{x0}, v{x1}")
        g.nop(1)
        A(f"v_add_f32 v{x0}, v{x0}, v{x1}")
        A(f"v_mov_b32 v{t}, v{x0}")
        g.nop(2)
        A(f"v_permlane16_swap_b32 v{x0}, v{t}")
        g.nop(1)
        A(f"v_add_f32 v{x0}, v{x0}, v{t}")
        g.nop(2)
        A(f"v_add_f32_dpp v{x0}, v{x0}, v{x0} row_ror:8 row_mask:0xf bank_mask:0xf")
    vWr, vRd, gv = vT + 12, vT + 13, vT + 14
    A(f"v_lshrrev_b32 v{vWr}, 5, v{vL}")
    A(f"v_and_b32 v{vT}, 7, v{vL}")
    A(f"v_lshl_add_u32 v{vWr}, v{vWr}, 3, v{vT}")
    A(f"v_lshlrev_b32 v{vWr}, 4, v{vWr}")
    A("s_lshl_b32 s26, s3, 2")
    A(f"v_add_u32 v{vWr}, s26, v{vWr}")
    A(f"v_and_b32 v{vRd}, 1, v{vL}")
    A(f"v_bfe_u32 v{vT}, v{vL}, 1, 3")
    A(f"v_lshl_add_u32 v{vRd}, v{vRd}, 3, v{vT}")
    A(f"v_lshlrev_b32 v{vRd}, 4, v{vRd}")
    red2(a2, a3, vT)
    A(f"ds_write_b32 v{vWr}, v{a2} offset:{L_RED}")
    A("s_waitcnt lgkmcnt(0)")
    A("s_barrier")
    A(f"ds_read_b128 {vr(vT+16)}, v{vRd} offset:{L_RED}")
    A("s_waitcnt lgkmcnt(0)")
    A(f"v_add_f32 v{gv}, v{vT+16}, v{vT+17}")
    A(f"v_add_f32 v{vT+18}, v{vT+18}, v{vT+19}")
    A(f"v_add_f32 v{gv}, v{gv}, v{vT+18}")
    bf16r(g, gv)
    silu(gv, vT + 16)
    if P.get("fst"): stamp()
    A("s_mov_b64 s[64:65], -1")
    A("s_mov_b32 s24, 0")

    def check(R, lab):
        for k in range(GPP):
            A(f"v_xor_b32 v{vT}, s73, v{R[k]+1}")
            A(f"v_xor_b32 v{vT+1}, s74, v{R[k]+3}")
            if k == 0:
                A(f"v_or_b32 v{vDf}, v{vT}, v{vT+1}")
            else:
                A(f"v_or3_b32 v{vDf}, v{vDf}, v{vT}, v{vT+1}")
        A(f"v_cmp_ne_u32 vcc, 0, v{vDf}")
        A("s_andn2_b64 s[66:67], exec, vcc")
        A("s_and_b64 s[64:65], exec, vcc")
        A("s_mov_b64 exec, s[66:67]")
        A(f"v_add_f32 v{a0}, v{R[0]}, v{R[1]}")
        A(f"v_add_f32 v{a1}, v{R[0]+2}, v{R[1]+2}")
        for k in range(2, GPP):
            A(f"v_add_f32 v{a0}, v{a0}, v{R[k]}")
            A(f"v_add_f32 v{a1}, v{a1}, v{R[k]+2}")
        A("s_cmp_eq_u64 s[64:65], 0")
        A(f"s_cbranch_scc1 {name}_got")
        A("s_mov_b64 exec, s[64:65]")
    g.label(name + "_poll")
    ypoll2(RYB)
    A("s_waitcnt vmcnt(8)")
    check(RYA, "a")
    ypoll2(RYA)
    A("s_waitcnt vmcnt(8)")
    check(RYB, "b")
    A("s_add_u32 s24, s24, 1")
    A(f"s_cmp_lt_u32 s24, 0x20000")
    A(f"s_cbranch_scc1 {name}_poll")
    g.label(name + "_got")
    A("s_mov_b64 exec, -1")
    if P.get("fst"): stamp()
    red2(a0, a1, vT)
    A(f"ds_write_b32 v{vWr}, v{a0} offset:{L_RED+256}")
    A("s_waitcnt lgkmcnt(0)")
    A("s_barrier")
    A("s_cmp_lg_u32 s3, 0")
    A(f"s_cbranch_scc1 {name}_fin")
    if P.get("fst"): stamp()
    A(f"ds_read_b128 {vr(vT+4)}, v{vRd} offset:{L_RED+256}")
    A(f"v_lshlrev_b32 v{vXo}, 16, v{vXo}")
    A("s_waitcnt lgkmcnt(0)")
    sv = vT + 4
    A(f"v_add_f32 v{sv}, v{vT+4}, v{vT+5}")
    A(f"v_add_f32 v{vT+6}, v{vT+6}, v{vT+7}")
    A(f"v_add_f32 v{sv}, v{sv}, v{vT+6}")
    bf16r(g, sv)
    A(f"v_mul_f32 v{sv}, v{sv}, v{gv}")
    bf16r(g, sv)
    A(f"v_add_f32 v{sv}, v{sv}, v{vXo}")
    A(f"v_cvt_pk_bf16_f32 v{sv}, v{sv}, v{sv}")
    A(f"v_and_b32 v{vT+2}, {2*GPP-1}, v{vL}")
    A(f"v_lshlrev_b32 v{vT+2}, 1, v{vT+2}")
    A(f"s_mov_b32 exec_lo, {(1 << (2*GPP)) - 1}")
    A("s_mov_b32 exec_hi, 0")
    A(f"buffer_store_short v{sv}, v{vT+2}, s[{sWQ}:{sWQ+3}], 0 offen {P.get('outflags', 'sc0 sc1')}")
    A(f"s_cmp_lg_u32 s21, 0")
    A(f"s_cbranch_scc1 {name}_fin")
    A(f"s_mov_b32 s27, {WS_EP}")
    srd(g, sGs, 14, 15, "s27", 4)
    A("s_mov_b32 exec_lo, 1")
    A(f"v_mov_b32 v{vT}, s73")
    A(f"v_mov_b32 v{vT+1}, 0")
    A(f"buffer_store_dword v{vT}, v{vT+1}, s[{sGs}:{sGs+3}], 0 offen sc0 sc1")
    g.label(name + "_fin")
    if PROF:
        A("s_cmp_lg_u32 s3, 0")
        A(f"s_cbranch_scc1 {name}_end")
        A("s_waitcnt vmcnt(0)")
        stamp()
        A("s_waitcnt lgkmcnt(0)")
        A("s_lshl_b32 s26, s2, 8")
        A(f"s_add_u32 s26, s26, {WS_PROF}")
        srd(g, sGs, 14, 15, "s26", 256)
        A("s_mov_b32 exec_lo, 1")
        A("s_mov_b32 exec_hi, 0")
        A(f"v_mov_b32 v{vT+2}, 0")
        for k in stamps:
            A(f"v_mov_b32 v{vT}, s{76+2*k}")
            A(f"v_mov_b32 v{vT+1}, s{77+2*k}")
            A(f"buffer_store_dwordx2 v[{vT}:{vT+1}], v{vT+2}, s[{sGs}:{sGs+3}], 0 offen offset:{8*k}")
            A("s_nop 2")
    if P.get("dbg"):
        A("s_cmp_lg_u32 s3, 0")
        A(f"s_cbranch_scc1 {name}_end")
        A("s_cmp_ge_u32 s2, 8")
        A(f"s_cbranch_scc1 {name}_end")
        A("s_memrealtime s[78:79]")
        A("s_load_dwordx2 s[80:81], s[0:1], 72")
        A("s_waitcnt lgkmcnt(0)")
        A("s_lshl_b32 s26, s2, 2")
        srd(g, sGs, 80, 81, "s26", 64)
        A("s_mov_b32 exec_lo, 1")
        A("s_mov_b32 exec_hi, 0")
        A(f"v_mov_b32 v{vT+2}, 0")
        A(f"v_mov_b32 v{vT}, s76")
        A(f"v_mov_b32 v{vT+1}, s78")
        A(f"buffer_store_dword v{vT}, v{vT+2}, s[{sGs}:{sGs+3}], 0 offen")
        A(f"buffer_store_dword v{vT+1}, v{vT+2}, s[{sGs}:{sGs+3}], 0 offen offset:32")
    g.label(name + "_end")
    A("s_endpgm")
    assert len(stamps) <= 12
    return nv, NACC, lds


def build(**P):
    P.setdefault("name", KNAME)
    g = G2()
    nv1, nacc, lds1 = kernel(g, P)
    body1 = g.text()
    out = HEADER
    out += f"; @launch grid=(256,1,1) block=(256,1,1) lds={lds1}\n"
    out += '.amdgcn_target "amdgcn-amd-amdhsa--gfx950"\n.text\n'
    out += f".globl {P['name']}\n.p2align 8\n.type {P['name']},@function\n" + body1
    out += '.section .rodata,"a"\n'
    out += descriptor2(P["name"], nv1, nacc)
    return out


if __name__ == "__main__":
    P = {}
    for a in sys.argv[1:]:
        k, v = a.split("=", 1)
        try:
            v = eval(v)
        except Exception:
            pass
        P[k] = v
    sys.stdout.write(build(**P))
```

```python
import sys
from gen import Gen, vr, allreduce64, rows_allreduce, bf16r, srd, KNAME, HEADER, LOG2E, SCALE, EPS, NUNITS
from gen4 import G2, descriptor2

WS_EP = 0
WS_ML = 4096
WS_Y = 32768
WS_G = 32768 + (1 << 20)
WS_Q = 2 << 20
WS_H = (2 << 20) + (256 << 10)
WS_PROF = 4 << 20
W1_BYTES = 512 * 2752


def kernel(g, P):
    RING = 16
    KVF = P.get("kvflags", "nt")
    name = P["name"]
    PROF = P.get("prof", 0)
    SLEEP = P.get("sleep", 1)
    GPP = P.get("gpp", 8)
    NRED = 256 // GPP
    RED0 = P.get("red0", 256 - NRED)
    NV1 = P.get("nv1", 24)
    AUTO = P.get("auto", 40)
    PRE = P.get("pre", 4)
    HF = P.get("hflags", "sc0 sc1")
    NT = 16
    DEPTH = P.get("depth", 8)
    vTID = 0
    vL, vJ, vG = 1, 2, 3
    vM = 4
    vNo = 8
    vMx, vLs = 12, 13
    vQ = 14
    vD2 = 16
    vA = 20
    vD = 28
    vT = 32
    vCc = 62
    vWOo = 63
    vR = 64
    vW = 128
    nv = 256
    NACC = 256
    vSC = vT + 14

    def slot(j):
        return vR + 4 * (j % RING)

    vXA = vW
    vXM = vW + 4
    vWQ = vW + 8
    vW1 = vW + 24
    vW2 = vW + 40
    vQG = vW + 48
    vHG = vW + 56
    vWQo = vW + 60
    vW1o = vW + 61
    vHo = vW + 62
    Yg = vW + 64

    L_QP = 0
    L_HP = 2048
    L_QB = 4096
    L_MX = 5120
    L_RED = 5248
    L_Q2 = 6144
    L_YP = 8192
    L_OP = 16384
    L_OB = 18432
    lds = 20480

    A = g.A
    stamps = []

    skip = set(P.get("skipst", ()))
    cnt_st = [0]
    def stamp(force=False):
        cnt_st[0] += 1
        if (cnt_st[0] - 1) in skip:
            return
        if PROF:
            k = len(stamps)
            A(f"s_memrealtime s[{76+2*k}:{77+2*k}]")
            stamps.append(k)

    sX, sK, sV, sWQ, sWO, sW1, sW2, sY, sGs = 28, 32, 36, 40, 44, 48, 52, 56, 60

    events = set()
    plan = []

    def kv_text(kind, i, t):
        sr = sK if kind == "k" else sV
        so = 64 + i // 4
        vo = vNo + i % 4
        dst = vr(slot(4 * i + t)) if kind == "k" else f"a[{16*i+4*t}:{16*i+4*t+3}]"
        return [f"buffer_load_dwordx4 {dst}, v{vo}, s[{sr}:{sr+3}], s{so} offen offset:{t*1024} {KVF}"]

    def K(i, cond=None):
        return [(cond, kv_text("k", i, t), ("k", i, t)) for t in range(4)]

    def V(j):
        return (None, kv_text("v", j // 4, j % 4), ("v", j))

    def WO(t):
        return ("w_free", [f"s_mov_b32 s69, {(t//4)*4096}", f"buffer_load_dwordx4 {vr(vW+4*t)}, v{vWOo}, s[{sWO}:{sWO+3}], s69 offen offset:{(t%4)*1024}"], ("wo", t))

    NVA = P.get("nva", 8)
    plan += K(0) + K(1)
    plan += [V(j) for j in range(NVA)]
    plan += K(2) + K(3)
    plan += [V(j) for j in range(NVA, NV1)]
    n_pre_qk = len(plan)
    rest = [WO(t) for t in range(32)]
    WO0 = P.get("wo0", 8)
    per = -(-32 // (NT - WO0))
    vnext = [NV1]
    WOLAST = P.get("wolast", 0)
    early = rest[:32 - WOLAST]
    late = rest[32 - WOLAST:]
    per = -(-len(early) // (NT - WO0)) if early else 0
    for i in range(4, NT):
        plan += K(i, ("kt", i - 4))
        if i >= WO0:
            for _ in range(per):
                if early:
                    plan.append(early.pop(0))
        for _ in range(P.get("vq", 0)):
            plan.append(V(vnext[0])); vnext[0] += 1
    plan += early
    plan += [V(j) for j in range(vnext[0], 64)]
    plan += late
    st = {"next": 0}

    def pump(n, upto=None):
        done = 0
        while done < n and st["next"] < len(plan):
            if upto is not None and st["next"] >= upto:
                break
            cond, text, tag = plan[st["next"]]
            if cond is not None and cond not in events:
                break
            if DEPTH:
                g.pace(DEPTH)
            for s in text[:-1]:
                g.A(s)
            g.vmem(text[-1], tag)
            st["next"] += 1
            done += 1
        return done

    def issued_tags():
        return set(p[2] for p in plan[:st["next"]])

    limit = {"v": n_pre_qk}
    g.pump = lambda n: pump(n, limit["v"])

    g.label(name)
    stamp()
    if P.get("dbg"):
        A("s_memrealtime s[76:77]")
    A("s_load_dwordx8 s[4:11], s[0:1], 0")
    A("s_load_dwordx2 s[14:15], s[0:1], 80")
    A("s_load_dwordx4 s[16:19], s[0:1], 48")
    A("s_cmp_ge_u32 s2, 256")
    A(f"s_cbranch_scc1 {name}_end")
    A(f"v_lshrrev_b32 v{vT}, 6, v{vTID}")
    A(f"v_and_b32 v{vL}, 63, v{vTID}")
    A("s_and_b32 s20, s2, 7")
    A(f"v_readfirstlane_b32 s3, v{vT}")
    A(f"v_lshlrev_b32 v{vNo}, 4, v{vL}")
    A("s_lshl_b32 s20, s20, 2")
    A("s_bfe_u32 s22, s2, 0x20003")
    A("s_add_u32 s20, s20, s22")
    A("s_lshr_b32 s21, s2, 5")
    A("s_lshl_b32 s22, s20, 3")
    A("s_add_u32 s22, s22, s21")
    A("s_lshl_b32 s26, s22, 18")
    A("s_lshl_b32 s64, s3, 12")
    A(f"v_add_u32 v{vNo+1}, 16384, v{vNo}")
    A(f"v_add_u32 v{vNo+2}, 32768, v{vNo}")
    A(f"s_mov_b32 s{sK+2}, 262144")
    A(f"s_mov_b32 s{sK+3}, 0x00020000")
    A("s_waitcnt lgkmcnt(0)")
    A(f"s_add_u32 s{sK}, s6, s26")
    A(f"s_addc_u32 s{sK+1}, s7, 0")
    pump(4)
    srd(g, sX, 4, 5, None, 1024)
    A(f"v_lshrrev_b32 v{vG}, 4, v{vL}")
    A("s_lshl_b32 s69, s21, 6")
    A("s_lshl_b32 s25, s3, 4")
    A("s_add_u32 s69, s69, s25")
    A(f"v_lshlrev_b32 v{vT+3}, 3, v{vG}")
    A("s_lshl_b32 s24, s69, 1")
    g.vmem(f"buffer_load_dwordx4 {vr(vXA)}, v{vNo}, s[{sX}:{sX+3}], 0 offen", "xa")
    g.vmem(f"buffer_load_dwordx2 v[{vXM}:{vXM+1}], v{vT+3}, s[{sX}:{sX+3}], s24 offen", "xm")
    pump(4)
    A("s_load_dwordx2 s[12:13], s[0:1], 32")
    A("s_load_dwordx2 s[70:71], s[0:1], 64")
    A(f"s_load_dword s72, s[14:15], {WS_EP}")
    A(f"v_and_b32 v{vJ}, 15, v{vL}")
    A(f"v_lshlrev_b32 v{vT}, 4, v{vJ}")
    A(f"v_lshl_add_u32 v{vWQo}, v{vG}, 15, v{vT}")
    A("s_lshl_b32 s23, s69, 13")
    A("s_lshl_b32 s25, s20, 8")
    A("s_add_u32 s23, s23, s25")
    A("s_sub_u32 s27, 0x400000, s23")
    srd(g, sWQ, 10, 11, "s23", "s27")
    for t in range(4):
        A(f"s_mov_b32 s68, {t*8192}")
        g.vmem(f"buffer_load_dwordx4 {vr(vWQ+4*t)}, v{vWQo}, s[{sWQ}:{sWQ+3}], s68 offen", ("wq", t))
    srd(g, sV, 8, 9, "s26", 262144)
    pump(PRE)
    A(f"v_add_u32 v{vNo+3}, 49152, v{vNo}")
    for a_ in range(1, 4):
        A(f"s_add_u32 s{64+a_}, s64, {a_*65536}")
    A(f"v_lshl_add_u32 v{vWOo}, v{vG}, 15, v{vT}")
    A(f"v_mul_u32_u24 v{vW1o}, {4*2752}, v{vG}")
    A(f"v_add_u32 v{vW1o}, v{vW1o}, v{vT}")
    A("s_mul_i32 s23, s69, 2752")
    A("s_add_u32 s23, s23, s25")
    A(f"s_sub_u32 s27, {W1_BYTES}, s23")
    A("s_cmp_lt_u32 s20, 11")
    A("s_cselect_b32 s27, s27, 0")
    A("s_cselect_b32 s23, s23, 0")
    srd(g, sW1, 16, 17, "s23", "s27")
    for t in range(4):
        A(f"s_mov_b32 s68, {t*2752}")
        g.vmem(f"buffer_load_dwordx4 {vr(vW1+4*t)}, v{vW1o}, s[{sW1}:{sW1+3}], s68 offen", ("w1", t), real=False)
    A("s_waitcnt lgkmcnt(0)")
    A("s_add_u32 s23, s20, 21")
    A("s_and_b32 s23, s23, 31")
    A("s_lshl_b32 s23, s23, 3")
    A("s_add_u32 s23, s23, s21")
    A(f"s_cmp_lt_u32 s23, {NUNITS}")
    A("s_cselect_b32 s25, 1, 0")
    A("s_cselect_b32 s23, s23, 0")
    if P.get("nog"): A("s_mov_b32 s25, 0")
    A("s_lshl_b32 s26, s23, 3")
    A("s_add_u32 s26, s26, s3")
    A("s_lshl_b32 s26, s26, 10")
    A("s_mul_i32 s27, s25, 5120")
    srd(g, sW2, 18, 19, "s26", "s27")
    A("s_lshl_b32 s26, s20, 17")
    A("s_lshl_b32 s27, s3, 8")
    A("s_add_u32 s26, s26, s27")
    A("s_sub_u32 s27, 0x400000, s26")
    if P.get("nowo"): A("s_mov_b32 s27, 0")
    srd(g, sWO, 12, 13, "s26", "s27")
    stamp()
    g.auto = AUTO
    A(f"v_and_b32 v{vT}, 1, v{vJ}")
    A(f"v_lshlrev_b32 v{vT}, 4, v{vT}")
    A(f"v_mov_b32 v{vT+1}, 0xffff")
    A(f"v_lshlrev_b32 v{vT+1}, v{vT}, v{vT+1}")
    A(f"v_bfe_u32 v{vT}, v{vJ}, 1, 2")
    for r in range(4):
        A(f"v_cmp_eq_u32 vcc, {r}, v{vT}")
        g.nop(2)
        A(f"v_cndmask_b32 v{vM+r}, 0, v{vT+1}, vcc")

    g.wait("xa")
    X = vT
    for k in range(4):
        A(f"v_lshlrev_b32 v{X+2*k}, 16, v{vXA+k}")
        A(f"v_and_b32 v{X+2*k+1}, 0xffff0000, v{vXA+k}")
    S, Tm = vT + 8, vT + 9
    A(f"v_add_f32 v{S}, v{X}, v{X+1}")
    for k in range(2, 8):
        A(f"v_add_f32 v{S}, v{S}, v{X+k}")
    allreduce64(g, "add", S, Tm)
    A(f"v_mul_f32 v{S}, 0x3b000000, v{S}")
    Q = vT + 10
    for k in range(8):
        A(f"v_sub_f32 v{X+k}, v{X+k}, v{S}")
    A(f"v_mul_f32 v{Q}, v{X}, v{X}")
    for k in range(1, 8):
        A(f"v_fmac_f32 v{Q}, v{X+k}, v{X+k}")
    allreduce64(g, "add", Q, Tm)
    A(f"v_mul_f32 v{Q}, 0x3b000000, v{Q}")
    bf16r(g, S)
    bf16r(g, Q)
    A(f"v_add_f32 v{Q}, {hex(EPS)}, v{Q}")
    bf16r(g, Q)
    A(f"v_sqrt_f32 v{Q}, v{Q}")
    g.nop(1)
    bf16r(g, Q)
    RS = vT + 11
    A(f"v_rcp_f32 v{RS}, v{Q}")
    g.nop(1)
    MEAN, SD = S, Q

    def normalize(src, t0, t1):
        A(f"v_sub_f32 v{src}, v{src}, v{MEAN}")
        bf16r(g, src)
        A(f"v_mul_f32 v{t0}, v{src}, v{RS}")
        A(f"v_fma_f32 v{t1}, -v{t0}, v{SD}, v{src}")
        A(f"v_fma_f32 v{t0}, v{t1}, v{RS}, v{t0}")

    vXP = vT + 14
    g.wait("xm")
    for k in range(2):
        A(f"v_lshlrev_b32 v{X}, 16, v{vXM+k}")
        A(f"v_and_b32 v{X+1}, 0xffff0000, v{vXM+k}")
        normalize(X, X + 2, X + 3)
        normalize(X + 1, X + 4, X + 5)
        A(f"v_cvt_pk_bf16_f32 v{vXP+2*k}, v{X+2}, v{X+2}")
        A(f"v_cvt_pk_bf16_f32 v{vXP+2*k+1}, v{X+4}, v{X+4}")

    def ands(src, aset):
        for r in range(4):
            A(f"v_and_b32 v{vA+4*aset+r}, v{vM+r}, v{src}")

    ands(vXP, 0)
    for t in range(4):
        if t < 3:
            ands(vXP + t + 1, (t + 1) % 2)
        else:
            g.nop(2)
        g.wait(("wq", t))
        c = "0" if t == 0 else vr(vD)
        A(f"v_mfma_f32_16x16x32_bf16 {vr(vD)}, {vr(vA+4*(t%2))}, {vr(vWQ+4*t)}, {c}")
        g.wait(("w1", t))
        c = "0" if t == 0 else vr(vD2)
        A(f"v_mfma_f32_16x16x32_bf16 {vr(vD2)}, {vr(vA+4*(t%2))}, {vr(vW1+4*t)}, {c}")
    aQ = vT + 6
    A(f"v_and_b32 v{aQ}, 1, v{vG}")
    A(f"v_lshlrev_b32 v{aQ}, 4, v{aQ}")
    A(f"v_lshl_add_u32 v{aQ}, v{vJ}, 5, v{aQ}")
    A("s_lshl_b32 s26, s3, 9")
    A(f"v_add_u32 v{aQ}, s26, v{aQ}")
    A("s_lshl_b32 s26, s22, 10")
    A(f"s_add_u32 s27, s26, {WS_Q}")
    A(f"s_add_u32 s26, s26, {WS_H}")
    A("s_cmp_eq_u32 s3, 0")
    A("s_cselect_b32 s26, s27, s26")
    A("s_cselect_b32 s27, 1024, 0")
    A("s_cselect_b32 s24, 0, 2048")
    A("s_cmp_eq_u32 s3, 1")
    A("s_cselect_b32 s68, 1024, 0")
    A("s_cmp_lt_u32 s20, 11")
    A("s_cselect_b32 s68, s68, 0")
    A("s_add_u32 s27, s27, s68")
    srd(g, sGs, 14, 15, "s26", "s27")
    A(f"ds_write_b128 v{aQ}, {vr(vD)} offset:{L_QP}")
    A(f"ds_write_b128 v{aQ}, {vr(vD2)} offset:{L_HP}")
    g.auto = 0
    aR = vT + 6
    A(f"v_lshlrev_b32 v{aR}, 3, v{vL}")
    A(f"v_add_u32 v{aR}, s24, v{aR}")
    A("s_waitcnt lgkmcnt(0)")
    A("s_barrier")
    stamp()
    QS = vT + 14
    for w in range(4):
        A(f"ds_read_b64 v[{QS+2*w}:{QS+2*w+1}], v{aR} offset:{L_QP + w*512}")
    A("s_mul_i32 s73, s72, 0x9E3779B1")
    A("s_add_u32 s73, s73, 0x7F4A7C15")
    A("s_mul_i32 s74, s72, 0x85EBCA77")
    A("s_add_u32 s74, s74, 0xC2B2AE3D")
    A("s_waitcnt lgkmcnt(0)")
    A(f"v_add_f32 v{QS}, v{QS}, v{QS+2}")
    A(f"v_add_f32 v{QS+1}, v{QS+1}, v{QS+3}")
    A(f"v_add_f32 v{QS+4}, v{QS+4}, v{QS+6}")
    A(f"v_add_f32 v{QS+5}, v{QS+5}, v{QS+7}")
    A(f"v_add_f32 v{QS}, v{QS}, v{QS+4}")
    A(f"v_add_f32 v{QS+2}, v{QS+1}, v{QS+5}")
    A(f"v_mov_b32 v{QS+1}, s73")
    A(f"v_mov_b32 v{QS+3}, s74")
    g.vmem(f"buffer_store_dwordx4 {vr(QS)}, v{vNo}, s[{sGs}:{sGs+3}], 0 offen {HF}", "qst")
    stamp()
    g.vmem(f"buffer_load_dwordx4 {vr(vW2)}, v{vNo}, s[{sW2}:{sW2+3}], 0 offen", "w2", real=False)
    A("s_movk_i32 s27, 4096")
    g.vmem(f"buffer_load_dwordx4 {vr(vW2+4)}, v{vNo}, s[{sW2}:{sW2+3}], s27 offen", "w2", real=False)
    pump(P.get("pre3", 12))
    A("s_lshl_b32 s26, s20, 13")
    A("s_lshl_b32 s27, s3, 11")
    A("s_add_u32 s26, s26, s27")
    A(f"s_add_u32 s26, s26, {WS_Q}")
    srd(g, sGs, 14, 15, "s26", 2048)
    g.vmem(f"buffer_load_dwordx4 {vr(vQG)}, v{vNo}, s[{sGs}:{sGs+3}], 0 offen {HF}", "qg")
    g.vmem(f"buffer_load_dwordx4 {vr(vQG+4)}, v{vNo}, s[{sGs}:{sGs+3}], 0 offen offset:1024 {HF}", "qg")
    pump(P.get("pre4", 16))
    A("s_mov_b32 s24, 0")
    g.wait("qg")
    g.label(name + "_qchk")
    A(f"v_xor_b32 v{vT}, s73, v{vQG+1}")
    A(f"v_xor_b32 v{vT+1}, s74, v{vQG+3}")
    A(f"v_xor_b32 v{vT+2}, s73, v{vQG+5}")
    A(f"v_xor_b32 v{vT+3}, s74, v{vQG+7}")
    A(f"v_or3_b32 v{vT}, v{vT}, v{vT+1}, v{vT+2}")
    A(f"v_or_b32 v{vT}, v{vT}, v{vT+3}")
    A(f"v_cmp_ne_u32 vcc, 0, v{vT}")
    A("s_add_u32 s24, s24, 1")
    if P.get("noqwait"): A(f"s_branch {name}_qok")
    A(f"s_cbranch_vccz {name}_qok")
    A("s_cmp_ge_u32 s24, 0x40000")
    A(f"s_cbranch_scc1 {name}_qok")
    A(f"buffer_load_dwordx4 {vr(vQG)}, v{vNo}, s[{sGs}:{sGs+3}], 0 offen {HF}")
    A(f"buffer_load_dwordx4 {vr(vQG+4)}, v{vNo}, s[{sGs}:{sGs+3}], 0 offen offset:1024 {HF}")
    A("s_waitcnt vmcnt(0)")
    A(f"s_branch {name}_qchk")
    g.label(name + "_qok")
    A(f"v_add_f32 v{vT}, v{vQG}, v{vQG+4}")
    A(f"v_add_f32 v{vT+1}, v{vQG+2}, v{vQG+6}")
    A(f"v_lshlrev_b32 v{aR}, 3, v{vL}")
    A("s_lshl_b32 s26, s3, 9")
    A(f"v_add_u32 v{vT+2}, s26, v{aR}")
    A(f"ds_write_b64 v{vT+2}, v[{vT}:{vT+1}] offset:{L_Q2}")
    A(f"v_bfe_u32 v{vHo}, v{vL}, 2, 3")
    A(f"v_lshlrev_b32 v{vHo}, 10, v{vHo}")
    A(f"v_and_b32 v{vT+3}, 3, v{vL}")
    A(f"v_lshl_add_u32 v{vHo}, v{vT+3}, 4, v{vHo}")
    A("s_lshr_b32 s26, s23, 4")
    A("s_lshl_b32 s26, s26, 13")
    A("s_and_b32 s27, s23, 15")
    A("s_lshl_b32 s27, s27, 6")
    A("s_add_u32 s26, s26, s27")
    A(f"s_add_u32 s26, s26, {WS_H}")
    A("s_mul_i32 s27, s25, 8192")
    srd(g, sW1, 14, 15, "s26", "s27")
    g.vmem(f"buffer_load_dwordx4 {vr(vHG)}, v{vHo}, s[{sW1}:{sW1+3}], 0 offen {HF}", "hg", real=False)
    pump(1000, n_pre_qk)
    A("s_waitcnt lgkmcnt(0)")
    A("s_barrier")
    stamp()
    for w in range(4):
        A(f"ds_read_b64 v[{QS+2*w}:{QS+2*w+1}], v{aR} offset:{L_Q2 + w*512}")
    A(f"v_lshlrev_b32 v{vT+2}, 2, v{vL}")
    A("s_lshl_b32 s26, s3, 8")
    A(f"v_add_u32 v{vT+2}, s26, v{vT+2}")
    A(f"v_lshlrev_b32 v{vT+3}, 4, v{vJ}")
    A(f"v_add_u32 v{vT+3}, s26, v{vT+3}")
    A("s_waitcnt lgkmcnt(0)")
    A(f"v_add_f32 v{QS}, v{QS}, v{QS+2}")
    A(f"v_add_f32 v{QS+1}, v{QS+1}, v{QS+3}")
    A(f"v_add_f32 v{QS+4}, v{QS+4}, v{QS+6}")
    A(f"v_add_f32 v{QS+5}, v{QS+5}, v{QS+7}")
    A(f"v_add_f32 v{QS}, v{QS}, v{QS+4}")
    A(f"v_add_f32 v{QS+1}, v{QS+1}, v{QS+5}")
    A(f"v_cvt_pk_bf16_f32 v{QS}, v{QS}, v{QS+1}")
    A(f"ds_write_b32 v{vT+2}, v{QS} offset:{L_QB}")
    A("s_waitcnt lgkmcnt(0)")
    A(f"ds_read_b128 {vr(vQ)}, v{vT+3} offset:{L_QB}")

    def silu(v, t):
        A(f"v_mul_f32 v{t}, {hex(LOG2E ^ 0x80000000)}, v{v}")
        A(f"v_exp_f32 v{t}, v{t}")
        g.nop(1)
        A(f"v_add_f32 v{t}, 1.0, v{t}")
        A(f"v_rcp_f32 v{t+1}, v{t}")
        g.nop(1)
        A(f"v_mul_f32 v{t+2}, v{v}, v{t+1}")
        A(f"v_fma_f32 v{t+3}, -v{t+2}, v{t}, v{v}")
        A(f"v_fma_f32 v{t+2}, v{t+3}, v{t+1}, v{t+2}")
        A(f"v_cmp_lt_f32 vcc, 0x7f000000, v{t}")
        A(f"v_mul_f32 v{t+3}, v{v}, v{t+1}")
        g.nop(1)
        A(f"v_cndmask_b32 v{v}, v{t+2}, v{t+3}, vcc")
        bf16r(g, v)

    a = [vT + 1, vT + 2, vT + 3, vT + 4]
    b0, b1 = vT + 5, vT + 6
    PQ = P.get("pq", 12)

    def qk(i):
        while ("k", i, 3) not in issued_tags():
            assert pump(1) == 1
        g.wait(("k", i, 3))
        if P.get("noqk"):
            events.add(("kt", i))
            pump(PQ if i < NT - 4 else P.get("pql", 0))
            A(f"v_mov_b32 v{vSC+i}, v{slot(4*i)}")
            return
        for c in range(4):
            for t in range(4):
                if c == 0:
                    A(f"v_dot2_f32_bf16 v{a[t]}, v{slot(4*i+t)}, v{vQ}, 0")
                else:
                    A(f"v_dot2c_f32_bf16 v{a[t]}, v{slot(4*i+t)+c}, v{vQ+c}")
        events.add(("kt", i))
        pump(PQ if i < NT - 4 else P.get("pql", 0))
        A(f"v_add_f32_dpp v{b0}, v{a[0]}, v{a[0]} row_ror:8 row_mask:0xf bank_mask:0x3")
        A(f"v_add_f32_dpp v{b1}, v{a[1]}, v{a[1]} row_ror:8 row_mask:0xf bank_mask:0x3")
        A(f"v_add_f32_dpp v{b0}, v{a[2]}, v{a[2]} row_ror:8 row_mask:0xf bank_mask:0xc")
        A(f"v_add_f32_dpp v{b1}, v{a[3]}, v{a[3]} row_ror:8 row_mask:0xf bank_mask:0xc")
        g.nop(2)
        c_ = vSC + i
        A(f"v_add_f32_dpp v{c_}, v{b0}, v{b0} row_half_mirror row_mask:0xf bank_mask:0x5")
        A(f"v_add_f32_dpp v{c_}, v{b1}, v{b1} row_half_mirror row_mask:0xf bank_mask:0xa")
        g.nop(2)
        A(f"v_add_f32_dpp v{c_}, v{c_}, v{c_} quad_perm:[1,0,3,2] row_mask:0xf bank_mask:0xf")
        g.nop(2)
        A(f"v_add_f32_dpp v{c_}, v{c_}, v{c_} quad_perm:[2,3,0,1] row_mask:0xf bank_mask:0xf")
        bf16r(g, c_)
        A(f"v_mul_f32 v{c_}, {hex(SCALE)}, v{c_}")
        bf16r(g, c_)

    limit["v"] = None
    A("s_waitcnt lgkmcnt(0)")
    stamp()
    GT = P.get("gt", 1)
    for i in range(GT):
        qk(i)
    g.wait("hg")
    A("s_mov_b32 s24, 0")
    g.label(name + "_hchk")
    A(f"v_xor_b32 v{vT}, s73, v{vHG+1}")
    A(f"v_xor_b32 v{vT+1}, s74, v{vHG+3}")
    A(f"v_or_b32 v{vT}, v{vT}, v{vT+1}")
    A(f"v_cmp_ne_u32 vcc, 0, v{vT}")
    A("s_add_u32 s24, s24, 1")
    A(f"s_cbranch_vccz {name}_hok")
    A("s_cmp_eq_u32 s25, 0")
    A(f"s_cbranch_scc1 {name}_hok")
    A("s_cmp_ge_u32 s24, 0x40000")
    A(f"s_cbranch_scc1 {name}_hok")
    A(f"buffer_load_dwordx4 {vr(vHG)}, v{vHo}, s[{sW1}:{sW1+3}], 0 offen {HF}")
    A("s_waitcnt vmcnt(0)")
    A(f"s_branch {name}_hchk")
    g.label(name + "_hok")
    g.auto = P.get("gauto", 0)
    h0, h1 = vHG, vHG + 2
    for ctl in ("row_ror:4", "row_ror:8"):
        g.nop(1)
        A(f"v_add_f32_dpp v{h0}, v{h0}, v{h0} {ctl} row_mask:0xf bank_mask:0xf")
        A(f"v_add_f32_dpp v{h1}, v{h1}, v{h1} {ctl} row_mask:0xf bank_mask:0xf")
    A(f"v_mov_b32 v{vT}, v{h0}")
    A(f"v_mov_b32 v{vT+1}, v{h1}")
    g.nop(1)
    A(f"v_permlane16_swap_b32 v{h0}, v{vT}")
    A(f"v_permlane16_swap_b32 v{h1}, v{vT+1}")
    g.nop(1)
    A(f"v_add_f32 v{h0}, v{h0}, v{vT}")
    A(f"v_add_f32 v{h1}, v{h1}, v{vT+1}")
    A("s_and_b32 s26, s3, 1")
    A("s_cmp_eq_u32 s26, 1")
    A("s_cselect_b64 s[26:27], -1, 0")
    A("s_lshr_b32 s24, s3, 1")
    A("s_add_u32 s68, s24, 2")
    A(f"v_cndmask_b32 v{h0}, v{h0}, v{h1}, s[26:27]")
    g.nop(1)
    A(f"v_readlane_b32 s26, v{h0}, s24")
    A(f"v_readlane_b32 s27, v{h0}, s68")
    Ha, Hb = vT, vT + 7
    g.nop(2)
    A(f"v_mov_b32 v{Ha}, s26")
    A(f"v_mov_b32 v{Hb}, s27")
    bf16r(g, Ha)
    bf16r(g, Hb)
    silu(Ha, vT + 1)
    silu(Hb, vT + 1)
    g.wait("w2")
    for k in range(4):
        A(f"v_lshlrev_b32 v{Yg+2*k}, 16, v{vW2+k}")
        A(f"v_and_b32 v{Yg+2*k+1}, 0xffff0000, v{vW2+k}")
        A(f"v_lshlrev_b32 v{vT+8}, 16, v{vW2+4+k}")
        A(f"v_and_b32 v{vT+9}, 0xffff0000, v{vW2+4+k}")
        A(f"v_mul_f32 v{Yg+2*k}, v{Yg+2*k}, v{Ha}")
        A(f"v_mul_f32 v{Yg+2*k+1}, v{Yg+2*k+1}, v{Ha}")
        A(f"v_fmac_f32 v{Yg+2*k}, v{vT+8}, v{Hb}")
        A(f"v_fmac_f32 v{Yg+2*k+1}, v{vT+9}, v{Hb}")
    aY = vT + 1
    A(f"v_lshlrev_b32 v{aY}, 5, v{vL}")
    A("s_lshl_b32 s26, s3, 11")
    A(f"v_add_u32 v{aY}, s26, v{aY}")
    A(f"ds_write_b128 v{aY}, {vr(Yg)} offset:{L_YP}")
    g.auto = 0
    A(f"ds_write_b128 v{aY}, {vr(Yg+4)} offset:{L_YP+16}")
    A("s_waitcnt lgkmcnt(0)")
    events.add("w_free")
    qk(GT)
    A("s_barrier")
    GS = vT + 6
    A(f"v_lshlrev_b32 v{vT}, 3, v{vTID}")
    for w in range(4):
        A(f"ds_read_b64 v[{GS+2*w}:{GS+2*w+1}], v{vT} offset:{L_YP + w*2048}")
    A(f"s_lshl_b32 s26, s23, 12")
    A(f"s_add_u32 s26, s26, {WS_G}")
    A("s_lshl_b32 s27, s25, 12")
    srd(g, sGs, 14, 15, "s26", "s27")
    A(f"v_lshlrev_b32 v{vT+1}, 4, v{vTID}")
    A("s_waitcnt lgkmcnt(0)")
    A(f"v_add_f32 v{GS}, v{GS}, v{GS+2}")
    A(f"v_add_f32 v{GS+1}, v{GS+1}, v{GS+3}")
    A(f"v_add_f32 v{GS+4}, v{GS+4}, v{GS+6}")
    A(f"v_add_f32 v{GS+5}, v{GS+5}, v{GS+7}")
    A(f"v_add_f32 v{GS}, v{GS}, v{GS+4}")
    A(f"v_add_f32 v{GS+2}, v{GS+1}, v{GS+5}")
    A(f"v_mov_b32 v{GS+1}, s73")
    A(f"v_mov_b32 v{GS+3}, s74")
    g.vmem(f"buffer_store_dwordx4 {vr(GS)}, v{vT+1}, s[{sGs}:{sGs+3}], 0 offen {HF}", "gst")
    for i in range(GT + 1, NT):
        qk(i)
    stamp()
    A(f"v_max3_f32 v{vMx}, v{vSC}, v{vSC+1}, v{vSC+2}")
    for k in range(3, NT - 1, 2):
        A(f"v_max3_f32 v{vMx}, v{vMx}, v{vSC+k}, v{vSC+k+1}")
    A(f"v_max_f32 v{vMx}, v{vMx}, v{vSC+NT-1}")
    for ctl in ("row_ror:4", "row_ror:8"):
        g.nop(2)
        A(f"v_max_f32_dpp v{vMx}, v{vMx}, v{vMx} {ctl} row_mask:0xf bank_mask:0xf")
    rows_allreduce(g, "max", vMx, vT)
    A("s_lshl_b32 s26, s3, 2")
    A(f"v_mov_b32 v{vT}, s26")
    A(f"ds_write_b32 v{vT}, v{vMx} offset:{L_MX}")
    pump(P.get("pm", 4))
    A("s_waitcnt lgkmcnt(0)")
    A("s_barrier")
    g.auto = P.get("softauto", 0)
    A(f"v_mov_b32 v{vT}, 0")
    A(f"ds_read_b128 {vr(vT+4)}, v{vT} offset:{L_MX}")
    A("s_lshl_b32 s26, s22, 2")
    A("s_add_u32 s26, s26, s3")
    A("s_lshl_b32 s26, s26, 4")
    A(f"s_add_u32 s26, s26, {WS_ML}")
    srd(g, sGs, 14, 15, "s26", 16)
    A(f"s_mov_b32 s26, {hex(LOG2E)}")
    A("s_waitcnt lgkmcnt(0)")
    A(f"v_max3_f32 v{vMx}, v{vT+4}, v{vT+5}, v{vT+6}")
    A(f"v_max_f32 v{vMx}, v{vMx}, v{vT+7}")
    A(f"v_mul_f32 v{vT}, s26, v{vMx}")
    for k in range(NT):
        A(f"v_fma_f32 v{vSC+k}, v{vSC+k}, s26, -v{vT}")
    for k in range(NT):
        A(f"v_exp_f32 v{vSC+k}, v{vSC+k}")
    A(f"v_mov_b32 v{vT+1}, s73")
    A(f"v_add_f32 v{vLs}, v{vSC}, v{vSC+1}")
    A(f"v_add_f32 v{vT+5}, v{vSC+2}, v{vSC+3}")
    for k in range(4, NT, 2):
        A(f"v_add_f32 v{vLs}, v{vLs}, v{vSC+k}")
        A(f"v_add_f32 v{vT+5}, v{vT+5}, v{vSC+k+1}")
    A(f"v_add_f32 v{vLs}, v{vLs}, v{vT+5}")
    for k in range(NT):
        A(f"v_cvt_pk_bf16_f32 v{vSC+k}, v{vSC+k}, v{vSC+k}")
        if k == 3:
            A(f"v_add_f32_dpp v{vLs}, v{vLs}, v{vLs} row_ror:4 row_mask:0xf bank_mask:0xf")
        if k == 7:
            A(f"v_add_f32_dpp v{vLs}, v{vLs}, v{vLs} row_ror:8 row_mask:0xf bank_mask:0xf")
    rows_allreduce(g, "add", vLs, vT + 5)
    A(f"v_mov_b32 v{vT}, v{vMx}")
    A(f"v_mov_b32 v{vT+2}, v{vLs}")
    A(f"v_mov_b32 v{vT+3}, s74")
    g.auto = 0
    A(f"v_lshlrev_b32 v{vT+4}, 4, v{vL}")
    g.vmem(f"buffer_store_dwordx4 {vr(vT)}, v{vT+4}, s[{sGs}:{sGs+3}], 0 offen {HF}", "mlst")
    RML = vR
    vOm = vR + 41
    A("s_lshl_b32 s26, s20, 9")
    A(f"s_add_u32 s26, s26, {WS_ML}")
    srd(g, sK, 14, 15, "s26", 512)
    A(f"v_and_b32 v{vOm}, 31, v{vL}")
    A(f"v_lshlrev_b32 v{vOm}, 4, v{vOm}")
    n_vend = max(i for i, p_ in enumerate(plan) if p_[2][0] == "v") + 1
    left = n_vend - st["next"]
    pump(max(0, left - P.get("mlafter", 8)))
    g.vmem(f"buffer_load_dwordx4 {vr(RML)}, v{vOm}, s[{sK}:{sK+3}], 0 offen {HF}", "mlg")
    pump(1000, n_vend)
    stamp()
    def pand(tt):
        if P.get("nopv"): return
        for r in range(4):
            A(f"v_and_b32_dpp v{vA+4*(tt%2)+r}, v{vSC+tt//4}, v{vM+r} row_newbcast:{4*(tt%4)} row_mask:0xf bank_mask:0xf")
    NV = 4 * NT
    RML = vR
    PPL = 256 // GPP
    NGL = (NUNITS + PPL - 1) // PPL
    RG = [vR + 4 + 4 * k for k in range(NGL)]
    assert 4 + 4 * NGL <= 40
    vOy, vOm, vDf, vXo = vR + 40, vR + 41, vR + 42, vR + 43
    vGm = vR + 44
    lg = {1: 0, 2: 1, 4: 2, 8: 3}[GPP]
    GLT = P.get("glt", 8)
    MLT = P.get("mlt", 52)

    cT = vR + 48
    def cfactor():
        g.wait("mlg")
        A("s_mov_b32 s24, 0")
        g.label(name + "_mlchk")
        A(f"v_xor_b32 v{cT}, s73, v{RML+1}")
        A(f"v_xor_b32 v{cT+1}, s74, v{RML+3}")
        A(f"v_or_b32 v{cT}, v{cT}, v{cT+1}")
        A(f"v_cmp_ne_u32 vcc, 0, v{cT}")
        A("s_add_u32 s24, s24, 1")
        if P.get("nomlwait"): A(f"s_branch {name}_mlok")
        A(f"s_cbranch_vccz {name}_mlok")
        A("s_cmp_ge_u32 s24, 0x40000")
        A(f"s_cbranch_scc1 {name}_mlok")
        A(f"buffer_load_dwordx4 {vr(RML)}, v{vOm}, s[{sK}:{sK+3}], 0 offen {HF}")
        A("s_waitcnt vmcnt(0)")
        A(f"s_branch {name}_mlchk")
        g.label(name + "_mlok")
        Mh, E_, L_, C_ = cT, cT + 1, cT + 2, vCc
        A(f"v_mov_b32 v{Mh}, v{RML}")
        for ctl in ("quad_perm:[1,0,3,2]", "quad_perm:[2,3,0,1]", "row_half_mirror", "row_mirror"):
            g.nop(2)
            A(f"v_max_f32_dpp v{Mh}, v{Mh}, v{Mh} {ctl} row_mask:0xf bank_mask:0xf")
        A(f"v_mov_b32 v{cT+3}, v{Mh}")
        g.nop(2)
        A(f"v_permlane16_swap_b32 v{Mh}, v{cT+3}")
        g.nop(1)
        A(f"v_max_f32 v{Mh}, v{Mh}, v{cT+3}")
        A(f"v_sub_f32 v{E_}, v{RML}, v{Mh}")
        A(f"v_sub_f32 v{C_}, v{vMx}, v{Mh}")
        A(f"v_mul_f32 v{E_}, {hex(LOG2E)}, v{E_}")
        A(f"v_mul_f32 v{C_}, {hex(LOG2E)}, v{C_}")
        A(f"v_exp_f32 v{E_}, v{E_}")
        A(f"v_exp_f32 v{C_}, v{C_}")
        g.nop(1)
        A(f"v_mul_f32 v{L_}, v{E_}, v{RML+2}")
        for ctl in ("quad_perm:[1,0,3,2]", "quad_perm:[2,3,0,1]", "row_half_mirror", "row_mirror"):
            g.nop(2)
            A(f"v_add_f32_dpp v{L_}, v{L_}, v{L_} {ctl} row_mask:0xf bank_mask:0xf")
        A(f"v_mov_b32 v{cT+3}, v{L_}")
        g.nop(2)
        A(f"v_permlane16_swap_b32 v{L_}, v{cT+3}")
        g.nop(1)
        A(f"v_add_f32 v{L_}, v{L_}, v{cT+3}")
        A(f"v_rcp_f32 v{cT+3}, v{L_}")
        g.nop(1)
        A(f"v_mul_f32 v{cT}, v{C_}, v{cT+3}")
        A(f"v_fma_f32 v{cT+1}, -v{cT}, v{L_}, v{C_}")
        A(f"v_fma_f32 v{C_}, v{cT+1}, v{cT+3}, v{cT}")

    pand(0)
    for t in range(NV):
        if t + 1 < NV:
            pand(t + 1)
        else:
            g.nop(2)
        g.wait(("v", t))
        c = "0" if t == 0 else vr(vD)
        if not P.get("nopv") or t == 0:
            A(f"v_mfma_f32_16x16x32_bf16 {vr(vD)}, {vr(vA+4*(t%2))}, a[{4*t}:{4*t+3}], {c}")
        pump(1)
        if t == GLT:
            A(f"v_lshrrev_b32 v{vT}, {lg}, v{vTID}")
            A(f"v_and_b32 v{vT+1}, {GPP-1}, v{vTID}")
            A(f"v_lshlrev_b32 v{vT+1}, 4, v{vT+1}")
            A(f"v_lshl_add_u32 v{vOy}, v{vT}, 12, v{vT+1}")
            klast = NGL - 1
            A(f"v_cmp_gt_u32 vcc, {NUNITS - klast*PPL}, v{vT}")
            A(f"v_mov_b32 v{vGm}, 0")
            g.nop(1)
            A(f"v_cndmask_b32 v{vGm}, v{vGm}, -1, vcc")
            A(f"s_sub_u32 s24, s2, {RED0}")
            A(f"s_cmp_lt_u32 s24, {NRED}")
            A(f"s_cselect_b32 s21, 1, 0")
            A(f"s_cselect_b32 s24, s24, 0")
            A(f"s_lshl_b32 s26, s24, {4+lg}")
            A(f"s_add_u32 s27, s26, {WS_G}")
            A(f"s_sub_u32 s24, {NUNITS*4096}, s26")
            A(f"s_mul_i32 s24, s24, s21")
            srd(g, sW1, 14, 15, "s27", "s24")
            for k in range(NGL):
                A(f"s_mov_b32 s26, {k*PPL*4096}")
                g.vmem(f"buffer_load_dwordx4 {vr(RG[k])}, v{vOy}, s[{sW1}:{sW1+3}], s26 offen {HF}", "gg", real=False)
            A(f"v_and_b32 v{vT+8}, 1, v{vG}")
            A(f"v_lshlrev_b32 v{vT+8}, 4, v{vT+8}")
            A(f"v_lshl_add_u32 v{vT+8}, v{vJ}, 5, v{vT+8}")
            A("s_lshl_b32 s26, s3, 9")
            A(f"v_add_u32 v{vT+8}, s26, v{vT+8}")
            A(f"v_lshlrev_b32 v{vT+9}, 3, v{vL}")
            A(f"v_add_u32 v{vT+1}, s26, v{vT+9}")
            A(f"v_lshlrev_b32 v{vT+2}, 7, v{vG}")
            A(f"v_add_u32 v{vT+2}, s26, v{vT+2}")
            A(f"v_mov_b32 v{vT+5}, s73")
            A(f"v_mov_b32 v{vT+7}, s74")
            A(f"v_and_b32 v{vT+10}, 1, v{vG}")
            A(f"v_lshlrev_b32 v{vT+10}, 5, v{vT+10}")
            A(f"v_lshl_add_u32 v{vT+10}, v{vJ}, 6, v{vT+10}")
            A(f"v_lshrrev_b32 v{vT+11}, 1, v{vG}")
            A(f"v_lshl_add_u32 v{vT+10}, v{vT+11}, 4, v{vT+10}")
            A("s_lshl_b32 s26, s22, 12")
            A("s_lshl_b32 s27, s3, 10")
            A("s_add_u32 s26, s26, s27")
            A(f"s_add_u32 s26, s26, {WS_Y}")
            srd(g, sY, 14, 15, "s26", 1024)
            A(f"v_cmp_lt_u32 s[74+22:74+23], v{vL}, 32".replace("74+22", "96").replace("74+23", "97") if not PROF else f"v_cmp_lt_u32 s[26:27], v{vL}, 32")
        if t == MLT:
            cfactor()
    assert st["next"] == len(plan), (st["next"], len(plan))
    sLo = "s[96:97]" if not PROF else "s[26:27]"
    stamp()
    aQ, GR, vSA = vT + 8, vT + 4, vT + 10
    g.nop(8)
    A(f"ds_write_b128 v{aQ}, {vr(vD)} offset:{L_OP}")
    A("s_waitcnt lgkmcnt(0)")
    A("s_barrier")
    O4 = vR + 48
    for w in range(4):
        A(f"ds_read_b64 v[{O4+2*w}:{O4+2*w+1}], v{vT+9} offset:{L_OP + w*512}")
    A("s_waitcnt lgkmcnt(0)")
    A(f"v_add_f32 v{O4}, v{O4}, v{O4+2}")
    A(f"v_add_f32 v{O4+1}, v{O4+1}, v{O4+3}")
    A(f"v_add_f32 v{O4+4}, v{O4+4}, v{O4+6}")
    A(f"v_add_f32 v{O4+5}, v{O4+5}, v{O4+7}")
    A(f"v_add_f32 v{O4}, v{O4}, v{O4+4}")
    A(f"v_add_f32 v{O4+1}, v{O4+1}, v{O4+5}")
    A(f"v_cvt_pk_bf16_f32 v{O4}, v{O4}, v{O4}")
    A(f"v_cvt_pk_bf16_f32 v{O4+1}, v{O4+1}, v{O4+1}")
    A(f"ds_write_b64 v{vT+1}, v[{O4}:{O4+1}] offset:{L_OB}")
    A("s_waitcnt lgkmcnt(0)")
    ODr = [vSC + k for k in range(16)] + [vR + 48 + k for k in range(16)]
    for k in range(8):
        A(f"ds_read_b128 {vr(ODr[4*k])}, v{vT+2} offset:{L_OB+16*k}")

    def wand(t):
        for r in range(4):
            A(f"v_and_b32 v{vA+4*(t%2)+r}, v{vM+r}, v{ODr[t]}")
    A("s_waitcnt lgkmcnt(7)")
    wand(0)
    for t in range(32):
        if t + 1 < 32:
            if (t + 1) % 4 == 0:
                A(f"s_waitcnt lgkmcnt({7 - (t+1)//4})")
            wand(t + 1)
        else:
            g.nop(2)
        g.wait(("wo", t))
        c = "0" if t == 0 else vr(vD)
        A(f"v_mfma_f32_16x16x32_bf16 {vr(vD)}, {vr(vA+4*(t%2))}, {vr(vW+4*t)}, {c}")
    stamp()
    if PROF:
        A(f"v_cmp_lt_u32 s[26:27], v{vL}, 32")
        g.nop(2)
    g.wait("gg")
    g.nop(8)
    A(f"v_cndmask_b32 v{GR}, v{vD+2}, v{vD}, {sLo}")
    A(f"v_cndmask_b32 v{GR+2}, v{vD+3}, v{vD+1}, {sLo}")
    A(f"v_mul_f32 v{GR}, v{GR}, v{vCc}")
    A(f"v_mul_f32 v{GR+2}, v{GR+2}, v{vCc}")
    g.vmem(f"buffer_store_dwordx4 {vr(GR)}, v{vSA}, s[{sY}:{sY+3}], 0 offen {HF}", "yst")
    stamp()
    if P.get("nofinal"):
        A(f"s_branch {name}_fin")
    A(f"s_sub_u32 s21, s2, {RED0}")
    A(f"s_cmp_ge_u32 s21, {NRED}")
    A(f"s_cbranch_scc1 {name}_fin")
    RY = [vW + 4 * k for k in range(GPP)]
    A(f"s_lshl_b32 s26, s21, {4+lg}")
    A(f"s_add_u32 s27, s26, {WS_Y}")
    A(f"s_sub_u32 s24, {256*4096}, s26")
    srd(g, sY, 14, 15, "s27", "s24")

    def ypoll():
        for k in range(GPP):
            A(f"s_mov_b32 s26, {k*PPL*4096}")
            A(f"buffer_load_dwordx4 {vr(RY[k])}, v{vOy}, s[{sY}:{sY+3}], s26 offen {HF}")
    A(f"s_lshl_b32 s27, s21, {2+lg}")
    srd(g, sV, 4, 5, "s27", 4 * GPP)
    srd(g, sWQ, 70, 71, "s27", 4 * GPP)
    A(f"v_and_b32 v{vT+2}, {2*GPP-1}, v{vL}")
    A(f"v_lshlrev_b32 v{vT+2}, 1, v{vT+2}")
    A(f"buffer_load_ushort v{vXo}, v{vT+2}, s[{sV}:{sV+3}], 0 offen")
    A("s_mov_b32 s24, 0")
    g.label(name + "_gchk")
    for k in range(NGL):
        A(f"v_xor_b32 v{vT}, s73, v{RG[k]+1}")
        A(f"v_xor_b32 v{vT+1}, s74, v{RG[k]+3}")
        if k == 0:
            A(f"v_or_b32 v{vDf}, v{vT}, v{vT+1}")
        elif k < NGL - 1:
            A(f"v_or3_b32 v{vDf}, v{vDf}, v{vT}, v{vT+1}")
        else:
            A(f"v_or_b32 v{vT}, v{vT}, v{vT+1}")
            A(f"v_and_or_b32 v{vDf}, v{vT}, v{vGm}, v{vDf}")
    A(f"v_cmp_ne_u32 vcc, 0, v{vDf}")
    A("s_add_u32 s24, s24, 1")
    A(f"s_cbranch_vccz {name}_gok")
    A("s_cmp_ge_u32 s24, 0x40000")
    A(f"s_cbranch_scc1 {name}_gok")
    for k in range(NGL):
        A(f"s_mov_b32 s26, {k*PPL*4096}")
        A(f"buffer_load_dwordx4 {vr(RG[k])}, v{vOy}, s[{sW1}:{sW1+3}], s26 offen {HF}")
    A("s_waitcnt vmcnt(0)")
    A(f"s_branch {name}_gchk")
    g.label(name + "_gok")
    assert GPP == 8
    a0, a1, a2, a3 = vT + 8, vT + 9, vT + 10, vT + 11
    RYA = [vW + 4 * k for k in range(GPP)]
    RYB = [vW + 32 + 4 * k for k in range(GPP)]

    def ypoll2(R):
        for k in range(GPP):
            A(f"s_mov_b32 s26, {k*PPL*4096}")
            A(f"buffer_load_dwordx4 {vr(R[k])}, v{vOy}, s[{sY}:{sY+3}], s26 offen {HF}")
    ypoll2(RYA)
    A(f"v_mov_b32 v{a2}, v{RG[0]}")
    A(f"v_mov_b32 v{a3}, v{RG[0]+2}")
    for k in range(1, NGL):
        A(f"v_add_f32 v{a2}, v{a2}, v{RG[k]}")
        A(f"v_add_f32 v{a3}, v{a3}, v{RG[k]+2}")

    def red2(x0, x1, t):
        g.nop(2)
        A(f"v_permlane32_swap_b32 v{x0}, v{x1}")
        g.nop(1)
        A(f"v_add_f32 v{x0}, v{x0}, v{x1}")
        A(f"v_mov_b32 v{t}, v{x0}")
        g.nop(2)
        A(f"v_permlane16_swap_b32 v{x0}, v{t}")
        g.nop(1)
        A(f"v_add_f32 v{x0}, v{x0}, v{t}")
        g.nop(2)
        A(f"v_add_f32_dpp v{x0}, v{x0}, v{x0} row_ror:8 row_mask:0xf bank_mask:0xf")
    vWr, vRd, gv = vT + 12, vT + 13, vT + 14
    A(f"v_lshrrev_b32 v{vWr}, 5, v{vL}")
    A(f"v_and_b32 v{vT}, 7, v{vL}")
    A(f"v_lshl_add_u32 v{vWr}, v{vWr}, 3, v{vT}")
    A(f"v_lshlrev_b32 v{vWr}, 4, v{vWr}")
    A("s_lshl_b32 s26, s3, 2")
    A(f"v_add_u32 v{vWr}, s26, v{vWr}")
    A(f"v_and_b32 v{vRd}, 1, v{vL}")
    A(f"v_bfe_u32 v{vT}, v{vL}, 1, 3")
    A(f"v_lshl_add_u32 v{vRd}, v{vRd}, 3, v{vT}")
    A(f"v_lshlrev_b32 v{vRd}, 4, v{vRd}")
    red2(a2, a3, vT)
    A(f"ds_write_b32 v{vWr}, v{a2} offset:{L_RED}")
    A("s_waitcnt lgkmcnt(0)")
    A("s_barrier")
    A(f"ds_read_b128 {vr(vT+16)}, v{vRd} offset:{L_RED}")
    A("s_waitcnt lgkmcnt(0)")
    A(f"v_add_f32 v{gv}, v{vT+16}, v{vT+17}")
    A(f"v_add_f32 v{vT+18}, v{vT+18}, v{vT+19}")
    A(f"v_add_f32 v{gv}, v{gv}, v{vT+18}")
    bf16r(g, gv)
    silu(gv, vT + 16)
    if P.get("fst"): stamp()
    A("s_mov_b64 s[64:65], -1")
    A("s_mov_b32 s24, 0")

    def check(R, lab):
        for k in range(GPP):
            A(f"v_xor_b32 v{vT}, s73, v{R[k]+1}")
            A(f"v_xor_b32 v{vT+1}, s74, v{R[k]+3}")
            if k == 0:
                A(f"v_or_b32 v{vDf}, v{vT}, v{vT+1}")
            else:
                A(f"v_or3_b32 v{vDf}, v{vDf}, v{vT}, v{vT+1}")
        A(f"v_cmp_ne_u32 vcc, 0, v{vDf}")
        A("s_andn2_b64 s[66:67], exec, vcc")
        A("s_and_b64 s[64:65], exec, vcc")
        A("s_mov_b64 exec, s[66:67]")
        A(f"v_add_f32 v{a0}, v{R[0]}, v{R[1]}")
        A(f"v_add_f32 v{a1}, v{R[0]+2}, v{R[1]+2}")
        for k in range(2, GPP):
            A(f"v_add_f32 v{a0}, v{a0}, v{R[k]}")
            A(f"v_add_f32 v{a1}, v{a1}, v{R[k]+2}")
        A("s_cmp_eq_u64 s[64:65], 0")
        A(f"s_cbranch_scc1 {name}_got")
        A("s_mov_b64 exec, s[64:65]")
    g.label(name + "_poll")
    ypoll2(RYB)
    A("s_waitcnt vmcnt(8)")
    check(RYA, "a")
    ypoll2(RYA)
    A("s_waitcnt vmcnt(8)")
    check(RYB, "b")
    if P.get("backoff", 0):
        A("s_bcnt1_i32_b64 s27, s[64:65]")
        A(f"s_cmp_gt_u32 s27, {P.get('bthr', 8)}")
        A(f"s_cbranch_scc0 {name}_nosl")
        A(f"s_sleep {P.get('backoff')}")
        g.label(name + "_nosl")
    A("s_add_u32 s24, s24, 1")
    A(f"s_cmp_lt_u32 s24, 0x20000")
    A(f"s_cbranch_scc1 {name}_poll")
    g.label(name + "_got")
    A("s_mov_b64 exec, -1")
    if P.get("fst"): stamp()
    red2(a0, a1, vT)
    A(f"ds_write_b32 v{vWr}, v{a0} offset:{L_RED+256}")
    A("s_waitcnt lgkmcnt(0)")
    A("s_barrier")
    A("s_cmp_lg_u32 s3, 0")
    A(f"s_cbranch_scc1 {name}_fin")
    if P.get("fst"): stamp()
    A(f"ds_read_b128 {vr(vT+4)}, v{vRd} offset:{L_RED+256}")
    A(f"v_lshlrev_b32 v{vXo}, 16, v{vXo}")
    A("s_waitcnt lgkmcnt(0)")
    sv = vT + 4
    A(f"v_add_f32 v{sv}, v{vT+4}, v{vT+5}")
    A(f"v_add_f32 v{vT+6}, v{vT+6}, v{vT+7}")
    A(f"v_add_f32 v{sv}, v{sv}, v{vT+6}")
    bf16r(g, sv)
    A(f"v_mul_f32 v{sv}, v{sv}, v{gv}")
    bf16r(g, sv)
    A(f"v_add_f32 v{sv}, v{sv}, v{vXo}")
    A(f"v_cvt_pk_bf16_f32 v{sv}, v{sv}, v{sv}")
    A(f"v_and_b32 v{vT+2}, {2*GPP-1}, v{vL}")
    A(f"v_lshlrev_b32 v{vT+2}, 1, v{vT+2}")
    A(f"s_mov_b32 exec_lo, {(1 << (2*GPP)) - 1}")
    A("s_mov_b32 exec_hi, 0")
    A(f"buffer_store_short v{sv}, v{vT+2}, s[{sWQ}:{sWQ+3}], 0 offen {P.get('outflags', 'sc0 sc1')}")
    A(f"s_cmp_lg_u32 s21, 0")
    A(f"s_cbranch_scc1 {name}_fin")
    A(f"s_mov_b32 s27, {WS_EP}")
    srd(g, sGs, 14, 15, "s27", 4)
    A("s_mov_b32 exec_lo, 1")
    A(f"v_mov_b32 v{vT}, s73")
    A(f"v_mov_b32 v{vT+1}, 0")
    A(f"buffer_store_dword v{vT}, v{vT+1}, s[{sGs}:{sGs+3}], 0 offen sc0 sc1")
    g.label(name + "_fin")
    if PROF:
        A("s_cmp_lg_u32 s3, 0")
        A(f"s_cbranch_scc1 {name}_end")
        A("s_waitcnt vmcnt(0)")
        stamp()
        A("s_waitcnt lgkmcnt(0)")
        A("s_lshl_b32 s26, s2, 8")
        A(f"s_add_u32 s26, s26, {WS_PROF}")
        srd(g, sGs, 14, 15, "s26", 256)
        A("s_mov_b32 exec_lo, 1")
        A("s_mov_b32 exec_hi, 0")
        A(f"v_mov_b32 v{vT+2}, 0")
        for k in stamps:
            A(f"v_mov_b32 v{vT}, s{76+2*k}")
            A(f"v_mov_b32 v{vT+1}, s{77+2*k}")
            A(f"buffer_store_dwordx2 v[{vT}:{vT+1}], v{vT+2}, s[{sGs}:{sGs+3}], 0 offen offset:{8*k}")
            A("s_nop 2")
    if P.get("dbg"):
        A("s_cmp_lg_u32 s3, 0")
        A(f"s_cbranch_scc1 {name}_end")
        A("s_cmp_ge_u32 s2, 8")
        A(f"s_cbranch_scc1 {name}_end")
        A("s_memrealtime s[78:79]")
        A("s_load_dwordx2 s[80:81], s[0:1], 72")
        A("s_waitcnt lgkmcnt(0)")
        A("s_lshl_b32 s26, s2, 2")
        srd(g, sGs, 80, 81, "s26", 64)
        A("s_mov_b32 exec_lo, 1")
        A("s_mov_b32 exec_hi, 0")
        A(f"v_mov_b32 v{vT+2}, 0")
        A(f"v_mov_b32 v{vT}, s76")
        A(f"v_mov_b32 v{vT+1}, s78")
        A(f"buffer_store_dword v{vT}, v{vT+2}, s[{sGs}:{sGs+3}], 0 offen")
        A(f"buffer_store_dword v{vT+1}, v{vT+2}, s[{sGs}:{sGs+3}], 0 offen offset:32")
    g.label(name + "_end")
    A("s_endpgm")
    assert len(stamps) <= 12
    return nv, NACC, lds


def build(**P):
    P.setdefault("name", KNAME)
    g = G2()
    nv1, nacc, lds1 = kernel(g, P)
    body1 = g.text()
    out = HEADER
    out += f"; @launch grid=(256,1,1) block=(256,1,1) lds={lds1}\n"
    out += '.amdgcn_target "amdgcn-amd-amdhsa--gfx950"\n.text\n'
    out += f".globl {P['name']}\n.p2align 8\n.type {P['name']},@function\n" + body1
    out += '.section .rodata,"a"\n'
    out += descriptor2(P["name"], nv1, nacc)
    return out


if __name__ == "__main__":
    P = {}
    for a in sys.argv[1:]:
        k, v = a.split("=", 1)
        try:
            v = eval(v)
        except Exception:
            pass
        P[k] = v
    sys.stdout.write(build(**P))
```
